```python
import torch

def _softmax(x, axis=-1):
    return torch.softmax(x, dim=axis)
def _gelu(x):
    return torch.nn.functional.gelu(x, approximate="tanh")
def _silu(x):
    return torch.nn.functional.silu(x)
def _sigmoid(x):
    return torch.sigmoid(x)
def _layernorm(x, axis=-1, eps=1e-5):
    m = x.mean(dim=axis, keepdim=True)
    v = x.var(dim=axis, keepdim=True, unbiased=False)
    return (x - m) / torch.sqrt(v + eps)
def _scatter_add(tgt, idx, src, axis=0):
    return tgt.clone().index_add_(axis, idx, src)
def _segment_sum(src, seg, n):
    out = torch.zeros((n,) + src.shape[1:], dtype=src.dtype)
    return out.index_add_(0, seg, src)
def _pad(x, pw):
    flat = tuple(v for pair in reversed(pw) for v in pair)
    return torch.nn.functional.pad(x, flat)

kernel_name = 'gated_mix__sliding_local_dilated__dense_activation_relu__prompt'

def setup_inputs():

    _w = (lambda a: (lambda t: t.to(torch.bfloat16) if t.is_floating_point() else t)(torch.as_tensor(a)))
    def _A_setup():
        B, S, D = 1, 2048, 640
        return {
            "x": _w((lambda *s: torch.randn(*s, dtype=torch.bfloat16) * 0.05)(B, S, D)),
            "wqkv": _w((lambda *s: torch.randn(*s, dtype=torch.bfloat16) * 0.8)(D, 3 * D)),
            "wo": _w((lambda *s: torch.randn(*s, dtype=torch.bfloat16) * 0.05)(D, D)),
        }
    _A_in = _A_setup()

    def _B_setup():
        B, S, D, Dff = 1, 2048, 640, 1728
        return {
            "x": _w((lambda *s: torch.randn(*s, dtype=torch.bfloat16) * 0.05)(B, S, D)),
            "w1": _w((lambda *s: torch.randn(*s, dtype=torch.bfloat16) * 0.1)(D, Dff)),
            "w2": _w((lambda *s: torch.randn(*s, dtype=torch.bfloat16) * 0.1)(Dff, D)),
        }
    _B_in = _B_setup()

    return {
        "A_x": _A_in["x"],
        "A_wqkv": _A_in["wqkv"],
        "A_wo": _A_in["wo"],
        "B_x": _B_in["x"],
        "B_w1": _B_in["w1"],
        "B_w2": _B_in["w2"],
        "gate_w": _w((lambda *s: torch.randn(*s, dtype=torch.bfloat16) * 0.05)(640) * 16.0),
    }

def reference(A_x, A_wqkv, A_wo, B_x, B_w1, B_w2, gate_w):
    def _A_ref(x, wqkv, wo):
        B, S, D = x.shape
        H = 32; Dh = D // H
        W, dil = 8, 2
        qkv = (lambda x, *d: x.permute(*d))((x @ wqkv).reshape(B, S, 3, H, Dh), 2, 0, 3, 1, 4)
        q, k, v = qkv[0], qkv[1], qkv[2]
        scale = Dh ** -0.5
        pos = torch.arange(S)
        off = torch.arange(W) * dil
        idx = pos[:, None] - off[None, :]
        mask = idx >= 0
        idx_c = torch.where(mask, idx, 0).reshape(-1)
        kg = k[:, :, idx_c, :].reshape(B, H, S, W, Dh)
        vg = v[:, :, idx_c, :].reshape(B, H, S, W, Dh)
        logits = torch.einsum("bhsd,bhswd->bhsw", q, kg) * scale
        logits = torch.where(mask[None, None, :, :], logits, -1e9)
        attn = _softmax(logits, axis=-1)
        o = torch.einsum("bhsw,bhswd->bhsd", attn, vg)
        return (lambda x, *d: x.permute(*d))(o, 0, 2, 1, 3).reshape(B, S, D) @ wo

    def _B_ref(x, w1, w2):
        h = torch.einsum("bsd,df->bsf", x, w1)
        zero = torch.zeros_like(h)
        h = torch.maximum(h, zero)
        return torch.einsum("bsf,fd->bsd", h, w2)

    x = A_x
    g = _sigmoid((x * gate_w).sum(-1, keepdims=True))
    a = _A_ref(x, A_wqkv, A_wo)
    b = _B_ref(x, B_w1, B_w2)
    return g * a + (1 - g) * b
```

```python
from emit import *
KN = 'gated_mix__sliding_local_dilated__dense_activation_relu__prompt'
S, D = 2048, 640
NSTEP2 = 74
A2_STEP = 128 * 1024
G_OFF = NSTEP2 * A2_STEP
WS_BYTES = 268435456
WBLK = 1056; WSLOT = 16 * WBLK; NWS = 5
XOFF = NWS * WSLOT; XSLOT = 144 * 128; NXS = 3
GOFF = XOFF + NXS * XSLOT
LDS_P1_END = GOFF + 1280
OOB = 0x7ff00000

def vr(b, n=1): return f'v{b}' if n == 1 else f'v[{b}:{b+n-1}]'
def ar(b, n=1): return f'a{b}' if n == 1 else f'a[{b}:{b+n-1}]'
def sr(b, n=1): return f's{b}' if n == 1 else f's[{b}:{b+n-1}]'

def kstart(name):
    return f".globl {name}\n.p2align 8\n.type {name},@function\n{name}:"
def kdesc(name, vgpr=512, accum=256, sgpr=96):
    return f""".section .rodata,"a"
.p2align 6
.amdhsa_kernel {name}
  .amdhsa_next_free_vgpr {vgpr}
  .amdhsa_next_free_sgpr {sgpr}
  .amdhsa_accum_offset {accum}
  .amdhsa_group_segment_fixed_size 0
  .amdhsa_kernarg_size 80
  .amdhsa_user_sgpr_count 2
  .amdhsa_user_sgpr_kernarg_segment_ptr 1
  .amdhsa_system_sgpr_workgroup_id_x 1
.end_amdhsa_kernel
.text
"""
SX, SW, SWS, SW2, SWO, SOUT, SGATE = 8, 12, 16, 20, 24, 28, 32
sWV, sRB, sC, sROLE = 36, 37, 38, 39
sM0W, sM0X, sM0H, sKW, sKX = 40, 41, 42, 43, 44
sT0, sT1, sT2, sT3 = 60, 61, 62, 63
```

```python
import re

REG_RE = re.compile(r'^(-|\|)?(v|a|s)(\d+|\[(\d+):(\d+)\])\|?$')

def regs_of(tok):
    tok = tok.strip()
    if tok.startswith('abs(') and tok.endswith(')'): tok = tok[4:-1]
    if tok.startswith('-abs(') and tok.endswith(')'): tok = tok[5:-1]
    if tok in ('vcc',): return [('s', 'vcc_lo'), ('s', 'vcc_hi')]
    if tok in ('vcc_lo', 'vcc_hi'): return [('s', tok)]
    if tok == 'exec': return [('s', 'exec_lo'), ('s', 'exec_hi')]
    if tok in ('exec_lo', 'exec_hi'): return [('s', tok)]
    if tok == 'm0': return [('s', 'm0')]
    m = REG_RE.match(tok)
    if not m: return []
    k = m.group(2)
    if m.group(4) is not None:
        return [(k, i) for i in range(int(m.group(4)), int(m.group(5)) + 1)]
    return [(k, int(m.group(3)))]

TRANS = ('v_exp_f32', 'v_log_f32', 'v_rcp_f32', 'v_rsq_f32', 'v_sqrt_f32', 'v_sin_f32', 'v_cos_f32', 'v_rcp_iflag_f32')
RMW = ('v_fmac_f32', 'v_dot2c_f32_bf16', 'v_pk_fmac')

class Inst:
    __slots__ = ('text', 'op', 'kind', 'rd', 'wr', 'passes', 'srcc', 'srcab', 'dpp', 'wide_store', 'data', 'id')
    def __init__(self, text):
        self.text = text
        t = text.split(';')[0].strip()
        parts = t.split(None, 1)
        op = parts[0]; self.op = op
        rest = parts[1] if len(parts) > 1 else ''
        ops = [x.strip() for x in rest.split(',')] if rest else []
        mods = ''
        if ops:
            last = ops[-1].split(None, 1)
            ops[-1] = last[0] if last else ''
            mods = last[1] if len(last) > 1 else ''
        self.rd, self.wr = set(), set()
        self.passes = 0; self.srcc = []; self.srcab = set(); self.dpp = ('_dpp' in op) or ('row_' in mods) or ('quad_perm' in rest)
        self.wide_store = False; self.data = set()
        R = lambda i: regs_of(ops[i]) if i < len(ops) else []
        allr = lambda a: [r for i in range(a, len(ops)) for r in R(i)]
        if op.startswith('v_mfma'):
            self.kind = 'mfma'
            self.wr = set(R(0)); self.srcab = set(R(1) + R(2)); self.srcc = R(3)
            self.rd = self.srcab | set(self.srcc)
            self.passes = 4 if ('16x16x32' in op or '16x16x16' in op) else 8
            assert any(s in op for s in ('16x16x32_bf16', '16x16x16_bf16', '16x16x4_4b_bf16', '32x32x16_bf16')), op
        elif op.startswith('v_'):
            self.kind = 'trans' if op.replace('_e32', '').replace('_e64', '') in TRANS else 'valu'
            if 'permlane' in op and 'swap' in op:
                self.wr = set(R(0) + R(1)); self.rd = set(R(0) + R(1))
            elif op.startswith('v_cmp'):
                self.wr = set(R(0)); self.rd = set(allr(1))
                if op.startswith('v_cmpx'): self.wr |= set(regs_of('exec'))
            elif op.startswith(('v_add_co', 'v_sub_co', 'v_addc_co', 'v_subb_co', 'v_mad_u64', 'v_div_scale')):
                self.wr = set(R(0) + R(1)); self.rd = set(allr(2))
            else:
                self.wr = set(R(0)); self.rd = set(allr(1))
                if op.startswith(RMW) or self.dpp or 'sdwa' in op or op.startswith('v_writelane'): self.rd |= set(R(0))
                if op.startswith('v_cndmask') and len(ops) == 3: self.rd |= set(regs_of('vcc'))
        elif op.startswith('ds_'):
            if op.startswith(('ds_read', 'ds_bpermute', 'ds_permute', 'ds_swizzle')):
                self.kind = 'ds_read'; self.wr = set(R(0)); self.rd = set(allr(1))
            else:
                self.kind = 'ds_write'; self.rd = set(allr(0))
        elif op.startswith(('buffer_', 'global_')):
            islds = (' lds' in ' ' + mods) or ('load_lds' in op)
            if op in ('buffer_wbl2', 'buffer_inv'):
                self.kind = 'vmem'
            elif 'load' in op and islds:
                self.kind = 'vmem'; self.rd = set(allr(0)) | {('s', 'm0')}
            elif 'load' in op:
                self.kind = 'vmem'; self.wr = set(R(0)); self.rd = set(allr(1))
            elif 'atomic' in op and 'sc0' in mods:
                self.kind = 'vmem'
                if op.startswith('global_'): self.wr = set(R(0)); self.rd = set(allr(1))
                else: self.wr = set(R(0)); self.rd = set(allr(0))
            else:
                self.kind = 'vmem'; self.rd = set(allr(0))
                if 'dwordx3' in op or 'dwordx4' in op:
                    self.wide_store = True
                    self.data = set(R(0)) if op.startswith('buffer_') else set(R(1))
        elif op.startswith('s_'):
            if op.startswith(('s_load', 's_buffer_load', 's_memtime', 's_memrealtime', 's_atomic')):
                self.kind = 'smem'; self.wr = set(R(0)); self.rd = set(allr(1))
            elif op.startswith(('s_cmp', 's_bitcmp')):
                self.kind = 'salu'; self.rd = set(allr(0))
            elif op.startswith(('s_waitcnt', 's_barrier', 's_nop', 's_sleep', 's_setprio', 's_endpgm', 's_branch', 's_cbranch')):
                self.kind = 'ctl'
            elif 'saveexec' in op:
                self.kind = 'salu'; self.wr = set(R(0) + regs_of('exec')); self.rd = set(allr(1) + regs_of('exec'))
            else:
                self.kind = 'salu'; self.wr = set(R(0)); self.rd = set(allr(1))
                if op.startswith(('s_addk', 's_mulk', 's_cmov')): self.rd |= self.wr
        else:
            raise ValueError('unknown instruction: ' + text)

    def states(self):
        if self.op == 's_nop': return int(self.text.split()[1].split(';')[0], 0) + 1
        return 1

class Emit:
    def __init__(self):
        self.out = []
        self.hist = []
        self.vm = []
        self.lg = []
        self.smem_pending = set()
        self.pend = {}
        self.nid = 0
        self.stats = {}
        self.nops = 0
        self.nbytes = 0
    def raw(self, s): self.out.append(s)
    def label(self, name, flush=True):
        if flush:
            self.drain_all()
            self._emit(Inst('s_nop 7')); self._emit(Inst('s_nop 4'))
        self.out.append(name + ':')
    def drain_all(self):
        if self.vm or self.lg or self.smem_pending:
            self._emit(Inst('s_waitcnt vmcnt(0) lgkmcnt(0)'))
        self.vm = []; self.lg = []; self.pend = {}; self.smem_pending = set()
    def _emit(self, ins):
        self.out.append('    ' + ins.text)
        self.hist.append(ins)
        if len(self.hist) > 40: self.hist.pop(0)
        self.stats[ins.kind] = self.stats.get(ins.kind, 0) + 1
    def _wait(self, vm_id=None, lg_id=None):
        parts = []
        if vm_id is not None and vm_id in self.vm:
            n = len(self.vm) - 1 - self.vm.index(vm_id)
            n = min(n, 63)
            done = self.vm[:len(self.vm) - n]; self.vm = self.vm[len(self.vm) - n:]
            parts.append(f'vmcnt({n})')
            ds = set(done); self.pend = {r: p for r, p in self.pend.items() if not (p[0] == 'vm' and p[1] in ds)}
        if lg_id is not None and lg_id in self.lg:
            n = len(self.lg) - 1 - self.lg.index(lg_id)
            n = min(n, 15)
            assert not self.smem_pending
            done = self.lg[:len(self.lg) - n]; self.lg = self.lg[len(self.lg) - n:]
            parts.append(f'lgkmcnt({n})')
            ds = set(done); self.pend = {r: p for r, p in self.pend.items() if not (p[0] == 'lg' and p[1] in ds)}
        if parts: self._emit(Inst('s_waitcnt ' + ' '.join(parts)))
    def wait_vm(self, i): self._wait(vm_id=i)
    def wait_lg(self, i): self._wait(lg_id=i)
    def wait_vm_all(self):
        if self.vm: self._wait(vm_id=self.vm[-1])
    def wait_lg_all(self):
        if self.smem_pending:
            self._emit(Inst('s_waitcnt lgkmcnt(0)')); self.smem_pending = set()
            self.lg = []; self.pend = {r: p for r, p in self.pend.items() if p[0] != 'lg'}
        elif self.lg: self._wait(lg_id=self.lg[-1])
    def _need(self, ins):
        need = 0; dist = 0
        isv = lambda s: {r for r in s if r[0] in 'va'}
        iss = lambda s: {r for r in s if r[0] == 's'}
        valu = ins.kind in ('valu', 'trans')
        for p in reversed(self.hist):
            req = 0
            pv = p.kind in ('valu', 'trans')
            if p.kind == 'mfma':
                big = {4: 8, 8: 12}[p.passes]
                if ins.kind == 'mfma':
                    if p.wr & ins.srcab: req = max(req, big)
                    if p.wr & set(ins.srcc):
                        if not (p.wr == set(ins.srcc) and p.passes == ins.passes): req = max(req, {4: 6, 8: 10}[p.passes])
                    elif p.wr & ins.wr:
                        req = max(req, big)
                elif valu or ins.kind in ('vmem', 'ds_read', 'ds_write'):
                    if p.wr & (ins.rd | ins.wr): req = max(req, big)
                if valu and set(p.srcc) & ins.wr: req = max(req, {4: 3, 8: 7}[p.passes])
                if ins.kind in ('vmem', 'ds_read') and set(p.srcc) & ins.wr: req = max(req, {4: 3, 8: 7}[p.passes])
            if pv:
                wv = isv(p.wr); ws = iss(p.wr)
                if ins.kind == 'mfma' and wv & ins.rd: req = max(req, 2)
                if valu and ws & ins.rd: req = max(req, 2)
                if ins.kind == 'vmem' and ws & ins.rd: req = max(req, 5)
                if ins.kind == 'salu' and ws & ins.rd: req = max(req, 1)
                if ins.op.startswith(('v_readfirstlane', 'v_readlane')) and wv & ins.rd: req = max(req, 1)
                if ins.op.startswith(('v_readlane', 'v_writelane')) and ws & ins.rd: req = max(req, 4)
                if valu and ins.dpp and wv & ins.rd: req = max(req, 2)
                if 'permlane' in ins.op and wv & ins.rd: req = max(req, 2)
                if p.kind == 'trans' and ins.kind == 'valu' and wv & ins.rd: req = max(req, 1)
                if ('s', 'exec_lo') in ws:
                    if ins.kind == 'mfma' or 'permlane' in ins.op or ins.op.startswith(('v_readfirstlane', 'v_readlane', 'v_writelane')): req = max(req, 4)
                    if valu and ins.dpp: req = max(req, 5)
                if ('sdwa' in p.op or 'op_sel' in p.text) and valu and wv & (ins.rd | ins.wr): req = max(req, 1)
            if p.wide_store and p.data & ins.wr: req = max(req, 2 if valu else 1)
            if p.kind == 'salu' and ('s', 'm0') in p.wr and ins.kind == 'vmem' and ('s', 'm0') in ins.rd: req = max(req, 1)
            need = max(need, req - dist)
            dist += p.states()
            if dist >= 12: break
        return need
    def __call__(self, text):
        ids = None
        for line in text.strip('\n').split('\n'):
            line = line.strip()
            if not line or line.startswith(';'): continue
            ids = self.one(line)
        return ids
    def one(self, line):
        ins = Inst(line)
        touched = ins.rd | ins.wr
        if self.smem_pending & touched: self.wait_lg_all()
        vm_id = lg_id = None
        for r in touched:
            p = self.pend.get(r)
            if p:
                if p[0] == 'vm':
                    if vm_id is None or self.vm.index(p[1]) > self.vm.index(vm_id): vm_id = p[1]
                else:
                    if lg_id is None or self.lg.index(p[1]) > self.lg.index(lg_id): lg_id = p[1]
        if vm_id is not None or lg_id is not None: self._wait(vm_id, lg_id)
        n = self._need(ins)
        while n > 0:
            k = min(n, 16)
            self._emit(Inst(f's_nop {k-1}')); self.nops += k; n -= k
        self._emit(ins)
        self.nid += 1; ins.id = self.nid
        if ins.kind == 'vmem':
            self.vm.append(ins.id)
            for r in ins.wr: self.pend[r] = ('vm', ins.id)
        elif ins.kind in ('ds_read', 'ds_write'):
            self.lg.append(ins.id)
            for r in ins.wr: self.pend[r] = ('lg', ins.id)
        elif ins.kind == 'smem':
            self.smem_pending |= ins.wr
            if not ins.wr: self.smem_pending.add(('x', 0))
        elif ins.op == 's_waitcnt':
            raise ValueError('use wait_* helpers')
        return ins.id
    def text(self): return '\n'.join(self.out) + '\n'
    def snapshot(self):
        return (list(self.hist), list(self.vm), list(self.lg), set(self.smem_pending), dict(self.pend))
    def restore(self, s):
        self.hist, self.vm, self.lg, self.smem_pending, self.pend = list(s[0]), list(s[1]), list(s[2]), set(s[3]), dict(s[4])

def interleave(e, mains, fills):
    def run(x):
        return x() if callable(x) else e(x)
    for x in fills.get(-1, []): run(x)
    for i, m in enumerate(mains):
        run(m)
        for x in fills.get(i, []): run(x)
```

```python
from common import *

class P1:
    def __init__(self, e, role, opt):
        self.e = e; self.role = role; self.opt = opt
        A = role == 'A'
        self.pitch = 3840 if A else 3456
        v = 1
        self.vLane = v; v += 1
        self.vDw = v; v += 4
        self.vDx = v; v += 4
        self.vDh = v; v += 1
        self.vXo = v; v += 2
        self.vXh = v; v += 2
        self.vG = v; v += 1
        self.vWb = v; v += 8
        self.vT = v; v += 8
        assert v <= 32
        self.vXF = 32
        self.vWF = 64
        self.NF = opt.get('nf', 6)
        self.vAcc = self.vWF + 4 * 8
        if A:
            b = self.vAcc
            self.accQ = lambda T, t: b + 20 * T + 4 * t
            self.accK = lambda T, t: b + 40 + 20 * T + 4 * t
            self.accV = lambda T, u: b + 80 + 20 * T + 4 * u
            self.hK, self.hV, self.hK4, self.hV4 = b + 120, b + 124, b + 128, b + 132
            self.accG = lambda T: b + 136 + 4 * T
            self.nacc = 144
        else:
            self.accF = lambda T, t: self.vAcc + 56 * T + 4 * t
            self.nacc = 112
        self.dma_ids = {}

    def setup(self):
        e = self.e; A = self.role == 'A'; T = self.vT; L = self.vLane
        e(f"""
        s_mul_i32 s{sM0W}, s{sWV}, {4*WBLK}
        s_lshl_b32 s{sM0X}, s{sWV}, 12
        s_add_u32 s{sM0X}, s{sM0X}, {XOFF + 2048}
        s_lshl_b32 s{sM0H}, s{sWV}, 9
        s_add_u32 s{sM0H}, s{sM0H}, {XOFF}
        """)
        e(f"""
        s_lshl_b32 s{sT0}, s{sRB}, 7
        s_lshl_b32 s{sT1}, s{sWV}, 5
        s_add_u32 s{sT1}, s{sT1}, s{sT0}
        s_movk_i32 s{sT2}, 1280
        v_lshrrev_b32 v{T}, 3, v{L}
        v_add_u32 v{T+1}, s{sT1}, v{T}
        v_mul_lo_u32 v{T+1}, v{T+1}, s{sT2}
        v_and_b32 v{T+2}, 7, v{L}
        v_lshrrev_b32 v{T+3}, 4, v{L}
        v_xor_b32 v{T+4}, v{T+2}, v{T+3}
        v_xor_b32 v{T+5}, 4, v{T+4}
        v_lshl_add_u32 v{self.vDx}, v{T+4}, 4, v{T+1}
        v_lshl_add_u32 v{self.vDx+1}, v{T+5}, 4, v{T+1}
        v_add_u32 v{self.vDx+1}, {8*1280-1024}, v{self.vDx+1}
        v_add_u32 v{self.vDx+2}, {16*1280-2048}, v{self.vDx}
        v_add_u32 v{self.vDx+3}, {16*1280-2048}, v{self.vDx+1}
        """)
        if A:
            e(f"""
            s_lshl_b32 s{sT1}, s{sWV}, 2
            v_add_u32 v{T+4}, s{sT1}, v{T}
            v_lshrrev_b32 v{T+5}, 1, v{T+4}
            v_and_b32 v{T+5}, 7, v{T+5}
            v_xor_b32 v{T+5}, v{T+5}, v{T+2}
            s_sub_u32 s{sT0}, s{sT0}, 16
            v_add_u32 v{T+4}, s{sT0}, v{T+4}
            v_max_i32 v{T+4}, 0, v{T+4}
            v_mul_lo_u32 v{T+4}, v{T+4}, s{sT2}
            v_lshl_add_u32 v{self.vDh}, v{T+5}, 4, v{T+4}
            """)
        if A:
            e(f"""
            v_mul_u32_u24 v{T+4}, 205, v{L}
            v_lshrrev_b32 v{T+4}, 11, v{T+4}
            v_mul_u32_u24 v{T+5}, 10, v{T+4}
            v_sub_u32 v{T+5}, v{L}, v{T+5}
            v_cmp_le_u32 vcc, 3, v{T+4}
            v_cndmask_b32 v{T+6}, 0, 1, vcc
            v_mul_u32_u24 v{T+7}, 3, v{T+6}
            v_sub_u32 v{T+4}, v{T+4}, v{T+7}
            v_mul_u32_u24 v{T+4}, 1280, v{T+4}
            v_lshl_add_u32 v{T+4}, v{T+5}, 4, v{T+4}
            v_mul_u32_u24 v{T+6}, {4*self.pitch}, v{T+6}
            v_add_u32 v{T+4}, v{T+4}, v{T+6}
            s_mul_i32 s{sT0}, s{sWV}, {8*self.pitch}
            s_mul_i32 s{sT1}, s{sC}, 160
            s_add_u32 s{sT0}, s{sT0}, s{sT1}
            v_add_u32 v{T+4}, s{sT0}, v{T+4}
            v_mov_b32 v{T+5}, {OOB}
            v_cmp_gt_u32 vcc, 60, v{L}
            v_cndmask_b32 v{self.vDw}, v{T+5}, v{T+4}, vcc
            """)
        else:
            e(f"""
            v_lshrrev_b32 v{T+4}, 5, v{L}
            v_mul_u32_u24 v{T+4}, {4*self.pitch}, v{T+4}
            v_and_b32 v{T+5}, 31, v{L}
            v_lshl_add_u32 v{T+4}, v{T+5}, 4, v{T+4}
            s_mul_i32 s{sT1}, s{sC}, 7
            s_min_u32 s{sT1}, s{sT1}, 47
            s_lshl_b32 s{sT1}, s{sT1}, 6
            s_mul_i32 s{sT0}, s{sWV}, {8*self.pitch}
            s_add_u32 s{sT0}, s{sT0}, s{sT1}
            v_add_u32 v{T+4}, s{sT0}, v{T+4}
            v_mov_b32 v{T+6}, {OOB}
            v_cmp_gt_u32 vcc, 28, v{T+5}
            v_cndmask_b32 v{self.vDw}, v{T+6}, v{T+4}, vcc
            """)
        for p in range(1, 4):
            e(f"v_add_u32 v{self.vDw+p}, {p*(self.pitch-WBLK)}, v{self.vDw}")

    def setup_reads(self):
        e = self.e; A = self.role == 'A'; T = self.vT; L = self.vLane
        e(f"""
        v_and_b32 v{T}, 15, v{L}
        v_lshrrev_b32 v{T+1}, 4, v{L}
        v_lshrrev_b32 v{T+2}, 1, v{T}
        v_xor_b32 v{T+2}, v{T+2}, v{T+1}
        v_lshlrev_b32 v{T+2}, 4, v{T+2}
        v_lshl_add_u32 v{T+2}, v{T}, 7, v{T+2}
        v_add_u32 v{self.vXh}, {XOFF}, v{T+2}
        v_xor_b32 v{T+3}, 64, v{T+2}
        v_add_u32 v{self.vXh+1}, {XOFF}, v{T+3}
        v_add_u32 v{self.vXo}, s{sM0X}, v{T+2}
        v_add_u32 v{self.vXo+1}, s{sM0X}, v{T+3}
        v_lshlrev_b32 v{self.vG}, 4, v{T+1}
        v_add_u32 v{self.vG}, {GOFF}, v{self.vG}
        v_lshrrev_b32 v{T+4}, 2, v{L}
        v_mul_u32_u24 v{T+4}, {WBLK}, v{T+4}
        v_and_b32 v{T+5}, 3, v{L}
        v_lshl_add_u32 v{self.vWb+2}, v{T+5}, 3, v{T+4}
        v_add_u32 v{self.vWb+3}, {3*WSLOT}, v{self.vWb+2}
        """)
        if A:
            e(f"""
            v_mul_u32_u24 v{T+5}, 40, v{T+5}
            v_add_u32 v{self.vWb}, v{T+5}, v{T+4}
            v_add_u32 v{self.vWb+1}, {3*WSLOT}, v{self.vWb}
            s_lshl_b32 s{sT0}, s{sWV}, 3
            v_add_u32 v{self.vWb+4}, s{sT0}, v{self.vWb}
            v_add_u32 v{self.vWb+5}, s{sT0}, v{self.vWb+1}
            s_mul_i32 s{sT0}, s{sWV}, 40
            v_add_u32 v{self.vWb+6}, s{sT0}, v{self.vWb+2}
            v_add_u32 v{self.vWb+7}, s{sT0}, v{self.vWb+3}
            """)

    def dma_w(self, st):
        e = self.e; out = []
        slot = st % NWS
        def first():
            e(f"s_add_u32 m0, s{sM0W}, {slot*WSLOT}")
            if st == 0: e(f"s_mov_b32 s{sKW}, 0")
            else: e(f"s_add_u32 s{sKW}, s{sKW}, {32*self.pitch}")
        out.append(first)
        for p in range(4):
            def f(p=p):
                self.dma_ids[('w', st)] = e(f"buffer_load_dwordx4 v{self.vDw+p}, s[{SW}:{SW+3}], s{sKW} offen offset:{p*WBLK} lds")
            out.append(f)
        return out
    def dma_x(self, a):
        e = self.e; out = []
        slot = a % NXS
        def first():
            e(f"s_add_u32 m0, s{sM0X}, {slot*XSLOT}")
            if a == 0: e(f"s_mov_b32 s{sKX}, 0")
            else: e(f"s_add_u32 s{sKX}, s{sKX}, 128")
        out.append(first)
        for p in range(4):
            def f(p=p):
                self.dma_ids[('x', a)] = e(f"buffer_load_dwordx4 v{self.vDx+p}, s[{SX}:{SX+3}], s{sKX} offen offset:{p*1024} lds")
            out.append(f)
        if self.role == 'A':
            def h():
                e(f"s_add_u32 m0, s{sM0H}, {slot*XSLOT}")
                e(f"s_mov_b32 exec_hi, 0")
                self.dma_ids[('x', a)] = e(f"buffer_load_dwordx4 v{self.vDh}, s[{SX}:{SX+3}], s{sKX} offen lds")
                e(f"s_mov_b32 exec_hi, -1")
            out.append(h)
        return out

    def frags(self):
        fr = []
        if self.role == 'A':
            for t in range(5): fr.append((0, 8*t, [('WX', self.accQ(0, t), 0), ('WX', self.accQ(1, t), 1)]))
            for t in range(5):
                m = [('WX', self.accK(0, t), 0), ('WX', self.accK(1, t), 1)]
                if t == 4: m.append(('WX', self.hK4, 2))
                fr.append((0, 160 + 8*t, m))
            for u in range(5):
                m = [('XW', self.accV(0, u), 0), ('XW', self.accV(1, u), 1)]
                if u == 4: m.append(('XW', self.hV4, 2))
                if u < 4: fr.append((2, 320 + 40*u, m))
                else: fr.append((0, 320 + 32, m))
            fr.append((4, 160, [('WX', self.hK, 2), ('GX', self.accG(0), 0)]))
            fr.append((6, 320, [('XW', self.hV, 2), ('GX', self.accG(1), 1)]))
            self.hstride = 480
        else:
            for t in range(14): fr.append((2, 32*t, [('WX', self.accF(0, t), 0), ('WX', self.accF(1, t), 1)]))
            self.hstride = 512
        return fr
    def read_frag(self, gf):
        e = self.e
        fr = self.fr; st, f = divmod(gf, len(fr))
        pat, off, _ = fr[f]
        slot = st % NWS
        base = self.vWb + pat + (1 if slot >= 3 else 0)
        o = (slot - (3 if slot >= 3 else 0)) * WSLOT + off
        d = self.vWF + 4 * (gf % self.NF)
        return [f"ds_read_b64_tr_b16 v[{d}:{d+1}], v{base} offset:{o}",
                f"ds_read_b64_tr_b16 v[{d+2}:{d+3}], v{base} offset:{o+self.hstride}"]
    def read_x(self, st):
        a, kk = divmod(st, 2); slot = a % NXS
        b = self.vXF + 16 * (st & 1)
        out = [f"ds_read_b128 v[{b}:{b+3}], v{self.vXo+kk} offset:{slot*XSLOT}",
               f"ds_read_b128 v[{b+4}:{b+7}], v{self.vXo+kk} offset:{slot*XSLOT+2048}"]
        if self.role == 'A':
            out += [f"ds_read_b128 v[{b+8}:{b+11}], v{self.vXh+kk} offset:{slot*XSLOT}",
                    f"ds_read_b128 v[{b+12}:{b+15}], v{self.vG} offset:{st*64}"]
        return out
    def mfma(self, st, gf, spec):
        kind, acc, xi = spec
        w = self.vWF + 4 * (gf % self.NF); x = self.vXF + 16 * (st & 1) + 4 * xi
        if kind == 'GX': w = self.vXF + 16 * (st & 1) + 12
        a, b = (x, w) if kind == 'XW' else (w, x)
        c = f"v[{acc}:{acc+3}]" if st > 0 else "0"
        return f"v_mfma_f32_16x16x32_bf16 v[{acc}:{acc+3}], v[{a}:{a+3}], v[{b}:{b+3}], {c}"

    def barrier_for(self, st):
        e = self.e
        ids = [self.dma_ids[('w', st)]]
        if st % 2 == 0: ids.append(self.dma_ids[('x', st // 2)])
        live = [i for i in ids if i in e.vm]
        if live: e.wait_vm(max(live, key=e.vm.index))
        e("s_barrier")

    def prologue_dma(self):
        e = self.e
        if self.role == 'A':
            T = self.vT
            e(f"""
            s_mul_i32 s{sT0}, s{sWV}, 320
            s_add_u32 m0, s{sT0}, {GOFF}
            v_lshlrev_b32 v{T}, 4, v{self.vLane}
            s_mov_b64 exec, 0xfffff
            buffer_load_dwordx4 v{T}, s[{SGATE}:{SGATE+3}], s{sT0} offen lds
            s_mov_b64 exec, -1
            """)
        for item in [('x', 0), ('w', 0), ('w', 1), ('x', 1), ('w', 2), ('w', 3), ('x', 2), ('w', 4)]:
            for f in (self.dma_x if item[0] == 'x' else self.dma_w)(item[1]): f()

    def mainloop(self, extra=None):
        e = self.e
        self.fr = fr = self.frags(); nf = len(fr); LA = self.NF - 1
        NST = 20
        self.barrier_for(0)
        self.tm.stamp()
        for s in self.read_x(0)[:2]: e(s)
        for gf in range(LA):
            for s in self.read_frag(gf): e(s)
            if gf == 0:
                for s in self.read_x(0)[2:]: e(s)
        for st in range(NST):
            spread = []
            if st >= 2 and st + 3 < NST: spread += self.dma_w(st + 3)
            if st >= 2 and st % 2 == 0 and (st // 2 + 2) < 10: spread += self.dma_x(st // 2 + 2)
            if extra: spread += extra(st)
            bar_unit = nf - LA - 1
            nsp = len(spread); avail = bar_unit + 1
            per = [[] for _ in range(nf)]
            for i, f in enumerate(spread): per[min(avail - 1, i * avail // max(nsp, 1))].append(f)
            xr = self.read_x(st + 1) if st + 1 < NST else []
            for f in range(nf):
                gf = st * nf + f
                ms = fr[f][2]
                nxt = gf + LA
                rd = self.read_frag(nxt) if nxt < NST * nf else []
                fill = list(rd) + per[f]
                if f > bar_unit and xr:
                    k = (len(xr) + (nf - 1 - f)) // (nf - f) if f < nf else 0
                    fill += xr[:k]; xr = xr[k:]
                for mi, spec in enumerate(ms):
                    e(self.mfma(st, gf, spec))
                    lo = mi * len(fill) // len(ms); hi = (mi + 1) * len(fill) // len(ms)
                    for x in fill[lo:hi]:
                        x() if callable(x) else e(x)
                if f == bar_unit and st + 1 < NST: self.barrier_for(st + 1)
            if st in (4, 9): self.tm.stamp()

    def epilogue_F(self, aux=''):
        e = self.e; T = self.vT
        e(f"""
        s_mul_i32 s{sT0}, s{sC}, 7
        s_min_u32 s{sT0}, s{sT0}, 47
        s_lshl_b32 s{sT0}, s{sT0}, 17
        s_lshl_b32 s{sT1}, s{sRB}, 13
        s_add_u32 s{sT0}, s{sT0}, s{sT1}
        s_lshl_b32 s{sT1}, s{sWV}, 11
        s_add_u32 s{sT0}, s{sT0}, s{sT1}
        v_lshlrev_b32 v{T}, 4, v{self.vLane}
        """)
        for m in range(7):
            for Tt in range(2):
                d = self.vXF + 4 * ((2 * m + Tt) % 8)
                a0, a1 = self.accF(Tt, 2*m), self.accF(Tt, 2*m+1)
                e(f"""
                v_cvt_pk_bf16_f32 v{d}, v{a0}, v{a0+1}
                v_cvt_pk_bf16_f32 v{d+1}, v{a0+2}, v{a0+3}
                v_cvt_pk_bf16_f32 v{d+2}, v{a1}, v{a1+1}
                v_cvt_pk_bf16_f32 v{d+3}, v{a1+2}, v{a1+3}
                v_pk_max_i16 v{d}, v{d}, 0
                v_pk_max_i16 v{d+1}, v{d+1}, 0
                v_pk_max_i16 v{d+2}, v{d+2}, 0
                v_pk_max_i16 v{d+3}, v{d+3}, 0
                buffer_store_dwordx4 v[{d}:{d+3}], v{T}, s[{SWS}:{SWS+3}], s{sT0} offen offset:{Tt*1024} {aux}
                """)
            if m < 6: e(f"s_add_u32 s{sT0}, s{sT0}, {A2_STEP}")

    def epilogue_A(self, aux='', mid=None):
        e = self.e; T = self.vT; L = self.vLane
        sPar, sM0, sM1 = 46, 48, 50
        sG1, sG2, sG3 = 52, 54, 56
        Kp = lambda Tt, t: 32 + 10 * (Tt + 1) + 2 * t
        Vp = lambda Tt, u: 62 + 6 * u + 2 * (Tt + 1)
        vSel = 92
        EX = XOFF + XSLOT
        cvt = lambda d, a: e(f"v_cvt_pk_bf16_f32 v{d}, v{a}, v{a+1}\nv_cvt_pk_bf16_f32 v{d+1}, v{a+2}, v{a+3}")
        e(f"""
        v_and_b32 v{T}, 15, v{L}
        v_lshrrev_b32 v{T+1}, 4, v{L}
        v_and_b32 v{T+2}, 1, v{L}
        v_cmp_eq_u32 s[{sPar}:{sPar+1}], 1, v{T+2}
        v_lshl_add_u32 v{T+3}, v{T+1}, 2, v{T+2}
        v_cmp_le_u32 s[{sM0}:{sM0+1}], v{T+3}, v{T}
        v_add_u32 v{T+3}, 2, v{T+3}
        v_cmp_le_u32 s[{sM1}:{sM1+1}], v{T+3}, v{T}
        v_cmp_eq_u32 s[{sG1}:{sG1+1}], 1, v{T+1}
        v_cmp_eq_u32 s[{sG2}:{sG2+1}], 2, v{T+1}
        v_cmp_eq_u32 s[{sG3}:{sG3+1}], 3, v{T+1}
        """)
        for t in range(5): cvt(Kp(1, t), self.accK(1, t))
        for u in range(5): cvt(Vp(1, u), self.accV(1, u))
        e(f"""
        s_add_u32 s{sT0}, s{sWV}, 1
        s_mul_i32 s{sT0}, s{sT0}, 5120
        s_add_u32 s{sT0}, s{sT0}, {EX}
        v_lshlrev_b32 v{self.vDx}, 4, v{L}
        v_add_u32 v{self.vDx}, s{sT0}, v{self.vDx}
        v_lshlrev_b32 v{self.vDx+1}, 3, v{L}
        v_add_u32 v{self.vDx+2}, s{sT0}, v{self.vDx+1}
        ds_write_b128 v{self.vDx}, v[{Kp(1,0)}:{Kp(1,0)+3}]
        ds_write_b128 v{self.vDx}, v[{Kp(1,2)}:{Kp(1,2)+3}] offset:1024
        ds_write_b64 v{self.vDx+2}, v[{Kp(1,4)}:{Kp(1,4)+1}] offset:2048
        """)
        for u in range(5): e(f"ds_write_b64 v{self.vDx+2}, v[{Vp(1,u)}:{Vp(1,u)+1}] offset:{2560+512*u}")
        hq = Kp(-1, 0)
        cvt(hq, self.hK); cvt(hq + 2, self.hV); cvt(hq + 4, self.hK4); cvt(hq + 6, self.hV4)
        e(f"""
        s_lshr_b32 s{sT0}, s{sWV}, 1
        s_lshl_b32 s{sT0}, s{sT0}, 10
        s_and_b32 s{sT1}, s{sWV}, 1
        s_lshl_b32 s{sT1}, s{sT1}, 3
        s_add_u32 s{sT0}, s{sT0}, s{sT1}
        s_add_u32 s{sT0}, s{sT0}, {EX}
        v_lshlrev_b32 v{self.vDx+3}, 4, v{L}
        v_add_u32 v{self.vDx+3}, s{sT0}, v{self.vDx+3}
        s_lshl_b32 s{sT0}, s{sWV}, 9
        s_add_u32 s{sT0}, s{sT0}, {EX+2560}
        v_add_u32 v{self.vDh}, s{sT0}, v{self.vDx+1}
        v_add_u32 v{self.vDx+1}, {EX}, v{self.vDx+1}
        ds_write_b64 v{self.vDx+3}, v[{hq}:{hq+1}]
        ds_write_b64 v{self.vDh}, v[{hq+2}:{hq+3}]
        ds_write_b64 v{self.vDx+1}, v[{hq+4}:{hq+5}] offset:2048
        ds_write_b64 v{self.vDx+1}, v[{hq+6}:{hq+7}] offset:{2560+2048}
        """)
        for t in range(5): cvt(Kp(0, t), self.accK(0, t))
        for u in range(5): cvt(Vp(0, u), self.accV(0, u))
        Qp = lambda Tt, t: self.accK(1, 0) + 10 * Tt + 2 * t
        for Tt in (1, 0):
            for t in range(5): cvt(Qp(Tt, t), self.accQ(Tt, t))
        e.wait_lg_all()
        e("s_barrier")
        e(f"""
        v_subrev_u32 v{self.vDx}, 5120, v{self.vDx}
        v_subrev_u32 v{self.vDx+2}, 5120, v{self.vDx+2}
        ds_read_b128 v[{Kp(-1,0)}:{Kp(-1,0)+3}], v{self.vDx}
        ds_read_b128 v[{Kp(-1,2)}:{Kp(-1,2)+3}], v{self.vDx} offset:1024
        ds_read_b64 v[{Kp(-1,4)}:{Kp(-1,4)+1}], v{self.vDx+2} offset:2048
        """)
        for u in range(5): e(f"ds_read_b64 v[{Vp(-1,u)}:{Vp(-1,u)+1}], v{self.vDx+2} offset:{2560+512*u}")
        b = self.vAcc
        Sc = {1: b, 0: b + 80}; Sp = {1: b + 16, 0: b + 96}
        for Tt in (1, 0):
            for t in range(5):
                for (Sr, kt) in ((Sc[Tt], Tt), (Sp[Tt], Tt - 1)):
                    c = f"v[{Sr}:{Sr+15}]" if t else "0"
                    e(f"v_mfma_f32_16x16x4_4b_bf16 v[{Sr}:{Sr+15}], v[{Kp(kt,t)}:{Kp(kt,t)+1}], v[{Qp(Tt,t)}:{Qp(Tt,t)+1}], {c}")
        e(f"""
        v_mov_b32 v{T+4}, 0x0c0c0100
        v_mov_b32 v{T+5}, 0x01000c0c
        v_cndmask_b32 v{T+4}, v{T+4}, v{T+5}, s[{sPar}:{sPar+1}]
        v_mov_b32 v{T+5}, 0x0c0c0302
        v_mov_b32 v{T+6}, 0x03020c0c
        v_cndmask_b32 v{T+5}, v{T+5}, v{T+6}, s[{sPar}:{sPar+1}]
        v_mov_b32 v{T+6}, 0x0c0c0c0c
        v_cndmask_b32 v{vSel}, v{T+4}, v{T+6}, s[{sM0}:{sM0+1}]
        v_cndmask_b32 v{vSel+1}, v{T+5}, v{T+6}, s[{sM1}:{sM1+1}]
        v_cndmask_b32 v{vSel+2}, v{T+6}, v{T+4}, s[{sM0}:{sM0+1}]
        v_cndmask_b32 v{vSel+3}, v{T+6}, v{T+5}, s[{sM1}:{sM1+1}]
        """)
        LOG2E = 1.4426950408889634
        import struct
        f2h = lambda x: hex(struct.unpack('<I', struct.pack('<f', x))[0])
        for Tt in range(2):
            g = self.accG(Tt)
            e(f"""
            v_mul_f32 v{g}, {f2h(-LOG2E)}, v{g}
            v_exp_f32 v{g}, v{g}
            v_add_f32 v{g}, 1.0, v{g}
            v_rcp_f32 v{g}, v{g}
            v_sub_f32 v{g+1}, 1.0, v{g}
            """)
        e(f"""
        s_lshr_b32 s{sT0}, s{sC}, 1
        s_mul_i32 s{sT0}, s{sT0}, 5
        s_add_u32 s{sT0}, s{sT0}, 54
        s_and_b32 s{sT1}, s{sC}, 1
        s_mul_i32 s{sT2}, s{sT1}, 3
        s_add_u32 s{sT2}, s{sT2}, s{sT0}
        s_lshl_b32 s{sT2}, s{sT2}, 17
        s_add_u32 s{sT0}, s{sT0}, 2
        s_lshl_b32 s{sT0}, s{sT0}, 17
        s_lshl_b32 s{sT1}, s{sT1}, 9
        s_add_u32 s{sT0}, s{sT0}, s{sT1}
        s_lshl_b32 s{sT1}, s{sRB}, 13
        s_lshl_b32 s{sT3}, s{sWV}, 11
        s_add_u32 s{sT1}, s{sT1}, s{sT3}
        s_add_u32 s{sT0}, s{sT0}, s{sT1}
        s_add_u32 s{sT2}, s{sT2}, s{sT1}
        s_add_u32 s{sT3}, s{sT2}, {A2_STEP}
        s_lshr_b32 s{sT1}, s{sT1}, 4
        s_add_u32 s{sT1}, s{sT1}, {G_OFF}
        v_lshlrev_b32 v{self.vDw}, 4, v{L}
        v_lshlrev_b32 v{self.vDw+1}, 3, v{L}
        v_lshlrev_b32 v{self.vDw+2}, 2, v{T}
        s_mov_b32 s{sKW}, {f2h(LOG2E * 20 ** -0.5)}
        """)
        e(f"s_cmp_lg_u32 s{sC}, 0")
        e(f"s_cselect_b32 s{sKX}, {OOB}, 0")
        e(f"v_add_u32 v{self.vDw+2}, s{sKX}, v{self.vDw+2}")
        for Tt in range(2):
            e(f"buffer_store_dword v{self.accG(Tt)+1}, v{self.vDw+2}, s[{SWS}:{SWS+3}], s{sT1} offen offset:{64*Tt} {aux}")
        if mid: mid()
        for Tt in (1, 0):
            sc, sp = Sc[Tt], Sp[Tt]
            if Tt == 0:
                e(f"s_or_b32 s{sKX}, s{sRB}, s{sWV}")
                e(f"s_cmp_eq_u32 s{sKX}, 0")
                e(f"s_cselect_b32 s{sKX}, 0xff800000, 0")
            m0 = [sc + 4*bb for bb in range(4)]; m1 = [sc + 4*bb + 2 for bb in range(4)]
            for bb in range(4):
                c0, p0 = sc + 4*bb, sp + 4*bb
                e(f"""
                v_cndmask_b32 v{c0}, v{c0}, v{c0+1}, s[{sPar}:{sPar+1}]
                v_cndmask_b32 v{c0+2}, v{c0+2}, v{c0+3}, s[{sPar}:{sPar+1}]
                v_cndmask_b32 v{p0}, v{p0}, v{p0+1}, s[{sPar}:{sPar+1}]
                v_cndmask_b32 v{p0+2}, v{p0+2}, v{p0+3}, s[{sPar}:{sPar+1}]
                """)
                if Tt == 0:
                    e(f"v_add_f32 v{p0}, s{sKX}, v{p0}\nv_add_f32 v{p0+2}, s{sKX}, v{p0+2}")
                e(f"""
                v_cndmask_b32 v{c0}, v{p0}, v{c0}, s[{sM0}:{sM0+1}]
                v_cndmask_b32 v{c0+2}, v{p0+2}, v{c0+2}, s[{sM1}:{sM1+1}]
                """)
            for m in (m0, m1):
                e(f"v_permlane32_swap_b32 v{m[0]}, v{m[2]}\nv_permlane32_swap_b32 v{m[1]}, v{m[3]}")
            for m in (m0, m1):
                e(f"v_permlane16_swap_b32 v{m[0]}, v{m[1]}\nv_permlane16_swap_b32 v{m[2]}, v{m[3]}")
            vals = m0 + m1
            t0, t1 = sp, sp + 1
            e(f"""
            v_max3_f32 v{t0}, v{vals[0]}, v{vals[1]}, v{vals[2]}
            v_max3_f32 v{t1}, v{vals[3]}, v{vals[4]}, v{vals[5]}
            v_max3_f32 v{t0}, v{t0}, v{vals[6]}, v{vals[7]}
            v_max_f32 v{t0}, v{t0}, v{t1}
            v_mul_f32 v{t0}, s{sKW}, v{t0}
            """)
            for x in vals: e(f"v_fma_f32 v{x}, v{x}, s{sKW}, -v{t0}")
            for x in vals: e(f"v_exp_f32 v{x}, v{x}")
            e(f"""
            v_add_f32 v{t0}, v{vals[0]}, v{vals[1]}
            v_add_f32 v{t1}, v{vals[2]}, v{vals[3]}
            v_add_f32 v{t0+2}, v{vals[4]}, v{vals[5]}
            v_add_f32 v{t0+3}, v{vals[6]}, v{vals[7]}
            v_add_f32 v{t0}, v{t0}, v{t1}
            v_add_f32 v{t0+2}, v{t0+2}, v{t0+3}
            v_add_f32 v{t0}, v{t0}, v{t0+2}
            v_rcp_f32 v{t0}, v{t0}
            v_mul_f32 v{t0}, v{t0}, v{self.accG(Tt)}
            """)
            for x in vals: e(f"v_mul_f32 v{x}, v{t0}, v{x}")
            P = [sp + 4 + i for i in range(4)]
            for i in range(4): e(f"v_cvt_pk_bf16_f32 v{P[i]}, v{m0[i]}, v{m1[i]}")
            e(f"v_permlane32_swap_b32 v{P[0]}, v{P[2]}\nv_permlane32_swap_b32 v{P[1]}, v{P[3]}")
            e(f"v_permlane16_swap_b32 v{P[0]}, v{P[1]}\nv_permlane16_swap_b32 v{P[2]}, v{P[3]}")
            for bb in range(4):
                for i in range(4): e(f"v_perm_b32 v{sc+4*bb+i}, v{P[bb]}, v{P[bb]}, v{vSel+i}")
            Ob = (b + 32 if Tt == 1 else b)
            O = [Ob + 4*i for i in range(7)] + [self.hK]
            for bb in range(4):
                e(f"v_mfma_f32_16x16x32_bf16 v[{O[bb]}:{O[bb]+3}], v[{Vp(Tt-1,bb)}:{Vp(Tt-1,bb)+3}], v[{sc+4*bb}:{sc+4*bb+3}], 0")
                e(f"v_mfma_f32_16x16x32_bf16 v[{O[4+bb]}:{O[4+bb]+3}], v[{Vp(Tt-1,4)}:{Vp(Tt-1,4)+3}], v[{sc+4*bb}:{sc+4*bb+3}], 0")
            o = sp + 8 if Tt == 1 else sp + 8
            o4 = sp
            for bb in range(4): cvt(o + 2*bb, O[bb])
            e(f"buffer_store_dwordx4 v[{o}:{o+3}], v{self.vDw}, s[{SWS}:{SWS+3}], s{sT2} offen offset:{1024*Tt} {aux}")
            e(f"buffer_store_dwordx4 v[{o+4}:{o+7}], v{self.vDw}, s[{SWS}:{SWS+3}], s{sT3} offen offset:{1024*Tt} {aux}")
            for bb in range(4): cvt(o4 + 2*bb, O[4+bb])
            for bb, sg in ((1, sG1), (2, sG2), (3, sG3)):
                e(f"v_cndmask_b32 v{o4}, v{o4}, v{o4+2*bb}, s[{sg}:{sg+1}]\nv_cndmask_b32 v{o4+1}, v{o4+1}, v{o4+2*bb+1}, s[{sg}:{sg+1}]")
            e(f"buffer_store_dwordx2 v[{o4}:{o4+1}], v{self.vDw+1}, s[{SWS}:{SWS+3}], s{sT0} offen offset:{1024*Tt} {aux}")
```

```python
from common import *
sTOK, sCOL = 64, 65
sM2, sK2, sKA, sDUM, sKO = 66, 67, 68, 69, 70
NH = 14; NSL = 19

class P2:
    def __init__(self, e, NT, opt, stage_base=0, nstage=8, red_base=131072):
        self.e = e; self.NT = NT; self.opt = opt
        self.stage_base = stage_base; self.nstage = nstage; self.red_base = red_base
        v = 1
        self.vLane = 1
        self.vH = 2
        self.vY = 6
        self.vTr = 7
        self.vA = 11
        self.vRw = 15
        self.vRr = 17
        self.vO = 18
        self.vGm = 19
        self.vT = 26
        self.vAcc = 32
        self.vR = self.vAcc + 16 * NT
        self.vRing = self.vR + 16
        self.NA = min(opt.get('na', 20), (256 - self.vRing) // 4)
        self.stage_ids = {}
        self.acc = lambda T, u: self.vAcc + 16 * T + 4 * u

    def decode(self, role, done_label):
        e = self.e
        per, n, t0, nt = (14, 110, 84, 4) if role == 'A' else (15, 120, 0, 7)
        e(f"""
        s_and_b32 s{sT0}, s2, 7
        s_lshr_b32 s{sT1}, s2, 3
        s_and_b32 s{sT1}, s{sT1}, 15
        s_cmp_ge_u32 s{sT1}, {per}
        s_cbranch_scc1 {done_label}
        s_mul_i32 s{sT0}, s{sT0}, {per}
        s_add_u32 s{sT0}, s{sT0}, s{sT1}
        s_cmp_ge_u32 s{sT0}, {n}
        s_cbranch_scc1 {done_label}
        s_mul_i32 s{sT1}, s{sT0}, 205
        s_lshr_b32 s{sT1}, s{sT1}, 11
        s_mul_i32 s{sT2}, s{sT1}, 10
        s_sub_u32 s{sCOL}, s{sT0}, s{sT2}
        s_mul_i32 s{sTOK}, s{sT1}, {nt}
        s_add_u32 s{sTOK}, s{sTOK}, {t0}
        """)

    def setup_stage(self):
        e = self.e; T = self.vT; L = self.vLane
        e(f"""
        s_mul_i32 s{sM2}, s{sWV}, {self.nstage*4096}
        s_add_u32 s{sM2}, s{sM2}, {self.stage_base}
        s_lshl_b32 s{sT0}, s{sCOL}, 7
        v_lshrrev_b32 v{T}, 3, v{L}
        v_and_b32 v{T+1}, 7, v{L}
        v_lshrrev_b32 v{T+2}, 4, v{L}
        v_lshlrev_b32 v{T+3}, 1, v{T+2}
        v_xor_b32 v{T+1}, v{T+1}, v{T+3}
        v_lshl_add_u32 v{T+1}, v{T+1}, 4, s{sT0}
        v_mul_u32_u24 v{T+3}, 1280, v{T}
        v_add_u32 v{self.vH}, v{T+3}, v{T+1}
        v_add_u32 v{self.vH+1}, {1*(8*1280-1024)}, v{self.vH}
        v_add_u32 v{self.vH+2}, {2*(8*1280-1024)}, v{self.vH}
        v_add_u32 v{self.vH+3}, {3*(8*1280-1024)}, v{self.vH}
        v_lshrrev_b32 v{T+3}, 2, v{T}
        v_mul_u32_u24 v{T+3}, {16*1280}, v{T+3}
        v_add_u32 v{self.vY}, v{T+3}, v{self.vH}
        v_lshrrev_b32 v{T}, 2, v{L}
        v_lshrrev_b32 v{T+1}, 1, v{T}
        v_and_b32 v{T+1}, 3, v{T+1}
        v_and_b32 v{T+2}, 3, v{L}
        v_lshlrev_b32 v{T+2}, 3, v{T+2}
        v_lshl_add_u32 v{T+2}, v{T}, 7, v{T+2}
        v_add_u32 v{T+2}, s{sM2}, v{T+2}
        """)
        for u in range(4):
            e(f"v_xor_b32 v{T+3}, {u}, v{T+1}\nv_lshl_add_u32 v{self.vTr+u}, v{T+3}, 5, v{T+2}")
        e(f"""
        s_mul_i32 s{sT0}, s{sWV}, 14
        s_cmp_eq_u32 s{sWV}, 3
        s_cselect_b32 s{sT1}, 1, 0
        s_sub_u32 s{sT0}, s{sT0}, s{sT1}
        s_mul_i32 s{sK2}, s{sT0}, {32*1280}
        s_lshl_b32 s{sKA}, s{sT0}, 17
        s_mul_i32 s{sKO}, s{sWV}, {160*1280}
        s_cmp_ge_u32 s{sWV}, 2
        s_cselect_b32 s{sDUM}, {OOB}, 0
        """)

    def stage_dma(self, i, lds_off=None, m0base=None):
        e = self.e; out = []
        off = (i % self.nstage) * 4096 if lds_off is None else lds_off
        mb = sM2 if m0base is None else m0base
        self.stage_off = getattr(self, 'stage_off', {}); self.stage_off[i] = off
        def rec(s): self.stage_ids[i] = e(s)
        if i < NH:
            def first():
                e(f"s_add_u32 m0, s{mb}, {off}")
                if i > 0: e(f"s_add_u32 s{sK2}, s{sK2}, {32*1280}")
            out.append(first)
            for p in range(4):
                out.append(lambda p=p: rec(f"buffer_load_dwordx4 v{self.vH+p}, s[{SW2}:{SW2+3}], s{sK2} offen offset:{p*1024} lds"))
        else:
            s = i - NH
            if s != 2:
                rb = {0: 0, 1: 40, 3: 80, 4: 120}[s]
                def first():
                    e(f"s_add_u32 m0, s{mb}, {off}")
                    e(f"s_add_u32 s{sK2}, s{sKO}, {rb*1280}")
                out.append(first)
                for p in range(4):
                    def f(p=p):
                        if p == 2: e(f"s_add_u32 s{sK2}, s{sK2}, {4*1280}")
                        rec(f"buffer_load_dwordx4 v{self.vH+p}, s[{SWO}:{SWO+3}], s{sK2} offen offset:{p*1024} lds")
                    out.append(f)
            else:
                out.append(lambda: e(f"s_add_u32 m0, s{mb}, {off}"))
                for p in range(4):
                    def f(p=p):
                        e(f"s_add_u32 s{sK2}, s{sKO}, {(80*(p>>1) + 40*(p&1) + 16)*1280 - 1024*p}")
                        rec(f"buffer_load_dwordx4 v{self.vY}, s[{SWO}:{SWO+3}], s{sK2} offen offset:{p*1024} lds")
                    out.append(f)
        return out
    def wreg(self, i, u): return 16 * (i % 16) + 4 * u
    def stage_read(self, i):
        e = self.e; out = []
        off = self.stage_off[i]
        out.append(lambda: e.wait_vm(self.stage_ids[i]))
        for u in range(4):
            for h in range(2):
                d = self.wreg(i, u) + 2 * h
                out.append(f"ds_read_b64_tr_b16 a[{d}:{d+1}], v{self.vTr+u} offset:{off + 2048*h}")
        return out

    def setup_main(self):
        e = self.e; T = self.vT; L = self.vLane
        e(f"""
        s_lshl_b32 s{sT0}, s{sTOK}, 10
        v_lshl_add_u32 v{self.vA}, v{L}, 4, s{sT0}
        v_add_u32 v{self.vA+1}, 4096, v{self.vA}
        v_lshl_add_u32 v{self.vA+2}, v{L}, 3, s{sT0}
        v_add_u32 v{self.vA+3}, 4096, v{self.vA+2}
        v_and_b32 v{T}, 15, v{L}
        v_lshrrev_b32 v{T+1}, 4, v{L}
        v_and_b32 v{T+2}, 7, v{L}
        v_xor_b32 v{T+2}, v{T+2}, v{T+1}
        s_lshl_b32 s{sT0}, s{sWV}, 12
        s_add_u32 s{sT0}, s{sT0}, {self.red_base}
        v_lshl_add_u32 v{T+3}, v{T}, 8, s{sT0}
        v_lshl_add_u32 v{self.vRw}, v{T+2}, 4, v{T+3}
        v_xor_b32 v{T+2}, 4, v{T+2}
        v_lshl_add_u32 v{self.vRw+1}, v{T+2}, 4, v{T+3}
        s_lshl_b32 s{sT0}, s{sWV}, 2
        v_add_u32 v{T+2}, s{sT0}, v{T+1}
        v_and_b32 v{T+3}, 7, v{T+2}
        v_xor_b32 v{T+3}, v{T+3}, v{T}
        v_lshlrev_b32 v{T+3}, 4, v{T+3}
        v_lshl_add_u32 v{T+3}, v{T+2}, 8, v{T+3}
        v_add_u32 v{self.vRr}, {self.red_base}, v{T+3}
        s_lshl_b32 s{sT0}, s{sTOK}, 4
        v_add_u32 v{T+2}, s{sT0}, v{T+2}
        v_mul_u32_u24 v{T+2}, 1280, v{T+2}
        s_lshl_b32 s{sT0}, s{sCOL}, 7
        v_lshl_add_u32 v{T+3}, v{T}, 3, s{sT0}
        v_add_u32 v{self.vO}, v{T+2}, v{T+3}
        s_lshl_b32 s{sT0}, s{sTOK}, 6
        v_lshl_add_u32 v{T+5}, v{T}, 2, s{sT0}
        """)
        self.vGaddr = T + 5

    def a_items(self):
        it = [(i, T) for i in range(NH) for T in range(self.NT)]
        it += [(NH + s, T) for T in range(self.NT) for s in range(5)]
        return it
    def a_load(self, n, aux=''):
        e = self.e
        i, T = self.items[n]
        d = self.vRing + 4 * (n % self.NA)
        hi = 1 if T >= 4 else 0; off = (T - 4 * hi) * 1024
        out = []
        if i < NH:
            def f():
                if T == 0 and i > 0: e(f"s_add_u32 s{sKA}, s{sKA}, {A2_STEP}")
                if T == 0 and i == NH - 1:
                    e(f"v_add_u32 v{self.vA}, s{sDUM}, v{self.vA}\nv_add_u32 v{self.vA+1}, s{sDUM}, v{self.vA+1}")
                e(f"buffer_load_dwordx4 v[{d}:{d+3}], v{self.vA+hi}, s[{SWS}:{SWS+3}], s{sKA} offen offset:{off} {aux}")
                if T == self.NT - 1 and i == NH - 1:
                    e(f"v_subrev_u32 v{self.vA}, s{sDUM}, v{self.vA}\nv_subrev_u32 v{self.vA+1}, s{sDUM}, v{self.vA+1}")
            out.append(f)
        else:
            s = i - NH
            so = 72 + s
            def f():
                if s != 2:
                    e(f"buffer_load_dwordx4 v[{d}:{d+3}], v{self.vA+hi}, s[{SWS}:{SWS+3}], s{so} offen offset:{off} {aux}")
                else:
                    e(f"buffer_load_dwordx2 v[{d}:{d+1}], v{self.vA+2+hi}, s[{SWS}:{SWS+3}], s{so} offen offset:{off} {aux}")
                    e(f"buffer_load_dwordx2 v[{d+2}:{d+3}], v{self.vA+2+hi}, s[{SWS}:{SWS+3}], s{so} offen offset:{off+512} {aux}")
            out.append(f)
        return out
    def o_setup(self, aux=''):
        e = self.e
        e(f"s_mul_i32 s72, s{sWV}, {5*A2_STEP}\ns_add_u32 s72, s72, {54*A2_STEP}")
        for s in range(1, 5): e(f"s_add_u32 s{72+s}, s72, {s*A2_STEP}")
        e(f"s_mov_b32 s{sT0}, {G_OFF}")
        for T in range(self.NT):
            e(f"buffer_load_dword v{self.vGm+T}, v{self.vGaddr}, s[{SWS}:{SWS+3}], s{sT0} offen offset:{64*T} {aux}")

    def mainloop(self, staged=0, dma_issued=0, aux='', before_o=None):
        e = self.e; NT = self.NT
        self.items = items = self.a_items(); n_items = len(items)
        LA = self.NA - 1
        first_o = NH * NT
        nload = 0
        def issue_loads(upto):
            nonlocal nload
            out = []
            while nload <= min(upto, n_items - 1):
                if nload == first_o:
                    if before_o: out.append(before_o)
                    out.append(lambda: self.o_setup(aux))
                out += self.a_load(nload, aux); nload += 1
            return out
        pend_dma = dma_issued; pend_rd = staged
        def run(l):
            for x in l: x() if callable(x) else e(x)
        while pend_dma < min(NSL, staged + self.nstage) and pend_dma < staged + 2:
            run(self.stage_dma(pend_dma)); pend_dma += 1
        run(issue_loads(min(LA, 2 * NT) - 1))
        while pend_dma < min(NSL, staged + self.nstage):
            run(self.stage_dma(pend_dma)); pend_dma += 1
        run(issue_loads(LA - 1))
        if pend_rd == 0:
            run(self.stage_read(0)); pend_rd = 1
        for i in range(NH):
            fl = []
            want = i + 2 if i < NH - 5 else min(NSL, i + 2 + (i - (NH - 6)))
            want = min(NSL, want, i + 16)
            while pend_rd < want:
                fl += self.stage_read(pend_rd); pend_rd += 1
            while pend_dma < NSL and pend_dma - self.nstage < pend_rd - 1 - 1:
                fl = self.stage_dma(pend_dma) + fl; pend_dma += 1
            mains = []; fills = {}
            nm = 4 * NT
            for T in range(NT):
                n = i * NT + T
                r = self.vRing + 4 * (n % self.NA)
                for u in range(4):
                    a = self.acc(T, u); w = self.wreg(i, u)
                    c = f"v[{a}:{a+3}]" if i > 0 else "0"
                    mains.append(f"v_mfma_f32_16x16x32_bf16 v[{a}:{a+3}], a[{w}:{w+3}], v[{r}:{r+3}], {c}")
                fills.setdefault(4 * T + 3, []); fills[4 * T + 3] += issue_loads(n + LA)
            for k, x in enumerate(fl): fills.setdefault(k * (nm - 1) // max(len(fl), 1), []).append(x)
            if i == NH - 1:
                sc = [f"v_mul_f32 v{self.acc(0,0)+k}, v{self.vGm}, v{self.acc(0,0)+k}" for k in range(16)]
                for k, x in enumerate(sc): fills.setdefault(8 + k * (nm - 8) // 16, []).append(x)
            interleave(e, mains, fills)
        assert pend_rd == NSL
        R = self.vR
        def writes(T):
            b = (T & 1) * 16384
            return [f"ds_write_b128 v{self.vRw + (u & 1)}, v[{self.acc(T,u)}:{self.acc(T,u)+3}] offset:{b + 128*(u>>1)}" for u in range(4)]
        def bar():
            e.wait_lg_all(); e("s_barrier")
        def reduce_(T):
            b = (T & 1) * 16384
            l = [f"ds_read_b128 v[{R+4*w}:{R+4*w+3}], v{self.vRr} offset:{b + 4096*w}" for w in range(4)]
            add = [f"v_add_f32 v{R+k}, v{R+k}, v{R+4+k}" for k in range(4)] + [f"v_add_f32 v{R+8+k}, v{R+8+k}, v{R+12+k}" for k in range(4)]
            add += [f"v_add_f32 v{R+k}, v{R+k}, v{R+8+k}" for k in range(4)]
            add += [f"v_cvt_pk_bf16_f32 v{R}, v{R}, v{R+1}", f"v_cvt_pk_bf16_f32 v{R+1}, v{R+2}, v{R+3}"]
            def st():
                if T > 0: e(f"v_add_u32 v{self.vO}, {16*1280}, v{self.vO}")
                e(f"buffer_store_dwordx2 v[{R}:{R+1}], v{self.vO}, s[{SOUT}:{SOUT+3}], 0 offen")
            return l, add + [st]
        for T in range(NT):
            mains = []; fills = {}
            for s in range(5):
                n = first_o + 5 * T + s
                r = self.vRing + 4 * (n % self.NA)
                for u in range(4):
                    a = self.acc(T, u); w = self.wreg(NH + s, u)
                    mains.append(f"v_mfma_f32_16x16x32_bf16 v[{a}:{a+3}], a[{w}:{w+3}], v[{r}:{r+3}], v[{a}:{a+3}]")
                fills.setdefault(4 * s + 3, []); fills[4 * s + 3] += issue_loads(n + LA)
            if T >= 2:
                rd, add = reduce_(T - 2)
                for k, x in enumerate(rd): fills.setdefault(k // 2, []).append(x)
                for k, x in enumerate(add): fills.setdefault(8 + k * 8 // len(add), []).append(x)
            if T >= 1:
                for k, x in enumerate(writes(T - 1)): fills.setdefault(3 + k, []).append(x)
                fills.setdefault(17, []).append(bar)
            if T + 1 < NT:
                sc = [f"v_mul_f32 v{self.acc(T+1,0)+k}, v{self.vGm+T+1}, v{self.acc(T+1,0)+k}" for k in range(16)]
                for k, x in enumerate(sc): fills.setdefault(2 + k, []).append(x)
            interleave(e, mains, fills)
        rd, add = reduce_(NT - 2)
        run(rd); run(writes(NT - 1)); run(add); bar()
        rd, add = reduce_(NT - 1)
        run(rd); run(add)
```

```python
import sys, json
from common import *
from p1 import P1
from p2 import P2

HDR = open('cdna_kernels/' + KN + '.s.ref').read().split('; Override launch')[0]

def srd(e, base, nbytes):
    e(f"s_mov_b32 s{base+2}, {nbytes}\ns_mov_b32 s{base+3}, 0x20000")

def entry(e, done, loads, opt, code_kb=64):
    e(f"s_cmp_ge_u32 s2, 256\ns_cbranch_scc1 {done}")
    for base, off in loads: e(f"s_load_dwordx2 s[{base}:{base+1}], s[0:1], {off}")
    if opt.get('cpf', 1):
        e(f"""
        s_getpc_b64 s[6:7]
        s_lshr_b32 s3, s2, 3
        s_lshl_b32 s3, s3, 11
        v_lshl_add_u32 v2, v0, 7, s3
        v_cmp_gt_u32 vcc, 16, v0
        s_and_saveexec_b64 s[4:5], vcc
        global_load_dword v255, v2, s[6:7]
        s_mov_b64 exec, s[4:5]
        """)
    e(f"""
    v_lshrrev_b32 v2, 6, v0
    v_and_b32 v1, 63, v0
    v_readfirstlane_b32 s{sWV}, v2
    s_and_b32 s{sT0}, s2, 7
    s_lshr_b32 s{sT1}, s2, 3
    s_lshr_b32 s{sRB}, s{sT0}, 2
    s_lshl_b32 s{sRB}, s{sRB}, 3
    s_and_b32 s{sT2}, s{sT1}, 7
    s_add_u32 s{sRB}, s{sRB}, s{sT2}
    s_and_b32 s{sC}, s{sT0}, 3
    s_lshl_b32 s{sC}, s{sC}, 1
    s_bfe_u32 s{sT2}, s{sT1}, 0x10003
    s_add_u32 s{sC}, s{sC}, s{sT2}
    s_lshr_b32 s{sROLE}, s{sT1}, 4
    """)

def two_kernel(opt):
    e = Emit()
    k1, k2 = 'p1_kernel', 'p2_kernel'
    e.raw(kstart(k1))
    entry(e, 'p1_done', [(SX, 0), (SW, 8), (SW2, 32), (SGATE, 48), (SWS, 72)], opt)
    srd(e, SX, S*D*2); srd(e, SWS, WS_BYTES); srd(e, SGATE, 1280)
    e(f"s_mov_b32 s{SW+3}, 0x20000")
    e.wait_lg_all()
    e(f"s_cmp_eq_u32 s{sROLE}, 0\ns_cbranch_scc0 p1_F")
    snap = e.snapshot()
    e(f"s_mov_b32 s{SW+2}, {640*1920*2}")
    a = P1(e, 'A', opt); a.setup(); a.prologue_dma(); a.setup_reads(); a.mainloop(); a.epilogue_A()
    e("s_endpgm")
    e.restore(snap)
    e.raw("p1_F:")
    e(f"s_mov_b32 s{SW}, s{SW2}\ns_mov_b32 s{SW+1}, s{SW2+1}\ns_mov_b32 s{SW+2}, {640*1728*2}")
    f = P1(e, 'F', opt); f.setup(); f.prologue_dma(); f.setup_reads(); f.mainloop(); f.epilogue_F()
    e.raw("p1_done:")
    e("s_endpgm")
    for i in range(16): e.raw("    s_nop 0")
    st1 = dict(e.stats); n1 = e.nops
    e2 = Emit()
    e2.raw(kstart(k2))
    entry(e2, 'p2_done', [(SWO, 16), (SW2, 40), (SOUT, 56), (SWS, 72)], opt)
    srd(e2, SWO, 640*640*2); srd(e2, SW2, 1728*640*2); srd(e2, SOUT, S*D*2); srd(e2, SWS, WS_BYTES)
    e2.wait_lg_all()
    e2(f"s_cmp_eq_u32 s{sROLE}, 0\ns_cbranch_scc0 p2_F")
    snap = e2.snapshot()
    for role, NT in (('A', 4), ('F', 7)):
        if role == 'F':
            e2.restore(snap); e2.raw("p2_F:")
        p = P2(e2, NT, opt)
        p.decode(role, 'p2_done'); p.setup_stage(); p.setup_main(); p.mainloop()
        e2("s_endpgm")
    e2.raw("p2_done:")
    e2("s_endpgm")
    print("k1", st1, "nops", n1, "k2", e2.stats, "nops", e2.nops, file=sys.stderr)
    pad = "\n".join(["    s_nop 0"] * 64) + "\n" + ".fill 16384, 4, 0xbf800000\n"
    txt = HDR + f"; @launch kernel={k1} grid=(256,1,1) block=(256,1,1) lds={LDS_P1_END}\n; @launch kernel={k2} grid=(256,1,1) block=(256,1,1) lds=163840\n"
    txt += '.amdgcn_target "amdgcn-amd-amdhsa--gfx950"\n.text\n' + e.text() + e2.text() + "    s_endpgm\n" + pad + "    s_endpgm\n" + kdesc(k1) + kdesc(k2)
    return txt

if __name__ == '__main__':
    opt = json.loads(sys.argv[2]) if len(sys.argv) > 2 else {}
    txt = two_kernel(opt)
    open(sys.argv[1], 'w').write(txt)
```

```python
from emit import *
KN = 'gated_mix__sliding_local_dilated__dense_activation_relu__prompt'
S, D = 2048, 640
NSTEP2 = 74
A2_STEP = 128 * 1024
G_OFF = NSTEP2 * A2_STEP
WS_BYTES = 268435456
WBLK = 1056; WSLOT = 16 * WBLK; NWS = 5
XOFF = NWS * WSLOT; XSLOT = 144 * 128; NXS = 3
GOFF = XOFF + NXS * XSLOT
LDS_P1_END = GOFF + 1280
OOB = 0x7ff00000

def vr(b, n=1): return f'v{b}' if n == 1 else f'v[{b}:{b+n-1}]'
def ar(b, n=1): return f'a{b}' if n == 1 else f'a[{b}:{b+n-1}]'
def sr(b, n=1): return f's{b}' if n == 1 else f's[{b}:{b+n-1}]'

def kstart(name):
    return f".globl {name}\n.p2align 8\n.type {name},@function\n{name}:"
def kdesc(name, vgpr=512, accum=256, sgpr=96):
    return f""".section .rodata,"a"
.p2align 6
.amdhsa_kernel {name}
  .amdhsa_next_free_vgpr {vgpr}
  .amdhsa_next_free_sgpr {sgpr}
  .amdhsa_accum_offset {accum}
  .amdhsa_group_segment_fixed_size 0
  .amdhsa_kernarg_size 80
  .amdhsa_user_sgpr_count 2
  .amdhsa_user_sgpr_kernarg_segment_ptr 1
  .amdhsa_system_sgpr_workgroup_id_x 1
.end_amdhsa_kernel
.text
"""
SX, SW, SWS, SW2, SWO, SOUT, SGATE = 8, 12, 16, 20, 24, 28, 32
sWV, sRB, sC, sROLE = 36, 37, 38, 39
sM0W, sM0X, sM0H, sKW, sKX = 40, 41, 42, 43, 44
sT0, sT1, sT2, sT3 = 60, 61, 62, 63

STAMP_OFF = 0x1000000
class Stamps:
    def __init__(self, e, on, base=0):
        self.e = e; self.on = on; self.n = 0; self.base = base
    def stamp(self):
        if not self.on: return
        e = self.e
        assert self.n < 8
        e.wait_lg_all()
        e(f"s_memrealtime s[78:79]")
        e(f"s_memtime s[76:77]")
        e.wait_lg_all()
        e(f"s_mov_b32 s{80+2*self.n}, s78\ns_mov_b32 s{81+2*self.n}, s76")
        self.n += 1
    def flush(self, v=252):
        if not self.on: return
        e = self.e
        e.drain_all() if False else None
        e(f"s_lshl_b32 s{sT0}, s2, 2\ns_add_u32 s{sT0}, s{sT0}, s{sWV}\ns_lshl_b32 s{sT0}, s{sT0}, 6\ns_add_u32 s{sT0}, s{sT0}, {STAMP_OFF + self.base}")
        e(f"v_mov_b32 v{v}, 0")
        for i in range(8):
            e(f"v_mov_b32 v{v+1}, s{80+2*i}" if i < self.n else f"v_mov_b32 v{v+1}, 0")
            e(f"buffer_store_dword v{v+1}, v{v}, s[{SWS}:{SWS+3}], s{sT0} offen offset:{4*i}")
            e(f"v_mov_b32 v{v+2}, s{81+2*i}" if i < self.n else f"v_mov_b32 v{v+2}, 0")
            e(f"buffer_store_dword v{v+2}, v{v}, s[{SWS}:{SWS+3}], s{sT0} offen offset:{32+4*i}")
```

```python
from common import *
sTOK, sCOL = 64, 65
sM2, sK2, sKA, sDUM, sKO = 66, 67, 68, 69, 70
NH = 14; NSL = 19

class P2:
    def __init__(self, e, NT, opt, stage_base=0, nstage=8, red_base=131072):
        self.e = e; self.NT = NT; self.opt = opt
        self.stage_base = stage_base; self.nstage = nstage; self.red_base = red_base
        v = 1
        self.vLane = 1
        self.vH = 2
        self.vY = 6
        self.vTr = 7
        self.vA = 11
        self.vRw = 15
        self.vRr = 17
        self.vO = 18
        self.vGm = 19
        self.vT = 26
        self.vAcc = 32
        self.vR = self.vAcc + 16 * NT
        self.vRing = self.vR + 16
        self.NA = min(opt.get('na', 20), (256 - self.vRing) // 4)
        self.stage_ids = {}
        self.acc = lambda T, u: self.vAcc + 16 * T + 4 * u

    def decode(self, role, done_label):
        e = self.e
        per, n, t0, nt = (14, 110, 84, 4) if role == 'A' else (15, 120, 0, 7)
        e(f"""
        s_and_b32 s{sT0}, s2, 7
        s_lshr_b32 s{sT1}, s2, 3
        s_and_b32 s{sT1}, s{sT1}, 15
        s_cmp_ge_u32 s{sT1}, {per}
        s_cbranch_scc1 {done_label}
        s_mul_i32 s{sT0}, s{sT0}, {per}
        s_add_u32 s{sT0}, s{sT0}, s{sT1}
        s_cmp_ge_u32 s{sT0}, {n}
        s_cbranch_scc1 {done_label}
        s_mul_i32 s{sT1}, s{sT0}, 205
        s_lshr_b32 s{sT1}, s{sT1}, 11
        s_mul_i32 s{sT2}, s{sT1}, 10
        s_sub_u32 s{sCOL}, s{sT0}, s{sT2}
        s_mul_i32 s{sTOK}, s{sT1}, {nt}
        s_add_u32 s{sTOK}, s{sTOK}, {t0}
        """)

    def setup_stage(self):
        e = self.e; T = self.vT; L = self.vLane
        e(f"""
        s_mul_i32 s{sM2}, s{sWV}, {self.nstage*4096}
        s_add_u32 s{sM2}, s{sM2}, {self.stage_base}
        s_lshl_b32 s{sT0}, s{sCOL}, 7
        v_lshrrev_b32 v{T}, 3, v{L}
        v_and_b32 v{T+1}, 7, v{L}
        v_lshrrev_b32 v{T+2}, 4, v{L}
        v_lshlrev_b32 v{T+3}, 1, v{T+2}
        v_xor_b32 v{T+1}, v{T+1}, v{T+3}
        v_lshl_add_u32 v{T+1}, v{T+1}, 4, s{sT0}
        v_mul_u32_u24 v{T+3}, 1280, v{T}
        v_add_u32 v{self.vH}, v{T+3}, v{T+1}
        v_add_u32 v{self.vH+1}, {1*(8*1280-1024)}, v{self.vH}
        v_add_u32 v{self.vH+2}, {2*(8*1280-1024)}, v{self.vH}
        v_add_u32 v{self.vH+3}, {3*(8*1280-1024)}, v{self.vH}
        v_lshrrev_b32 v{T+3}, 2, v{T}
        v_mul_u32_u24 v{T+3}, {16*1280}, v{T+3}
        v_add_u32 v{self.vY}, v{T+3}, v{self.vH}
        v_lshrrev_b32 v{T}, 2, v{L}
        v_lshrrev_b32 v{T+1}, 1, v{T}
        v_and_b32 v{T+1}, 3, v{T+1}
        v_and_b32 v{T+2}, 3, v{L}
        v_lshlrev_b32 v{T+2}, 3, v{T+2}
        v_lshl_add_u32 v{T+2}, v{T}, 7, v{T+2}
        v_add_u32 v{T+2}, s{sM2}, v{T+2}
        """)
        for u in range(4):
            e(f"v_xor_b32 v{T+3}, {u}, v{T+1}\nv_lshl_add_u32 v{self.vTr+u}, v{T+3}, 5, v{T+2}")
        e(f"""
        s_mul_i32 s{sT0}, s{sWV}, 14
        s_cmp_eq_u32 s{sWV}, 3
        s_cselect_b32 s{sT1}, 1, 0
        s_sub_u32 s{sT0}, s{sT0}, s{sT1}
        s_mul_i32 s{sK2}, s{sT0}, {32*1280}
        s_lshl_b32 s{sKA}, s{sT0}, 17
        s_mul_i32 s{sKO}, s{sWV}, {160*1280}
        s_cmp_ge_u32 s{sWV}, 2
        s_cselect_b32 s{sDUM}, {OOB}, 0
        """)

    def stage_dma(self, i, lds_off=None, m0base=None):
        e = self.e; out = []
        off = (i % self.nstage) * 4096 if lds_off is None else lds_off
        mb = sM2 if m0base is None else m0base
        self.stage_off = getattr(self, 'stage_off', {}); self.stage_off[i] = off
        def rec(s): self.stage_ids[i] = e(s)
        if i < NH:
            def first():
                e(f"s_add_u32 m0, s{mb}, {off}")
                if i > 0: e(f"s_add_u32 s{sK2}, s{sK2}, {32*1280}")
            out.append(first)
            for p in range(4):
                out.append(lambda p=p: rec(f"buffer_load_dwordx4 v{self.vH+p}, s[{SW2}:{SW2+3}], s{sK2} offen offset:{p*1024} lds"))
        else:
            s = i - NH
            if s != 2:
                rb = {0: 0, 1: 40, 3: 80, 4: 120}[s]
                def first():
                    e(f"s_add_u32 m0, s{mb}, {off}")
                    e(f"s_add_u32 s{sK2}, s{sKO}, {rb*1280}")
                out.append(first)
                for p in range(4):
                    def f(p=p):
                        if p == 2: e(f"s_add_u32 s{sK2}, s{sK2}, {4*1280}")
                        rec(f"buffer_load_dwordx4 v{self.vH+p}, s[{SWO}:{SWO+3}], s{sK2} offen offset:{p*1024} lds")
                    out.append(f)
            else:
                out.append(lambda: e(f"s_add_u32 m0, s{mb}, {off}"))
                for p in range(4):
                    def f(p=p):
                        e(f"s_add_u32 s{sK2}, s{sKO}, {(80*(p>>1) + 40*(p&1) + 16)*1280 - 1024*p}")
                        rec(f"buffer_load_dwordx4 v{self.vY}, s[{SWO}:{SWO+3}], s{sK2} offen offset:{p*1024} lds")
                    out.append(f)
        return out
    def wreg(self, i, u): return 16 * (i % 16) + 4 * u
    def stage_read(self, i):
        e = self.e; out = []
        off = self.stage_off[i]
        out.append(lambda: e.wait_vm(self.stage_ids[i]))
        for u in range(4):
            for h in range(2):
                d = self.wreg(i, u) + 2 * h
                out.append(f"ds_read_b64_tr_b16 a[{d}:{d+1}], v{self.vTr+u} offset:{off + 2048*h}")
        return out

    def setup_main(self):
        e = self.e; T = self.vT; L = self.vLane
        e(f"""
        s_lshl_b32 s{sT0}, s{sTOK}, 10
        v_lshl_add_u32 v{self.vA}, v{L}, 4, s{sT0}
        v_add_u32 v{self.vA+1}, 4096, v{self.vA}
        v_lshl_add_u32 v{self.vA+2}, v{L}, 3, s{sT0}
        v_add_u32 v{self.vA+3}, 4096, v{self.vA+2}
        v_and_b32 v{T}, 15, v{L}
        v_lshrrev_b32 v{T+1}, 4, v{L}
        v_and_b32 v{T+2}, 7, v{L}
        v_xor_b32 v{T+2}, v{T+2}, v{T+1}
        s_lshl_b32 s{sT0}, s{sWV}, 12
        s_add_u32 s{sT0}, s{sT0}, {self.red_base}
        v_lshl_add_u32 v{T+3}, v{T}, 8, s{sT0}
        v_lshl_add_u32 v{self.vRw}, v{T+2}, 4, v{T+3}
        v_xor_b32 v{T+2}, 4, v{T+2}
        v_lshl_add_u32 v{self.vRw+1}, v{T+2}, 4, v{T+3}
        s_lshl_b32 s{sT0}, s{sWV}, 2
        v_add_u32 v{T+2}, s{sT0}, v{T+1}
        v_and_b32 v{T+3}, 7, v{T+2}
        v_xor_b32 v{T+3}, v{T+3}, v{T}
        v_lshlrev_b32 v{T+3}, 4, v{T+3}
        v_lshl_add_u32 v{T+3}, v{T+2}, 8, v{T+3}
        v_add_u32 v{self.vRr}, {self.red_base}, v{T+3}
        s_lshl_b32 s{sT0}, s{sTOK}, 4
        v_add_u32 v{T+2}, s{sT0}, v{T+2}
        v_mul_u32_u24 v{T+2}, 1280, v{T+2}
        s_lshl_b32 s{sT0}, s{sCOL}, 7
        v_lshl_add_u32 v{T+3}, v{T}, 3, s{sT0}
        v_add_u32 v{self.vO}, v{T+2}, v{T+3}
        s_lshl_b32 s{sT0}, s{sTOK}, 6
        v_lshl_add_u32 v{T+5}, v{T}, 2, s{sT0}
        """)
        self.vGaddr = T + 5

    def a_items(self):
        it = [(i, T) for i in range(NH) for T in range(self.NT)]
        it += [(NH + s, T) for T in range(self.NT) for s in range(5)]
        return it
    def a_load(self, n, aux=''):
        e = self.e
        i, T = self.items[n]
        d = self.vRing + 4 * (n % self.NA)
        hi = 1 if T >= 4 else 0; off = (T - 4 * hi) * 1024
        out = []
        if i < NH:
            def f():
                if T == 0 and i > 0: e(f"s_add_u32 s{sKA}, s{sKA}, {A2_STEP}")
                if T == 0 and i == NH - 1:
                    e(f"v_add_u32 v{self.vA}, s{sDUM}, v{self.vA}\nv_add_u32 v{self.vA+1}, s{sDUM}, v{self.vA+1}")
                e(f"buffer_load_dwordx4 v[{d}:{d+3}], v{self.vA+hi}, s[{SWS}:{SWS+3}], s{sKA} offen offset:{off} {aux}")
                if T == self.NT - 1 and i == NH - 1:
                    e(f"v_subrev_u32 v{self.vA}, s{sDUM}, v{self.vA}\nv_subrev_u32 v{self.vA+1}, s{sDUM}, v{self.vA+1}")
            out.append(f)
        else:
            s = i - NH
            so = 71 + s
            def f():
                if s != 2:
                    e(f"buffer_load_dwordx4 v[{d}:{d+3}], v{self.vA+hi}, s[{SWS}:{SWS+3}], s{so} offen offset:{off} {aux}")
                else:
                    e(f"buffer_load_dwordx2 v[{d}:{d+1}], v{self.vA+2+hi}, s[{SWS}:{SWS+3}], s{so} offen offset:{off} {aux}")
                    e(f"buffer_load_dwordx2 v[{d+2}:{d+3}], v{self.vA+2+hi}, s[{SWS}:{SWS+3}], s{so} offen offset:{off+512} {aux}")
            out.append(f)
        return out
    def o_setup(self, aux=''):
        e = self.e
        e(f"s_mul_i32 s71, s{sWV}, {5*A2_STEP}\ns_add_u32 s71, s71, {54*A2_STEP}")
        for s in range(1, 5): e(f"s_add_u32 s{71+s}, s71, {s*A2_STEP}")
        e(f"s_mov_b32 s{sT0}, {G_OFF}")
        for T in range(self.NT):
            e(f"buffer_load_dword v{self.vGm+T}, v{self.vGaddr}, s[{SWS}:{SWS+3}], s{sT0} offen offset:{64*T} {aux}")

    def mainloop(self, staged=0, dma_issued=0, aux='', before_o=None):
        e = self.e; NT = self.NT
        self.items = items = self.a_items(); n_items = len(items)
        LA = self.NA - 1
        first_o = NH * NT
        nload = 0
        def issue_loads(upto):
            nonlocal nload
            out = []
            while nload <= min(upto, n_items - 1):
                if nload == first_o:
                    if before_o: out.append(before_o)
                    out.append(lambda: self.o_setup(aux))
                out += self.a_load(nload, aux); nload += 1
            return out
        pend_dma = dma_issued; pend_rd = staged
        def run(l):
            for x in l: x() if callable(x) else e(x)
        while pend_dma < min(NSL, staged + self.nstage) and pend_dma < staged + 2:
            run(self.stage_dma(pend_dma)); pend_dma += 1
        run(issue_loads(min(LA, 2 * NT) - 1))
        while pend_dma < min(NSL, staged + self.nstage):
            run(self.stage_dma(pend_dma)); pend_dma += 1
        run(issue_loads(LA - 1))
        if pend_rd == 0:
            run(self.stage_read(0)); pend_rd = 1
        self.tm.stamp()
        for i in range(NH):
            fl = []
            want = i + 2 if i < NH - 5 else min(NSL, i + 2 + (i - (NH - 6)))
            want = min(NSL, want, i + 16)
            while pend_rd < want:
                fl += self.stage_read(pend_rd); pend_rd += 1
            while pend_dma < NSL and pend_dma - self.nstage < pend_rd - 1 - 1:
                fl = self.stage_dma(pend_dma) + fl; pend_dma += 1
            mains = []; fills = {}
            nm = 4 * NT
            for T in range(NT):
                n = i * NT + T
                r = self.vRing + 4 * (n % self.NA)
                for u in range(4):
                    a = self.acc(T, u); w = self.wreg(i, u)
                    c = f"v[{a}:{a+3}]" if i > 0 else "0"
                    mains.append(f"v_mfma_f32_16x16x32_bf16 v[{a}:{a+3}], a[{w}:{w+3}], v[{r}:{r+3}], {c}")
                fills.setdefault(4 * T + 3, []); fills[4 * T + 3] += issue_loads(n + LA)
            for k, x in enumerate(fl): fills.setdefault(k * (nm - 1) // max(len(fl), 1), []).append(x)
            if i == NH - 1:
                sc = [f"v_mul_f32 v{self.acc(0,0)+k}, v{self.vGm}, v{self.acc(0,0)+k}" for k in range(16)]
                for k, x in enumerate(sc): fills.setdefault(8 + k * (nm - 8) // 16, []).append(x)
            interleave(e, mains, fills)
        assert pend_rd == NSL
        self.tm.stamp()
        R = self.vR
        def writes(T):
            b = (T & 1) * 16384
            return [f"ds_write_b128 v{self.vRw + (u & 1)}, v[{self.acc(T,u)}:{self.acc(T,u)+3}] offset:{b + 128*(u>>1)}" for u in range(4)]
        def bar():
            e.wait_lg_all(); e("s_barrier")
        def reduce_(T):
            b = (T & 1) * 16384
            l = [f"ds_read_b128 v[{R+4*w}:{R+4*w+3}], v{self.vRr} offset:{b + 4096*w}" for w in range(4)]
            add = [f"v_add_f32 v{R+k}, v{R+k}, v{R+4+k}" for k in range(4)] + [f"v_add_f32 v{R+8+k}, v{R+8+k}, v{R+12+k}" for k in range(4)]
            add += [f"v_add_f32 v{R+k}, v{R+k}, v{R+8+k}" for k in range(4)]
            add += [f"v_cvt_pk_bf16_f32 v{R}, v{R}, v{R+1}", f"v_cvt_pk_bf16_f32 v{R+1}, v{R+2}, v{R+3}"]
            def st():
                if T > 0: e(f"v_add_u32 v{self.vO}, {16*1280}, v{self.vO}")
                e(f"buffer_store_dwordx2 v[{R}:{R+1}], v{self.vO}, s[{SOUT}:{SOUT+3}], 0 offen")
            return l, add + [st]
        for T in range(NT):
            mains = []; fills = {}
            for s in range(5):
                n = first_o + 5 * T + s
                r = self.vRing + 4 * (n % self.NA)
                for u in range(4):
                    a = self.acc(T, u); w = self.wreg(NH + s, u)
                    mains.append(f"v_mfma_f32_16x16x32_bf16 v[{a}:{a+3}], a[{w}:{w+3}], v[{r}:{r+3}], v[{a}:{a+3}]")
                fills.setdefault(4 * s + 3, []); fills[4 * s + 3] += issue_loads(n + LA)
            if T >= 2:
                rd, add = reduce_(T - 2)
                for k, x in enumerate(rd): fills.setdefault(k // 2, []).append(x)
                for k, x in enumerate(add): fills.setdefault(8 + k * 8 // len(add), []).append(x)
            if T >= 1:
                for k, x in enumerate(writes(T - 1)): fills.setdefault(3 + k, []).append(x)
                fills.setdefault(17, []).append(bar)
            if T + 1 < NT:
                sc = [f"v_mul_f32 v{self.acc(T+1,0)+k}, v{self.vGm+T+1}, v{self.acc(T+1,0)+k}" for k in range(16)]
                for k, x in enumerate(sc): fills.setdefault(2 + k, []).append(x)
            interleave(e, mains, fills)
        self.tm.stamp()
        rd, add = reduce_(NT - 2)
        run(rd); run(writes(NT - 1)); run(add); bar()
        rd, add = reduce_(NT - 1)
        run(rd); run(add)
```

```python
import sys, json
from common import *
from p1 import P1
from p2 import P2

HDR = open('cdna_kernels/' + KN + '.s.ref').read().split('; Override launch')[0]

def srd(e, base, nbytes):
    e(f"s_mov_b32 s{base+2}, {nbytes}\ns_mov_b32 s{base+3}, 0x20000")

def entry(e, done, loads, opt, code_kb=64):
    e(f"s_cmp_ge_u32 s2, 256\ns_cbranch_scc1 {done}")
    for base, off in loads: e(f"s_load_dwordx2 s[{base}:{base+1}], s[0:1], {off}")
    if opt.get('cpf', 1):
        e(f"""
        s_getpc_b64 s[6:7]
        s_lshr_b32 s3, s2, 3
        s_lshl_b32 s3, s3, 11
        v_lshl_add_u32 v2, v0, 7, s3
        v_cmp_gt_u32 vcc, 16, v0
        s_and_saveexec_b64 s[4:5], vcc
        global_load_dword v255, v2, s[6:7]
        s_mov_b64 exec, s[4:5]
        """)
    e(f"""
    v_lshrrev_b32 v2, 6, v0
    v_and_b32 v1, 63, v0
    v_readfirstlane_b32 s{sWV}, v2
    s_and_b32 s{sT0}, s2, 7
    s_lshr_b32 s{sT1}, s2, 3
    s_lshr_b32 s{sRB}, s{sT0}, 2
    s_lshl_b32 s{sRB}, s{sRB}, 3
    s_and_b32 s{sT2}, s{sT1}, 7
    s_add_u32 s{sRB}, s{sRB}, s{sT2}
    s_and_b32 s{sC}, s{sT0}, 3
    s_lshl_b32 s{sC}, s{sC}, 1
    s_bfe_u32 s{sT2}, s{sT1}, 0x10003
    s_add_u32 s{sC}, s{sC}, s{sT2}
    s_lshr_b32 s{sROLE}, s{sT1}, 4
    """)

def two_kernel(opt):
    e = Emit()
    k1, k2 = 'p1_kernel', 'p2_kernel'
    e.raw(kstart(k1))
    tm = Stamps(e, opt.get('ts', 0)); tm.stamp()
    entry(e, 'p1_done', [(SX, 0), (SW, 8), (SW2, 32), (SGATE, 48), (SWS, 72)], opt)
    srd(e, SX, S*D*2); srd(e, SWS, WS_BYTES); srd(e, SGATE, 1280)
    e(f"s_mov_b32 s{SW+3}, 0x20000")
    e.wait_lg_all()
    e(f"s_cmp_eq_u32 s{sROLE}, 0\ns_cbranch_scc0 p1_F")
    snap = e.snapshot()
    e(f"s_mov_b32 s{SW+2}, {640*1920*2}")
    a = P1(e, 'A', opt); a.tm = tm; a.setup(); a.prologue_dma(); a.setup_reads(); a.mainloop(); tm.stamp(); a.epilogue_A(); tm.stamp()
    if tm.on: e.wait_vm_all(); tm.stamp(); tm.flush(); tm.n = 1
    e("s_endpgm")
    e.restore(snap)
    e.raw("p1_F:")
    e(f"s_mov_b32 s{SW}, s{SW2}\ns_mov_b32 s{SW+1}, s{SW2+1}\ns_mov_b32 s{SW+2}, {640*1728*2}")
    f = P1(e, 'F', opt); f.tm = tm; f.setup(); f.prologue_dma(); f.setup_reads(); f.mainloop(); tm.stamp(); f.epilogue_F(); tm.stamp()
    if tm.on: e.wait_vm_all(); tm.stamp(); tm.flush()
    e.raw("p1_done:")
    e("s_endpgm")
    for i in range(16): e.raw("    s_nop 0")
    st1 = dict(e.stats); n1 = e.nops
    e2 = Emit()
    e2.raw(kstart(k2))
    tm = Stamps(e2, opt.get('ts', 0), base=0x10000); tm.stamp()
    entry(e2, 'p2_done', [(SWO, 16), (SW2, 40), (SOUT, 56), (SWS, 72)], opt)
    srd(e2, SWO, 640*640*2); srd(e2, SW2, 1728*640*2); srd(e2, SOUT, S*D*2); srd(e2, SWS, WS_BYTES)
    e2.wait_lg_all()
    e2(f"s_cmp_eq_u32 s{sROLE}, 0\ns_cbranch_scc0 p2_F")
    snap = e2.snapshot()
    for role, NT in (('A', 4), ('F', 7)):
        if role == 'F':
            e2.restore(snap); e2.raw("p2_F:")
        p = P2(e2, NT, opt)
        tm.n = 1; p.tm = tm
        p.decode(role, 'p2_done'); p.setup_stage(); p.setup_main(); p.mainloop(); tm.stamp()
        if tm.on: e2.wait_vm_all(); tm.stamp(); tm.flush()
        e2("s_endpgm")
    e2.raw("p2_done:")
    e2("s_endpgm")
    print("k1", st1, "nops", n1, "k2", e2.stats, "nops", e2.nops, file=sys.stderr)
    pad = "\n".join(["    s_nop 0"] * 64) + "\n" + ".fill 16384, 4, 0xbf800000\n"
    txt = HDR + f"; @launch kernel={k1} grid=(256,1,1) block=(256,1,1) lds={LDS_P1_END}\n; @launch kernel={k2} grid=(256,1,1) block=(256,1,1) lds=163840\n"
    txt += '.amdgcn_target "amdgcn-amd-amdhsa--gfx950"\n.text\n' + e.text() + e2.text() + "    s_endpgm\n" + pad + "    s_endpgm\n" + kdesc(k1) + kdesc(k2)
    return txt

if __name__ == '__main__':
    opt = json.loads(sys.argv[2]) if len(sys.argv) > 2 else {}
    txt = two_kernel(opt)
    open(sys.argv[1], 'w').write(txt)
```

```python
from emit import *
import struct
KN = 'gated_mix__sliding_local_dilated__dense_activation_relu__prompt'
S, D = 2048, 640
NSTEP2 = 74
A2_STEP = 128 * 1024
G_OFF = NSTEP2 * A2_STEP
FLAG_OFF = 0x980000
WS_BYTES = 268435456
WBLK = 1056; WSLOT = 16 * WBLK; NWS = 5
E0 = 0
WOFF = WSLOT
XOFF = WOFF + NWS * WSLOT; XSLOT = 144 * 128; NXS = 3
GOFF = XOFF + NXS * XSLOT
LDS_END = GOFF + 1280
OOB = 0x7ff00000
def f2h(x): return hex(struct.unpack('<I', struct.pack('<f', x))[0])

def kstart(name):
    return f".globl {name}\n.p2align 8\n.type {name},@function\n{name}:"
def kdesc(name, vgpr=512, accum=256, sgpr=102):
    return f""".section .rodata,"a"
.p2align 6
.amdhsa_kernel {name}
  .amdhsa_next_free_vgpr {vgpr}
  .amdhsa_next_free_sgpr {sgpr}
  .amdhsa_accum_offset {accum}
  .amdhsa_group_segment_fixed_size 0
  .amdhsa_kernarg_size 80
  .amdhsa_user_sgpr_count 2
  .amdhsa_user_sgpr_kernarg_segment_ptr 1
  .amdhsa_system_sgpr_workgroup_id_x 1
.end_amdhsa_kernel
.text
"""
SX, SW, SWS, SW2, SWO, SOUT, SGATE, SH, SDBG, SPF = 8, 12, 16, 20, 24, 28, 32, 36, 40, 44
sWV, sRB, sC, sROLE, sM0W, sM0X, sM0H, sKW, sKX, sKP, sDP, sROT = range(48, 60)
sT0, sT1, sT2, sT3 = 60, 61, 62, 63
sTOK, sCOL, sM2, sK2, sKA, sKO = range(64, 70)
sO0 = 70
sOFF2 = 75
sMASK = 76
sDW, sDX = 88, 91
vH, vY, vTr, vPollH, vPollO, vFlag, vPD, vDUM, vPF, vTS = 240, 244, 245, 249, 250, 251, 252, 253, 254, 255
sE = 94
def weave(e, main, side, start=0, end=None):
    end = len(main) if end is None else end
    run = lambda x: x() if callable(x) else e(x)
    k = 0; n = max(end - start, 1)
    for i, m in enumerate(main):
        run(m)
        if start <= i < end:
            tgt = (i - start + 1) * len(side) // n
            while k < tgt: run(side[k]); k += 1
    while k < len(side): run(side[k]); k += 1


STAMP_OFF = 0x1000000
class Stamps:
    def __init__(self, e, on):
        self.e = e; self.on = on; self.n = 0
    def stamp(self):
        if not self.on: return
        e = self.e
        assert self.n < 16
        e.wait_lg_all()
        e("s_memrealtime s[4:5]\ns_memtime s[6:7]")
        e.wait_lg_all()
        if self.n == 0: e(f"v_mov_b32 v{vTS}, 0")
        e(f"v_writelane_b32 v{vTS}, s4, {self.n}\nv_writelane_b32 v{vTS}, s6, {16+self.n}")
        self.n += 1
    def flush(self):
        if not self.on: return
        e = self.e
        e(f"""
        s_lshl_b32 s4, s2, 2
        s_add_u32 s4, s4, s{sWV}
        s_lshl_b32 s4, s4, 7
        s_add_u32 s4, s4, {STAMP_OFF}
        v_lshlrev_b32 v{vDUM}, 2, v1
        s_mov_b32 exec_hi, 0
        buffer_store_dword v{vTS}, v{vDUM}, s[{SWS}:{SWS+3}], s4 offen
        s_mov_b32 exec_hi, -1
        """)
```

```python
import re

REG_RE = re.compile(r'^(-|\|)?(v|a|s)(\d+|\[(\d+):(\d+)\])\|?$')

def regs_of(tok):
    tok = tok.strip()
    if tok.startswith('abs(') and tok.endswith(')'): tok = tok[4:-1]
    if tok.startswith('-abs(') and tok.endswith(')'): tok = tok[5:-1]
    if tok in ('vcc',): return [('s', 'vcc_lo'), ('s', 'vcc_hi')]
    if tok in ('vcc_lo', 'vcc_hi'): return [('s', tok)]
    if tok == 'exec': return [('s', 'exec_lo'), ('s', 'exec_hi')]
    if tok in ('exec_lo', 'exec_hi'): return [('s', tok)]
    if tok == 'm0': return [('s', 'm0')]
    m = REG_RE.match(tok)
    if not m: return []
    k = m.group(2)
    if m.group(4) is not None:
        return [(k, i) for i in range(int(m.group(4)), int(m.group(5)) + 1)]
    return [(k, int(m.group(3)))]

TRANS = ('v_exp_f32', 'v_log_f32', 'v_rcp_f32', 'v_rsq_f32', 'v_sqrt_f32', 'v_sin_f32', 'v_cos_f32', 'v_rcp_iflag_f32')
RMW = ('v_fmac_f32', 'v_dot2c_f32_bf16', 'v_pk_fmac')

class Inst:
    __slots__ = ('text', 'op', 'kind', 'rd', 'wr', 'passes', 'srcc', 'srcab', 'dpp', 'wide_store', 'data', 'id')
    def __init__(self, text):
        self.text = text
        t = text.split(';')[0].strip()
        parts = t.split(None, 1)
        op = parts[0]; self.op = op
        rest = parts[1] if len(parts) > 1 else ''
        ops = [x.strip() for x in rest.split(',')] if rest else []
        mods = ''
        if ops:
            last = ops[-1].split(None, 1)
            ops[-1] = last[0] if last else ''
            mods = last[1] if len(last) > 1 else ''
        self.rd, self.wr = set(), set()
        self.passes = 0; self.srcc = []; self.srcab = set(); self.dpp = ('_dpp' in op) or ('row_' in mods) or ('quad_perm' in rest)
        self.wide_store = False; self.data = set()
        R = lambda i: regs_of(ops[i]) if i < len(ops) else []
        allr = lambda a: [r for i in range(a, len(ops)) for r in R(i)]
        if op.startswith('v_mfma'):
            self.kind = 'mfma'
            self.wr = set(R(0)); self.srcab = set(R(1) + R(2)); self.srcc = R(3)
            self.rd = self.srcab | set(self.srcc)
            self.passes = 4 if ('16x16x32' in op or '16x16x16' in op) else 8
            assert any(s in op for s in ('16x16x32_bf16', '16x16x16_bf16', '16x16x4_4b_bf16', '32x32x16_bf16')), op
        elif op.startswith('v_'):
            self.kind = 'trans' if op.replace('_e32', '').replace('_e64', '') in TRANS else 'valu'
            if 'permlane' in op and 'swap' in op:
                self.wr = set(R(0) + R(1)); self.rd = set(R(0) + R(1))
            elif op.startswith('v_cmp'):
                self.wr = set(R(0)); self.rd = set(allr(1))
                if op.startswith('v_cmpx'): self.wr |= set(regs_of('exec'))
            elif op.startswith(('v_add_co', 'v_sub_co', 'v_addc_co', 'v_subb_co', 'v_mad_u64', 'v_div_scale')):
                self.wr = set(R(0) + R(1)); self.rd = set(allr(2))
            else:
                self.wr = set(R(0)); self.rd = set(allr(1))
                if op.startswith(RMW) or self.dpp or 'sdwa' in op or op.startswith('v_writelane'): self.rd |= set(R(0))
                if op.startswith('v_cndmask') and len(ops) == 3: self.rd |= set(regs_of('vcc'))
        elif op.startswith('ds_'):
            if op.startswith(('ds_read', 'ds_bpermute', 'ds_permute', 'ds_swizzle')):
                self.kind = 'ds_read'; self.wr = set(R(0)); self.rd = set(allr(1))
            else:
                self.kind = 'ds_write'; self.rd = set(allr(0))
        elif op.startswith(('buffer_', 'global_')):
            islds = (' lds' in ' ' + mods) or ('load_lds' in op)
            if op in ('buffer_wbl2', 'buffer_inv'):
                self.kind = 'vmem'
            elif 'load' in op and islds:
                self.kind = 'vmem'; self.rd = set(allr(0)) | {('s', 'm0')}
            elif 'load' in op:
                self.kind = 'vmem'; self.wr = set(R(0)); self.rd = set(allr(1))
            elif 'atomic' in op and 'sc0' in mods:
                self.kind = 'vmem'
                if op.startswith('global_'): self.wr = set(R(0)); self.rd = set(allr(1))
                else: self.wr = set(R(0)); self.rd = set(allr(0))
            else:
                self.kind = 'vmem'; self.rd = set(allr(0))
                if 'dwordx3' in op or 'dwordx4' in op:
                    self.wide_store = True
                    self.data = set(R(0)) if op.startswith('buffer_') else set(R(1))
        elif op.startswith('s_'):
            if op.startswith(('s_load', 's_buffer_load', 's_memtime', 's_memrealtime', 's_atomic')):
                self.kind = 'smem'; self.wr = set(R(0)); self.rd = set(allr(1))
            elif op.startswith(('s_cmp', 's_bitcmp')):
                self.kind = 'salu'; self.rd = set(allr(0))
            elif op.startswith(('s_waitcnt', 's_barrier', 's_nop', 's_sleep', 's_setprio', 's_endpgm', 's_branch', 's_cbranch')):
                self.kind = 'ctl'
            elif 'saveexec' in op:
                self.kind = 'salu'; self.wr = set(R(0) + regs_of('exec')); self.rd = set(allr(1) + regs_of('exec'))
            else:
                self.kind = 'salu'; self.wr = set(R(0)); self.rd = set(allr(1))
                if op.startswith(('s_addk', 's_mulk', 's_cmov')): self.rd |= self.wr
        else:
            raise ValueError('unknown instruction: ' + text)

    def states(self):
        if self.op == 's_nop': return int(self.text.split()[1].split(';')[0], 0) + 1
        return 1

class Emit:
    def __init__(self):
        self.out = []
        self.hist = []
        self.vm = []
        self.lg = []
        self.smem_pending = set()
        self.pend = {}
        self.nid = 0
        self.stats = {}
        self.nops = 0
        self.nbytes = 0
    def raw(self, s): self.out.append(s)
    def label(self, name, flush=True):
        if flush:
            self.drain_all()
            self._emit(Inst('s_nop 7')); self._emit(Inst('s_nop 4'))
        self.out.append(name + ':')
    def drain_all(self):
        if self.vm or self.lg or self.smem_pending:
            self._emit(Inst('s_waitcnt vmcnt(0) lgkmcnt(0)'))
        self.vm = []; self.lg = []; self.pend = {}; self.smem_pending = set()
    def _emit(self, ins):
        self.out.append('    ' + ins.text)
        self.hist.append(ins)
        if len(self.hist) > 40: self.hist.pop(0)
        self.stats[ins.kind] = self.stats.get(ins.kind, 0) + 1
    def _wait(self, vm_id=None, lg_id=None):
        parts = []
        if vm_id is not None and vm_id in self.vm:
            n = len(self.vm) - 1 - self.vm.index(vm_id)
            n = min(n, 63)
            done = self.vm[:len(self.vm) - n]; self.vm = self.vm[len(self.vm) - n:]
            parts.append(f'vmcnt({n})')
            ds = set(done); self.pend = {r: p for r, p in self.pend.items() if not (p[0] == 'vm' and p[1] in ds)}
        if lg_id is not None and lg_id in self.lg:
            n = len(self.lg) - 1 - self.lg.index(lg_id)
            n = min(n, 15)
            assert not self.smem_pending
            done = self.lg[:len(self.lg) - n]; self.lg = self.lg[len(self.lg) - n:]
            parts.append(f'lgkmcnt({n})')
            ds = set(done); self.pend = {r: p for r, p in self.pend.items() if not (p[0] == 'lg' and p[1] in ds)}
        if parts: self._emit(Inst('s_waitcnt ' + ' '.join(parts)))
    def wait_vm(self, i): self._wait(vm_id=i)
    def wait_lg(self, i): self._wait(lg_id=i)
    def wait_vm_all(self):
        if self.vm: self._wait(vm_id=self.vm[-1])
    def wait_lg_all(self):
        if self.smem_pending:
            self._emit(Inst('s_waitcnt lgkmcnt(0)')); self.smem_pending = set()
            self.lg = []; self.pend = {r: p for r, p in self.pend.items() if p[0] != 'lg'}
        elif self.lg: self._wait(lg_id=self.lg[-1])
    def _need(self, ins):
        need = 0; dist = 0
        isv = lambda s: {r for r in s if r[0] in 'va'}
        iss = lambda s: {r for r in s if r[0] == 's'}
        valu = ins.kind in ('valu', 'trans')
        for p in reversed(self.hist):
            req = 0
            pv = p.kind in ('valu', 'trans')
            if p.kind == 'mfma':
                big = {4: 8, 8: 12}[p.passes]
                if ins.kind == 'mfma':
                    if p.wr & ins.srcab: req = max(req, big)
                    if p.wr & set(ins.srcc):
                        if not (p.wr == set(ins.srcc) and p.passes == ins.passes): req = max(req, {4: 6, 8: 10}[p.passes])
                    elif p.wr & ins.wr:
                        req = max(req, big)
                elif valu or ins.kind in ('vmem', 'ds_read', 'ds_write'):
                    if p.wr & (ins.rd | ins.wr): req = max(req, big)
                if valu and set(p.srcc) & ins.wr: req = max(req, {4: 3, 8: 7}[p.passes])
                if ins.kind in ('vmem', 'ds_read') and set(p.srcc) & ins.wr: req = max(req, {4: 3, 8: 7}[p.passes])
            if pv:
                wv = isv(p.wr); ws = iss(p.wr)
                if ins.kind == 'mfma' and wv & ins.rd: req = max(req, 2)
                if valu and ws & ins.rd: req = max(req, 2)
                if ins.kind == 'vmem' and ws & ins.rd: req = max(req, 5)
                if ins.kind == 'salu' and ws & ins.rd: req = max(req, 1)
                if ins.op.startswith(('v_readfirstlane', 'v_readlane')) and wv & ins.rd: req = max(req, 1)
                if ins.op.startswith(('v_readlane', 'v_writelane')) and ws & ins.rd: req = max(req, 4)
                if valu and ins.dpp and wv & ins.rd: req = max(req, 2)
                if 'permlane' in ins.op and wv & ins.rd: req = max(req, 2)
                if p.kind == 'trans' and ins.kind == 'valu' and wv & ins.rd: req = max(req, 1)
                if ('s', 'exec_lo') in ws:
                    if ins.kind == 'mfma' or 'permlane' in ins.op or ins.op.startswith(('v_readfirstlane', 'v_readlane', 'v_writelane')): req = max(req, 4)
                    if valu and ins.dpp: req = max(req, 5)
                if ('sdwa' in p.op or 'op_sel' in p.text) and valu and wv & (ins.rd | ins.wr): req = max(req, 1)
            if p.wide_store and p.data & ins.wr: req = max(req, 2 if valu else 1)
            if p.kind == 'salu' and ('s', 'm0') in p.wr and ins.kind == 'vmem' and ('s', 'm0') in ins.rd: req = max(req, 1)
            need = max(need, req - dist)
            dist += p.states()
            if dist >= 12: break
        return need
    def __call__(self, text):
        ids = None
        for line in text.strip('\n').split('\n'):
            line = line.strip()
            if not line or line.startswith(';'): continue
            ids = self.one(line)
        return ids
    def touch(self, line):
        ins = Inst(line); w = ins.wr
        for r in w: assert r not in self.pend
        i = self.one(line)
        for r in w: self.pend.pop(r, None)
        return i
    def one(self, line):
        ins = Inst(line)
        touched = ins.rd | ins.wr
        if self.smem_pending & touched: self.wait_lg_all()
        vm_id = lg_id = None
        for r in touched:
            p = self.pend.get(r)
            if p:
                if p[0] == 'vm':
                    if vm_id is None or self.vm.index(p[1]) > self.vm.index(vm_id): vm_id = p[1]
                else:
                    if lg_id is None or self.lg.index(p[1]) > self.lg.index(lg_id): lg_id = p[1]
        if vm_id is not None or lg_id is not None: self._wait(vm_id, lg_id)
        n = self._need(ins)
        while n > 0:
            k = min(n, 16)
            self._emit(Inst(f's_nop {k-1}')); self.nops += k; n -= k
        self._emit(ins)
        self.nid += 1; ins.id = self.nid
        if ins.kind == 'vmem':
            self.vm.append(ins.id)
            for r in ins.wr: self.pend[r] = ('vm', ins.id)
        elif ins.kind in ('ds_read', 'ds_write'):
            self.lg.append(ins.id)
            for r in ins.wr: self.pend[r] = ('lg', ins.id)
        elif ins.kind == 'smem':
            self.smem_pending |= ins.wr
            if not ins.wr: self.smem_pending.add(('x', 0))
        elif ins.op == 's_waitcnt':
            raise ValueError('use wait_* helpers')
        return ins.id
    def text(self): return '\n'.join(self.out) + '\n'
    def snapshot(self):
        return (list(self.hist), list(self.vm), list(self.lg), set(self.smem_pending), dict(self.pend))
    def restore(self, s):
        self.hist, self.vm, self.lg, self.smem_pending, self.pend = list(s[0]), list(s[1]), list(s[2]), set(s[3]), dict(s[4])

def interleave(e, mains, fills):
    def run(x):
        return x() if callable(x) else e(x)
    for x in fills.get(-1, []): run(x)
    for i, m in enumerate(mains):
        run(m)
        for x in fills.get(i, []): run(x)
```

```python
from common import *
from sched import *

class P1:
    def __init__(self, e, role, opt):
        self.e = e; self.role = role; self.opt = opt
        A = role == 'A'
        self.pitch = 3840 if A else 3456
        v = 1
        self.vLane = v; v += 1
        self.vDw = v; v += 4
        self.vDx = v; v += 4
        self.vDh = v; v += 1
        self.vXo = v; v += 2
        self.vXh = v; v += 2
        self.vG = v; v += 1
        self.vWb = v; v += 8
        self.vT = v; v += 8
        assert v <= 32
        self.vXF = 32
        self.vWF = 64
        self.NF = opt.get('nf', 7)
        self.vAcc = self.vWF + 4 * 8
        if A:
            b = self.vAcc
            self.accQ = lambda T, t: b + 20 * T + 4 * t
            self.accK = lambda T, t: b + 40 + 20 * T + 4 * t
            self.accV = lambda T, u: b + 80 + 20 * T + 4 * u
            self.hK, self.hV, self.hK4, self.hV4 = b + 120, b + 124, b + 128, b + 132
            self.accG = lambda T: b + 136 + 4 * T
            self.nacc = 144
        else:
            self.accF = lambda T, t: self.vAcc + 56 * T + 4 * t
            self.nacc = 112
        self.dma_ids = {}

    def setup(self):
        e = self.e; A = self.role == 'A'; T = self.vT; L = self.vLane
        self.rots = rots = self.opt.get('rots', [0])
        n = len(rots)
        if n > 1:
            e(f"s_and_b32 s{sT0}, s{sC}, 1")
            if n == 4: e(f"s_lshl_b32 s{sT0}, s{sT0}, 1\ns_add_u32 s{sT0}, s{sT0}, s{sROLE}")
            e(f"s_add_u32 s{sT0}, s{sT0}, s{sRB}\ns_and_b32 s{sT0}, s{sT0}, {n-1}\ns_mov_b32 s{sROT}, 0")
            for i, r in enumerate(rots[1:]):
                e(f"""
                s_cmp_eq_u32 s{sT0}, {i+1}
                s_cselect_b32 s{sROT}, {r}, s{sROT}
                s_cselect_b32 s{sDW+i}, {-19*32*self.pitch}, {32*self.pitch}
                s_cselect_b32 s{sDX+i}, {-9*128}, 128
                """.replace(f"s_cselect_b32 s{sDW+i}, {-19*32*self.pitch}, {32*self.pitch}", f"s_mov_b32 s{sT1}, {32*self.pitch}\ns_cselect_b32 s{sDW+i}, {-19*32*self.pitch}, s{sT1}").replace(f"s_cselect_b32 s{sDX+i}, {-9*128}, 128", f"s_movk_i32 s{sT1}, 128\ns_cselect_b32 s{sDX+i}, {-9*128}, s{sT1}"))
        e(f"""
        s_mul_i32 s{sM2}, s{sWV}, {4*WBLK}
        s_add_u32 s{sM0W}, s{sM2}, {WOFF}
        s_lshl_b32 s{sM0X}, s{sWV}, 12
        s_add_u32 s{sM0X}, s{sM0X}, {XOFF + 2048}
        s_lshl_b32 s{sM0H}, s{sWV}, 9
        s_add_u32 s{sM0H}, s{sM0H}, {XOFF}
        """)
        e(f"""
        s_lshl_b32 s{sT0}, s{sRB}, 7
        s_lshl_b32 s{sT1}, s{sWV}, 5
        s_add_u32 s{sT1}, s{sT1}, s{sT0}
        s_movk_i32 s{sT2}, 1280
        v_lshrrev_b32 v{T}, 3, v{L}
        v_add_u32 v{T+1}, s{sT1}, v{T}
        v_mul_lo_u32 v{T+1}, v{T+1}, s{sT2}
        v_and_b32 v{T+2}, 7, v{L}
        v_lshrrev_b32 v{T+3}, 4, v{L}
        {'v_xor_b32' if not self.opt.get('noswz') else 'v_max_u32'} v{T+4}, v{T+2}, v{T+3 if not self.opt.get('noswz') else T+2}
        v_xor_b32 v{T+5}, {4 if not self.opt.get('noswz') else 0}, v{T+4}
        v_lshl_add_u32 v{self.vDx}, v{T+4}, 4, v{T+1}
        v_lshl_add_u32 v{self.vDx+1}, v{T+5}, 4, v{T+1}
        v_add_u32 v{self.vDx+1}, {8*1280-1024}, v{self.vDx+1}
        v_add_u32 v{self.vDx+2}, {16*1280-2048}, v{self.vDx}
        v_add_u32 v{self.vDx+3}, {16*1280-2048}, v{self.vDx+1}
        """)
        if A:
            e(f"""
            s_lshl_b32 s{sT1}, s{sWV}, 2
            v_add_u32 v{T+4}, s{sT1}, v{T}
            v_lshrrev_b32 v{T+5}, 1, v{T+4}
            v_and_b32 v{T+5}, 7, v{T+5}
            v_xor_b32 v{T+5}, v{T+5}, v{T+2}
            s_sub_u32 s{sT0}, s{sT0}, 16
            v_add_u32 v{T+4}, s{sT0}, v{T+4}
            v_max_i32 v{T+4}, 0, v{T+4}
            v_mul_lo_u32 v{T+4}, v{T+4}, s{sT2}
            v_lshl_add_u32 v{self.vDh}, v{T+5}, 4, v{T+4}
            """)
        if A:
            e(f"""
            v_mul_u32_u24 v{T+4}, 205, v{L}
            v_lshrrev_b32 v{T+4}, 11, v{T+4}
            v_mul_u32_u24 v{T+5}, 10, v{T+4}
            v_sub_u32 v{T+5}, v{L}, v{T+5}
            v_cmp_le_u32 vcc, 3, v{T+4}
            v_cndmask_b32 v{T+6}, 0, 1, vcc
            v_mul_u32_u24 v{T+7}, 3, v{T+6}
            v_sub_u32 v{T+4}, v{T+4}, v{T+7}
            v_mul_u32_u24 v{T+4}, 1280, v{T+4}
            v_lshl_add_u32 v{T+4}, v{T+5}, 4, v{T+4}
            v_mul_u32_u24 v{T+6}, {4*self.pitch}, v{T+6}
            v_add_u32 v{T+4}, v{T+4}, v{T+6}
            s_mul_i32 s{sT0}, s{sWV}, {8*self.pitch}
            s_mul_i32 s{sT1}, s{sC}, 160
            s_add_u32 s{sT0}, s{sT0}, s{sT1}
            v_add_u32 v{T+4}, s{sT0}, v{T+4}
            v_mov_b32 v{T+5}, {OOB}
            v_cmp_gt_u32 vcc, 60, v{L}
            v_cndmask_b32 v{self.vDw}, v{T+5}, v{T+4}, vcc
            """)
        else:
            e(f"""
            v_lshrrev_b32 v{T+4}, 5, v{L}
            v_mul_u32_u24 v{T+4}, {4*self.pitch}, v{T+4}
            v_and_b32 v{T+5}, 31, v{L}
            v_lshl_add_u32 v{T+4}, v{T+5}, 4, v{T+4}
            s_mul_i32 s{sT1}, s{sC}, {7*64}
            s_mul_i32 s{sT0}, s{sWV}, {8*self.pitch}
            s_add_u32 s{sT0}, s{sT0}, s{sT1}
            v_add_u32 v{T+4}, s{sT0}, v{T+4}
            v_mov_b32 v{T+6}, {OOB}
            v_cmp_gt_u32 vcc, 28, v{T+5}
            v_cndmask_b32 v{self.vDw}, v{T+6}, v{T+4}, vcc
            """)
        for p in range(1, 4):
            e(f"v_add_u32 v{self.vDw+p}, {p*(self.pitch-WBLK)}, v{self.vDw}")

    def setup_reads(self):
        e = self.e; A = self.role == 'A'; T = self.vT; L = self.vLane
        e(f"""
        v_and_b32 v{T}, 15, v{L}
        v_lshrrev_b32 v{T+1}, 4, v{L}
        v_lshrrev_b32 v{T+2}, 1, v{T}
        v_xor_b32 v{T+2}, v{T+2}, v{T+1}
        v_lshlrev_b32 v{T+2}, 4, v{T+2}
        v_lshl_add_u32 v{T+2}, v{T}, 7, v{T+2}
        v_add_u32 v{self.vXh}, {XOFF}, v{T+2}
        v_xor_b32 v{T+3}, 64, v{T+2}
        v_add_u32 v{self.vXh+1}, {XOFF}, v{T+3}
        v_add_u32 v{self.vXo}, s{sM0X}, v{T+2}
        v_add_u32 v{self.vXo+1}, s{sM0X}, v{T+3}
        v_lshlrev_b32 v{self.vG}, 4, v{T+1}
        v_add_u32 v{self.vG}, {GOFF}, v{self.vG}
        v_lshrrev_b32 v{T+4}, 2, v{L}
        v_mul_u32_u24 v{T+4}, {WBLK}, v{T+4}
        v_add_u32 v{T+4}, {WOFF}, v{T+4}
        v_and_b32 v{T+5}, 3, v{L}
        v_lshl_add_u32 v{self.vWb+2}, v{T+5}, 3, v{T+4}
        v_add_u32 v{self.vWb+3}, {3*WSLOT}, v{self.vWb+2}
        """)
        if A:
            e(f"""
            v_mul_u32_u24 v{T+5}, 40, v{T+5}
            v_add_u32 v{self.vWb}, v{T+5}, v{T+4}
            v_add_u32 v{self.vWb+1}, {3*WSLOT}, v{self.vWb}
            s_lshl_b32 s{sT0}, s{sWV}, 3
            v_add_u32 v{self.vWb+4}, s{sT0}, v{self.vWb}
            v_add_u32 v{self.vWb+5}, s{sT0}, v{self.vWb+1}
            s_mul_i32 s{sT0}, s{sWV}, 40
            v_add_u32 v{self.vWb+6}, s{sT0}, v{self.vWb+2}
            v_add_u32 v{self.vWb+7}, s{sT0}, v{self.vWb+3}
            """)

    def dma_w(self, st):
        e = self.e; out = []
        slot = st % NWS
        out.append(lambda: e(f"s_add_u32 m0, s{sM0W}, {slot*WSLOT}"))
        def first():
            wr = [i for i, r in enumerate(self.rots[1:]) if 20 - r == st]
            if st == 0: e(f"s_mul_i32 s{sKW}, s{sROT}, {32*self.pitch}" if len(self.rots) > 1 else f"s_mov_b32 s{sKW}, 0")
            elif wr: e(f"s_add_u32 s{sKW}, s{sKW}, s{sDW+wr[0]}")
            else: e(f"s_add_u32 s{sKW}, s{sKW}, {32*self.pitch}")
        out.append(first)
        for p in range(4):
            def f(p=p):
                if self.opt.get('now') and st > 1: self.dma_ids[('w', st)] = -1; return
                self.dma_ids[('w', st)] = e(f"buffer_load_dwordx4 v{self.vDw+p}, s[{SW}:{SW+3}], s{sKW} offen offset:{p*WBLK} lds")
            f.dma = 1; f.cost = ['buffer_x']
            out.append(f)
        return out
    def x_m0(self, a):
        return lambda: self.e(f"s_add_u32 m0, s{sM0X}, {(a % NXS)*XSLOT}")
    def dma_x(self, a):
        e = self.e; out = []
        slot = a % NXS
        out.append(lambda: e(f"s_add_u32 m0, s{sM0X}, {slot*XSLOT}"))
        def first():
            wr = [i for i, r in enumerate(self.rots[1:]) if 20 - r == 2 * a]
            if a == 0: e(f"s_lshl_b32 s{sKX}, s{sROT}, 6" if len(self.rots) > 1 else f"s_mov_b32 s{sKX}, 0")
            elif wr: e(f"s_add_u32 s{sKX}, s{sKX}, s{sDX+wr[0]}")
            else: e(f"s_add_u32 s{sKX}, s{sKX}, 128")
        out.append(first)
        for p in range(4):
            def f(p=p):
                if self.opt.get('nox') and a > 0: self.dma_ids[('x', a)] = -1; return
                self.dma_ids[('x', a)] = e(f"buffer_load_dwordx4 v{self.vDx+p}, s[{SX}:{SX+3}], s{sKX} offen offset:{p*1024} lds")
            f.dma = 1; f.cost = ['buffer_x']
            out.append(f)
        if self.role == 'A':
            out.append(lambda: e(f"s_add_u32 m0, s{sM0H}, {slot*XSLOT}"))
            def h():
                e(f"s_mov_b32 exec_hi, 0")
                self.dma_ids[('x', a)] = e(f"buffer_load_dwordx4 v{self.vDh}, s[{SX}:{SX+3}], s{sKX} offen lds")
                e(f"s_mov_b32 exec_hi, -1")
            h.cost = ['s_x', 'buffer_x', 's_x']; h.dma = 1
            out.append(h)
        return out

    def frags(self):
        fr = []
        if self.role == 'A':
            for t in range(5): fr.append((0, 8*t, [('WX', self.accQ(0, t), 0), ('WX', self.accQ(1, t), 1)]))
            for t in range(5):
                m = [('WX', self.accK(0, t), 0), ('WX', self.accK(1, t), 1)]
                if t == 4: m.append(('WX', self.hK4, 2))
                fr.append((0, 160 + 8*t, m))
            for u in range(5):
                m = [('XW', self.accV(0, u), 0), ('XW', self.accV(1, u), 1)]
                if u == 4: m.append(('XW', self.hV4, 2))
                if u < 4: fr.append((2, 320 + 40*u, m))
                else: fr.append((0, 320 + 32, m))
            fr.append((4, 160, [('WX', self.hK, 2), ('GX', self.accG(0), 0)]))
            fr.append((6, 320, [('XW', self.hV, 2), ('GX', self.accG(1), 1)]))
            self.hstride = 480
        else:
            for t in range(14): fr.append((2, 32*t, [('WX', self.accF(0, t), 0), ('WX', self.accF(1, t), 1)]))
            self.hstride = 512
        return fr
    def read_frag(self, gf):
        e = self.e
        fr = self.fr; st, f = divmod(gf, len(fr))
        pat, off, _ = fr[f]
        slot = st % NWS
        base = self.vWb + pat + (1 if slot >= 3 else 0)
        o = (slot - (3 if slot >= 3 else 0)) * WSLOT + off
        d = self.vWF + 4 * (gf % self.NF)
        return [f"ds_read_b64_tr_b16 v[{d}:{d+1}], v{base} offset:{o}",
                f"ds_read_b64_tr_b16 v[{d+2}:{d+3}], v{base} offset:{o+self.hstride}"]
    def read_x(self, st):
        a, kk = divmod(st, 2); slot = a % NXS
        b = self.vXF + 16 * (st & 1)
        out = [f"ds_read_b128 v[{b}:{b+3}], v{self.vXo+kk} offset:{slot*XSLOT}",
               f"ds_read_b128 v[{b+4}:{b+7}], v{self.vXo+kk} offset:{slot*XSLOT+2048}"]
        if self.role == 'A':
            out += [f"ds_read_b128 v[{b+8}:{b+11}], v{self.vXh+kk} offset:{slot*XSLOT}",
                    f"ds_read_b128 v[{b+12}:{b+15}], v{self.vG} offset:{st*64}"]
        return out
    def mfma(self, st, gf, spec):
        kind, acc, xi = spec
        w = self.vWF + 4 * (gf % self.NF); x = self.vXF + 16 * (st & 1) + 4 * xi
        if kind == 'GX': w = self.vXF + 16 * (st & 1) + 12
        a, b = (x, w) if kind == 'XW' else (w, x)
        c = f"v[{acc}:{acc+3}]" if st > 0 else "0"
        return f"v_mfma_f32_16x16x32_bf16 v[{acc}:{acc+3}], v[{a}:{a+3}], v[{b}:{b+3}], {c}"

    def barrier_for(self, st):
        e = self.e
        ids = [self.dma_ids[('w', st)]]
        if st % 2 == 0: ids.append(self.dma_ids[('x', st // 2)])
        live = [i for i in ids if i in e.vm]
        if live: e.wait_vm(max(live, key=e.vm.index))
        if not (self.opt.get('nobar') and st > 0): e("s_barrier")

    def prologue_dma(self):
        e = self.e
        if self.role == 'A':
            T = self.vT
            e(f"""
            s_mul_i32 s{sT0}, s{sWV}, 320
            s_add_u32 m0, s{sT0}, {GOFF}
            v_lshl_add_u32 v{T}, v{self.vLane}, 4, s{sT0}
            """)
            if len(self.rots) > 1:
                e(f"""
                s_lshl_b32 s{sT1}, s{sROT}, 6
                v_add_u32 v{T}, s{sT1}, v{T}
                v_subrev_u32 v{T+1}, 1280, v{T}
                v_min_u32 v{T}, v{T}, v{T+1}
                """)
            e(f"""
            s_mov_b64 exec, 0xfffff
            buffer_load_dwordx4 v{T}, s[{SGATE}:{SGATE+3}], 0 offen lds
            s_mov_b64 exec, -1
            """)
        self.pre_issued = [('x', 0), ('w', 0), ('w', 1), ('x', 1), ('w', 2), ('w', 3), ('x', 2), ('w', 4)][:self.opt.get('npre', 3)]
        for item in self.pre_issued:
            for f in (self.dma_x if item[0] == 'x' else self.dma_w)(item[1]): f()

    def mainloop(self, extra=None):
        e = self.e; opt = self.opt
        self.fr = fr = self.frags(); nf = len(fr); NF = self.NF
        NST = 20
        sch = Sched(e)
        first = {}; last = {}
        for st in range(NST):
            for f in range(nf):
                gf = st * nf + f
                for spec in fr[f][2]:
                    i = sch.main(self.mfma(st, gf, spec) if not opt.get('nomfma') else (lambda: None))
                    first.setdefault(gf, i); last[gf] = i
        step0 = [first[st * nf] for st in range(NST)] + [len(sch.mains)]
        self.step0 = step0
        lead = opt.get('lead', 9)
        ids = {}
        bars = {}
        self.barrier_for(0); self.tm.stamp()
        bpos = [-2] + [step0[st] - lead - 1 for st in range(1, NST)] + [step0[NST] - lead - 1]
        for st in range(1, NST):
            def b(st=st): self.barrier_for(st)
            bars[st] = sch.add('bar', b, early=bpos[st], dead=bpos[st], cost=['s_x', 's_barrier'])
        self.bars = bars; self.bpos = bpos
        for st in range(NST):
            xr = self.read_x(st)
            l = []
            for f in range(nf):
                gf = st * nf + f
                rf = [(x, gf) for x in self.read_frag(gf)]
                l += rf if f else [rf[0], (xr[0], None), rf[1], (xr[1], None)]
                if f in (4, 8) and len(xr) > 2: l.append((xr[2 + (f == 8)], None))
            lo = bpos[st] + 1; G = bpos[st + 1] - lo
            if st == 0: lo = -lead; G = bpos[1] - lo
            for k, (x, gf) in enumerate(l):
                g = max(-1, lo + k * G // len(l))
                if gf is not None and gf >= NF: assert g >= last[gf - NF], (st, gf, g, last[gf - NF])
                if gf is not None: assert g < first[gf] - 2 or st == 0, (st, gf, g, first[gf])
                def r(x=x, gf=gf):
                    if not opt.get('nomfma'): ids[gf] = e(x)
                sch.add('rd', r, early=g, dead=g, cost=[x])
        WG = opt.get('wg', 2)
        ng = NST * nf
        for gf in range(0, ng, WG):
            tgt = min(gf + WG - 1, ng - 1)
            def w(tgt=tgt):
                if tgt in ids: e.wait_lg(ids[tgt])
            if gf > 0: sch.add('wait', w, early=first[gf] - 2, dead=first[gf] - 1)
        pre = self.pre_issued
        per = [[] for _ in range(NST)]
        xsplit = {}
        for st in range(NST):
            l = []
            for s2 in range(NST):
                if ('w', s2) not in pre and max(s2 - 3, 0) == st: l.append((s2, self.dma_w(s2)))
            for a in range(10):
                if ('x', a) in pre: continue
                st0 = max(2 * (a - 2), 0)
                if st0 == st:
                    fns = self.dma_x(a)
                    if a >= 3 and opt.get('xsplit', 1):
                        l.append((2 * a - 0.5, fns[:5])); xsplit[st + 1] = (2 * a - 0.5, [self.x_m0(a)] + fns[5:])
                    else: l.append((2 * a - 0.5, fns))
            if st in xsplit: l.append(xsplit[st])
            l.sort(key=lambda t: t[0])
            for _, fns in l: per[st] += fns
        for st in range(NST):
            fns = per[st]
            nd = sum(1 for f in fns if getattr(f, 'dma', 0))
            b0 = max(bpos[st], -1)
            k = 0; span = bpos[st + 1] - b0 - 1
            for fn in fns:
                pos = b0 + 1 + int((k + opt.get('dph', 0.3)) * span / max(nd, 1))
                if getattr(fn, 'dma', 0): k += 1; fn.sep = 1
                else: pos -= 3
                if opt.get('nodma') and getattr(fn, 'dma', 0):
                    for q in range(20): self.dma_ids.setdefault(('w', q), -1); self.dma_ids.setdefault(('x', q), -1)
                    continue
                sch.add('dma', fn, early=pos, dead=min(pos + opt.get('dslack', 2), bpos[st + 1] - 1), after=[bars.get(st)])
        if self.tm.on and not opt.get('ts2'):
            for st in (5, 10): sch.add('ts', self.tm.stamp, early=step0[st], dead=step0[st])
        if extra: extra(sch)
        sch.run()
        self.over = sch.over

    def epilogue_F(self, aux=''):
        e = self.e; T = self.vT
        e(f"""
        s_mul_i32 s{sT0}, s{sC}, {7*A2_STEP}
        s_lshl_b32 s{sT1}, s{sRB}, 13
        s_add_u32 s{sT0}, s{sT0}, s{sT1}
        s_lshl_b32 s{sT1}, s{sWV}, 11
        s_add_u32 s{sT0}, s{sT0}, s{sT1}
        v_lshlrev_b32 v{T}, 4, v{self.vLane}
        """)
        for m in range(7):
            for Tt in range(2):
                d = self.vXF + 4 * ((2 * m + Tt) % 8)
                a0, a1 = self.accF(Tt, 2*m), self.accF(Tt, 2*m+1)
                e(f"""
                v_cvt_pk_bf16_f32 v{d}, v{a0}, v{a0+1}
                v_cvt_pk_bf16_f32 v{d+1}, v{a0+2}, v{a0+3}
                v_cvt_pk_bf16_f32 v{d+2}, v{a1}, v{a1+1}
                v_cvt_pk_bf16_f32 v{d+3}, v{a1+2}, v{a1+3}
                v_pk_max_i16 v{d}, v{d}, 0
                v_pk_max_i16 v{d+1}, v{d+1}, 0
                v_pk_max_i16 v{d+2}, v{d+2}, 0
                v_pk_max_i16 v{d+3}, v{d+3}, 0
                buffer_store_dwordx4 v[{d}:{d+3}], v{T}, s[{SH}:{SH+3}], s{sT0} offen offset:{Tt*1024} {aux}
                """)
            self.last_store = e.vm[-1]
            if m < 6: e(f"s_add_u32 s{sT0}, s{sT0}, {A2_STEP}")

    def att_consts(self):
        e = self.e; T = self.vT; L = self.vLane
        sPar, sM0, sM1, sG1, sG2, sG3 = [sMASK + 2 * i for i in range(6)]
        vSel = T + 4
        e(f"""
        v_and_b32 v{T}, 15, v{L}
        v_lshrrev_b32 v{T+1}, 4, v{L}
        v_and_b32 v{T+2}, 1, v{L}
        v_cmp_eq_u32 s[{sPar}:{sPar+1}], 1, v{T+2}
        v_lshl_add_u32 v{T+3}, v{T+1}, 2, v{T+2}
        v_cmp_le_u32 s[{sM0}:{sM0+1}], v{T+3}, v{T}
        v_add_u32 v{T+3}, 2, v{T+3}
        v_cmp_le_u32 s[{sM1}:{sM1+1}], v{T+3}, v{T}
        v_cmp_eq_u32 s[{sG1}:{sG1+1}], 1, v{T+1}
        v_cmp_eq_u32 s[{sG2}:{sG2+1}], 2, v{T+1}
        v_cmp_eq_u32 s[{sG3}:{sG3+1}], 3, v{T+1}
        v_mov_b32 v{T}, 0x0c0c0100
        v_mov_b32 v{T+1}, 0x01000c0c
        v_cndmask_b32 v{T}, v{T}, v{T+1}, s[{sPar}:{sPar+1}]
        v_mov_b32 v{T+1}, 0x0c0c0302
        v_mov_b32 v{T+2}, 0x03020c0c
        v_cndmask_b32 v{T+1}, v{T+1}, v{T+2}, s[{sPar}:{sPar+1}]
        v_mov_b32 v{T+2}, 0x0c0c0c0c
        v_cndmask_b32 v{vSel}, v{T}, v{T+2}, s[{sM0}:{sM0+1}]
        v_cndmask_b32 v{vSel+1}, v{T+1}, v{T+2}, s[{sM1}:{sM1+1}]
        v_cndmask_b32 v{vSel+2}, v{T+2}, v{T}, s[{sM0}:{sM0+1}]
        v_cndmask_b32 v{vSel+3}, v{T+2}, v{T+1}, s[{sM1}:{sM1+1}]
        s_lshr_b32 s{sT0}, s{sC}, 1
        s_lshl_b32 s{sE+3}, s{sT0}, 13
        s_mul_i32 s{sT0}, s{sT0}, 5
        s_add_u32 s{sT0}, s{sT0}, 54
        s_and_b32 s{sT1}, s{sC}, 1
        s_mul_i32 s{sT2}, s{sT1}, 3
        s_add_u32 s{sT2}, s{sT2}, s{sT0}
        s_lshl_b32 s{sT2}, s{sT2}, 17
        s_add_u32 s{sT0}, s{sT0}, 2
        s_lshl_b32 s{sT0}, s{sT0}, 17
        s_lshl_b32 s{sT1}, s{sT1}, 9
        s_add_u32 s{sT0}, s{sT0}, s{sT1}
        s_lshl_b32 s{sT1}, s{sRB}, 13
        s_lshl_b32 s{sT3}, s{sWV}, 11
        s_add_u32 s{sT1}, s{sT1}, s{sT3}
        s_add_u32 s{sE}, s{sT0}, s{sT1}
        s_add_u32 s{sE+1}, s{sT2}, s{sT1}
        s_add_u32 s{sE+2}, s{sE+1}, {A2_STEP}
        s_lshr_b32 s{sT1}, s{sT1}, 4
        s_add_u32 s{sT1}, s{sT1}, {G_OFF}
        s_add_u32 s{sE+3}, s{sE+3}, s{sT1}
        s_bitcmp1_b32 s{sC}, 0
        s_cselect_b32 s{sT1}, {OOB}, 0
        s_add_u32 s{sE+3}, s{sE+3}, s{sT1}
        s_or_b32 s{sT1}, s{sRB}, s{sWV}
        s_cmp_eq_u32 s{sT1}, 0
        s_cselect_b32 s{sE+4}, 0xff800000, 0
        s_mov_b32 s{sE+5}, {f2h(1.4426950408889634 * 20 ** -0.5)}
        """)

    EX = XOFF + XSLOT
    @staticmethod
    def cvt2(d, a): return [f"v_cvt_pk_bf16_f32 v{d}, v{a}, v{a+1}", f"v_cvt_pk_bf16_f32 v{d+1}, v{a+2}, v{a+3}"]

    def att_lastloop(self, sch):
        e = self.e; L = self.vLane
        g0 = self.step0[19]
        pre = [f"s_add_u32 s{sT0}, s{sWV}, 1", f"s_mul_i32 s{sT0}, s{sT0}, 5120", f"s_add_u32 s{sT0}, s{sT0}, {self.EX}",
               f"v_lshlrev_b32 v{self.vDx+1}, 3, v{L}", f"v_add_u32 v{self.vDx}, s{sT0}, v{self.vDx+1}",
               f"s_lshl_b32 s{sT0}, s{sWV}, 9", f"s_add_u32 s{sT0}, s{sT0}, {self.EX}",
               f"v_add_u32 v{self.vDx+2}, s{sT0}, v{self.vDx+1}", f"v_add_u32 v{self.vDx+3}, {self.EX}, v{self.vDx+1}",
               f"v_lshlrev_b32 v{self.vDw}, 4, v{L}", f"v_and_b32 v{self.vDw+1}, 15, v{L}", f"v_lshlrev_b32 v{self.vDw+1}, 2, v{self.vDw+1}"]
        for k, x in enumerate(pre): sch.add('cv', x, early=g0 - 14 + k, dead=g0 + 4)
        lag = 5
        for t in range(5):
            for Tt in (0, 1):
                for x in self.cvt2(self.accQ(Tt, t), self.accQ(Tt, t)): sch.add('cv', x, early=g0 + 2*t + Tt + lag, dead=g0 + 30)
        for t in range(5):
            for Tt in (0, 1):
                for x in self.cvt2(self.accK(Tt, t), self.accK(Tt, t)): sch.add('cv', x, early=g0 + 10 + 2*t + Tt + lag, dead=g0 + 34)
        for x in self.cvt2(self.hK4, self.hK4): sch.add('cv', x, early=g0 + 20 + lag, dead=g0 + 35)

    def epilogue_A(self, aux='', hooks=None):
        e = self.e; T = self.vT; L = self.vLane; hooks = hooks or {}
        sPar, sM0, sM1, sG1, sG2, sG3 = [sMASK + 2 * i for i in range(6)]
        vSel = T + 4; cvt2 = self.cvt2
        H = lambda n: list(hooks.get(n, []))
        Vp = lambda Tt, u: 32 + 6 * u + 2 * (Tt + 1)
        Kp = lambda Tt, t: self.accK(Tt, t) if Tt >= 0 else self.hK + 2 * t
        Qp = self.accQ
        Sc = {1: 62, 0: 176}; Sp = {1: 78, 0: 192}
        vE, vE8, vEh, vE0 = self.vDx, self.vDx + 1, self.vDx + 2, self.vDx + 3
        def qk(Tt):
            l = []
            for t in range(5):
                for (Sr, kt) in ((Sc[Tt], Tt), (Sp[Tt], Tt - 1)):
                    c = f"v[{Sr}:{Sr+15}]" if t else "0"
                    l.append(f"v_mfma_f32_16x16x4_4b_bf16 v[{Sr}:{Sr+15}], v[{Kp(kt,t)}:{Kp(kt,t)+1}], v[{Qp(Tt,t)}:{Qp(Tt,t)+1}], {c}")
            return l
        side = [f"ds_write_b64 v{vE}, v[{Kp(1,t)}:{Kp(1,t)+1}] offset:{512*t}" for t in range(5)]
        side.append(f"ds_write_b64 v{vE0}, v[{self.hK4}:{self.hK4+1}] offset:2048")
        for u in range(5):
            side += cvt2(Vp(1, u), self.accV(1, u)) + [f"ds_write_b64 v{vE}, v[{Vp(1,u)}:{Vp(1,u)+1}] offset:{2560+512*u}"]
        side += cvt2(self.hV4, self.hV4) + [f"ds_write_b64 v{vE0}, v[{self.hV4}:{self.hV4+1}] offset:{2560+2048}"]
        side += cvt2(self.hK, self.hK) + [f"ds_write_b64 v{vEh}, v[{self.hK}:{self.hK+1}]"]
        side += cvt2(self.hV, self.hV) + [f"ds_write_b64 v{vEh}, v[{self.hV}:{self.hV+1}] offset:2560"]
        for u in range(5): side += cvt2(Vp(0, u), self.accV(0, u))
        side.append(f"v_subrev_u32 v{vE}, 5120, v{vE}")
        weave(e, qk(1), side + H('qk1'))
        e.wait_lg_all(); e("s_barrier")
        for t in range(5): e(f"ds_read_b64 v[{Kp(-1,t)}:{Kp(-1,t)+1}], v{vE} offset:{512*t}")
        for u in range(5): e(f"ds_read_b64 v[{Vp(-1,u)}:{Vp(-1,u)+1}], v{vE} offset:{2560+512*u}")
        gate = []
        for op in range(5):
            for Tt in range(2):
                g = self.accG(Tt)
                gate.append([f"v_mul_f32 v{g}, {f2h(-1.4426950408889634)}, v{g}", f"v_exp_f32 v{g}, v{g}", f"v_add_f32 v{g}, 1.0, v{g}",
                             f"v_rcp_f32 v{g}, v{g}", f"v_sub_f32 v{g+1}, 1.0, v{g}"][op])
        for Tt in range(2):
            gate.append(f"buffer_store_dword v{self.accG(Tt)+1}, v{self.vDw+1}, s[{SWS}:{SWS+3}], s{sE+3} offen offset:{64*Tt} {aux}")
        weave(e, gate, H('bar'))
        def softmax(Tt):
            sc, sp = Sc[Tt], Sp[Tt]; l = []
            m0 = [sc + 4*bb for bb in range(4)]; m1 = [sc + 4*bb + 2 for bb in range(4)]
            for bb in range(4):
                c0, p0 = sc + 4*bb, sp + 4*bb
                l += [f"v_cndmask_b32 v{c0}, v{c0}, v{c0+1}, s[{sPar}:{sPar+1}]", f"v_cndmask_b32 v{c0+2}, v{c0+2}, v{c0+3}, s[{sPar}:{sPar+1}]",
                      f"v_cndmask_b32 v{p0}, v{p0}, v{p0+1}, s[{sPar}:{sPar+1}]", f"v_cndmask_b32 v{p0+2}, v{p0+2}, v{p0+3}, s[{sPar}:{sPar+1}]"]
                if Tt == 0: l += [f"v_add_f32 v{p0}, s{sE+4}, v{p0}", f"v_add_f32 v{p0+2}, s{sE+4}, v{p0+2}"]
            for bb in range(4):
                c0, p0 = sc + 4*bb, sp + 4*bb
                l += [f"v_cndmask_b32 v{c0}, v{p0}, v{c0}, s[{sM0}:{sM0+1}]"]
            for bb in range(4):
                c0, p0 = sc + 4*bb, sp + 4*bb
                l += [f"v_cndmask_b32 v{c0+2}, v{p0+2}, v{c0+2}, s[{sM1}:{sM1+1}]"]
            for m in (m0, m1): l += [f"v_permlane32_swap_b32 v{m[0]}, v{m[2]}", f"v_permlane32_swap_b32 v{m[1]}, v{m[3]}"]
            for m in (m0, m1): l += [f"v_permlane16_swap_b32 v{m[0]}, v{m[1]}", f"v_permlane16_swap_b32 v{m[2]}, v{m[3]}"]
            vals = m0 + m1; t0, t1 = sp, sp + 1
            l += [f"v_max3_f32 v{t0}, v{vals[0]}, v{vals[1]}, v{vals[2]}", f"v_max3_f32 v{t1}, v{vals[3]}, v{vals[4]}, v{vals[5]}",
                  f"v_max3_f32 v{t0}, v{t0}, v{vals[6]}, v{vals[7]}", f"v_max_f32 v{t0}, v{t0}, v{t1}", f"v_mul_f32 v{t0}, s{sE+5}, v{t0}"]
            l += [f"v_fma_f32 v{x}, v{x}, s{sE+5}, -v{t0}" for x in vals]
            l += [f"v_exp_f32 v{x}, v{x}" for x in vals]
            l += [f"v_add_f32 v{t0}, v{vals[0]}, v{vals[1]}", f"v_add_f32 v{t1}, v{vals[2]}, v{vals[3]}", f"v_add_f32 v{t0+2}, v{vals[4]}, v{vals[5]}",
                  f"v_add_f32 v{t0}, v{t0}, v{t1}", f"v_add_f32 v{t0+3}, v{vals[6]}, v{vals[7]}", f"v_add_f32 v{t0}, v{t0}, v{t0+2}",
                  f"v_add_f32 v{t0}, v{t0}, v{t0+3}", f"v_rcp_f32 v{t0}, v{t0}", f"v_mul_f32 v{t0}, v{t0}, v{self.accG(Tt)}"]
            l += [f"v_mul_f32 v{x}, v{t0}, v{x}" for x in (vals[0], vals[4], vals[2], vals[6], vals[1], vals[5], vals[3], vals[7])]
            P = [sp + 4 + i for i in range(4)]
            l += [f"v_cvt_pk_bf16_f32 v{P[i]}, v{m0[i]}, v{m1[i]}" for i in (0, 2, 1, 3)]
            l += [f"v_permlane32_swap_b32 v{P[0]}, v{P[2]}", f"v_permlane32_swap_b32 v{P[1]}, v{P[3]}",
                  f"v_permlane16_swap_b32 v{P[0]}, v{P[1]}", f"v_permlane16_swap_b32 v{P[2]}, v{P[3]}"]
            for bb in range(4): l += [f"v_perm_b32 v{sc+4*bb+i}, v{P[bb]}, v{P[bb]}, v{vSel+i}" for i in range(4)]
            return l
        O = [96 + 4*i for i in range(8)]
        def pv(Tt):
            sc = Sc[Tt]; l = []
            for bb in range(4):
                l.append(f"v_mfma_f32_16x16x32_bf16 v[{O[bb]}:{O[bb]+3}], v[{Vp(Tt-1,bb)}:{Vp(Tt-1,bb)+3}], v[{sc+4*bb}:{sc+4*bb+3}], 0")
            for bb in range(4):
                l.append(f"v_mfma_f32_16x16x32_bf16 v[{O[4+bb]}:{O[4+bb]+3}], v[{Vp(Tt-1,4)}:{Vp(Tt-1,4)+3}], v[{sc+4*bb}:{sc+4*bb+3}], 0")
            return l
        def final(Tt):
            sp = Sp[Tt]; o = sp + 8; o4 = sp; l = []
            def st(x):
                def f(): self.last_store = e(x)
                return f
            for bb in range(4): l += cvt2(o + 2*bb, O[bb])
            l.insert(4, st(f"buffer_store_dwordx4 v[{o}:{o+3}], v{self.vDw}, s[{SWS}:{SWS+3}], s{sE+1} offen offset:{1024*Tt} {aux}"))
            l.append(st(f"buffer_store_dwordx4 v[{o+4}:{o+7}], v{self.vDw}, s[{SWS}:{SWS+3}], s{sE+2} offen offset:{1024*Tt} {aux}"))
            for bb in range(4): l += cvt2(o4 + 2*bb, O[4+bb])
            for bb, sg in ((1, sG1), (2, sG2), (3, sG3)):
                l += [f"v_cndmask_b32 v{o4}, v{o4}, v{o4+2*bb}, s[{sg}:{sg+1}]", f"v_cndmask_b32 v{o4+1}, v{o4+1}, v{o4+2*bb+1}, s[{sg}:{sg+1}]"]
            l.append(st(f"buffer_store_dwordx2 v[{o4}:{o4+1}], v{vE8}, s[{SWS}:{SWS+3}], s{sE} offen offset:{1024*Tt} {aux}"))
            return l
        s1 = softmax(1)
        q0 = qk(0); h = H('sm1'); side = []
        for i in range(max(len(q0), 1)):
            side.append(q0[i]); side += h[i * len(h) // len(q0):(i + 1) * len(h) // len(q0)]
        weave(e, s1, side, start=4, end=len(s1) - 12)
        s0 = softmax(0)
        weave(e, s0[:20], pv(1), start=0, end=16)
        weave(e, final(1), H('mid'))
        weave(e, s0[20:], H('sm0'))
        weave(e, pv(0), H('pv0'))
        weave(e, final(0), H('end'))
```

```python
from common import *
from sched import *
NH = 14; NSL = 19
SET1 = WOFF + 3 * WSLOT
RED = 0

class P2:
    def __init__(self, e, role, opt, tm):
        self.e = e; self.role = role; self.opt = opt; self.tm = tm
        self.NT = NT = 4 if role == 'A' else 7
        self.vLane = 1
        self.vGm = 2; self.vA = 11; self.vRw = 15; self.vRr = 17; self.vO = 18; self.vGaddr = 19; self.vTr2 = 20; self.vT = 24
        self.vAcc = 32
        if role == 'A':
            self.vR = 96; self.ring = [128 + 4*i for i in range(12)] + [208 + 4*i for i in range(6)]
        else:
            self.vR = 144; self.ring = [160 + 4*i for i in range(20)]
        self.ring = self.ring[:opt.get('na', 20)]
        self.NA = len(self.ring)
        self.stage_ids = {}; self.base = {}; self.rd_ids = {}; self.a_ids = {}
        self.acc = lambda T, u: self.vAcc + 16 * T + 4 * u
        self.items = [(i, T) for i in range(NH) for T in range(NT)] + [(NH + s, T) for T in range(NT) for s in range(5)]
        self.nload = 0; self.nlab = 0
        self.aux = opt.get('aux', 'sc1')

    def setup_early(self):
        e = self.e; T = self.vT; L = self.vLane; A = self.role == 'A'
        nt, t0, n = (4, 84, 11) if A else (7, 0, 12)
        e(f"""
        s_lshr_b32 s{sT1}, s2, 3
        s_and_b32 s{sT1}, s{sT1}, 15
        s_mul_i32 s{sT2}, s{sT1}, 13
        s_lshr_b32 s{sT2}, s{sT2}, 6
        s_mul_i32 s{sT3}, s{sT2}, 5
        s_sub_u32 s{sCOL}, s{sT1}, s{sT3}
        s_bitcmp1_b32 s2, 0
        s_cselect_b32 s{sT3}, 5, 0
        s_add_u32 s{sCOL}, s{sCOL}, s{sT3}
        s_cmp_ge_u32 s{sT2}, 3
        s_cselect_b32 s{sOFF2}, {OOB}, 0
        s_bfe_u32 s{sT0}, s2, 0x20001
        s_mul_i32 s{sT0}, s{sT0}, 3
        s_add_u32 s{sT0}, s{sT0}, s{sT2}
        s_cmp_ge_u32 s{sT0}, {n}
        s_cselect_b32 s{sOFF2}, {OOB}, s{sOFF2}
        s_min_u32 s{sT0}, s{sT0}, {n-1}
        s_mul_i32 s{sTOK}, s{sT0}, {nt}
        s_add_u32 s{sTOK}, s{sTOK}, {t0}
        s_lshl_b32 s{sT0}, s{sCOL}, 7
        s_add_u32 s{sT0}, s{sT0}, s{sOFF2}
        v_lshrrev_b32 v{T}, 3, v{L}
        v_and_b32 v{T+1}, 7, v{L}
        v_lshrrev_b32 v{T+2}, 4, v{L}
        v_lshlrev_b32 v{T+3}, 1, v{T+2}
        v_xor_b32 v{T+1}, v{T+1}, v{T+3}
        v_lshl_add_u32 v{T+1}, v{T+1}, 4, s{sT0}
        v_mul_u32_u24 v{T+3}, 1280, v{T}
        v_add_u32 v{vH}, v{T+3}, v{T+1}
        v_add_u32 v{vH+1}, {1*(8*1280-1024)}, v{vH}
        v_add_u32 v{vH+2}, {2*(8*1280-1024)}, v{vH}
        v_add_u32 v{vH+3}, {3*(8*1280-1024)}, v{vH}
        v_lshrrev_b32 v{T+3}, 2, v{T}
        v_mul_u32_u24 v{T+3}, {16*1280}, v{T+3}
        v_add_u32 v{vY}, v{T+3}, v{vH}
        v_lshrrev_b32 v{T}, 2, v{L}
        v_lshrrev_b32 v{T+1}, 1, v{T}
        v_and_b32 v{T+1}, 3, v{T+1}
        v_and_b32 v{T+2}, 3, v{L}
        v_lshlrev_b32 v{T+2}, 3, v{T+2}
        v_lshl_add_u32 v{T+2}, v{T}, 7, v{T+2}
        v_add_u32 v{T+2}, s{sM2}, v{T+2}
        """)
        for u in range(4):
            e(f"v_xor_b32 v{T+3}, {u}, v{T+1}\nv_lshl_add_u32 v{vTr+u}, v{T+3}, 5, v{T+2}")
        e(f"""
        s_mul_i32 s{sK2}, s{sWV}, {14*32*1280}
        s_mul_i32 s{sKA}, s{sWV}, {14*A2_STEP}
        s_mul_i32 s{sKO}, s{sWV}, {160*1280}
        s_mul_i32 s{sO0}, s{sWV}, {5*A2_STEP}
        s_add_u32 s{sO0}, s{sO0}, {54*A2_STEP}
        """)
        for s in range(1, 5): e(f"s_add_u32 s{sO0+s}, s{sO0}, {s*A2_STEP}")
        e(f"""
        s_lshr_b32 s{sT0}, s{sTOK}, 3
        s_add_u32 s{sT1}, s{sTOK}, {nt-1}
        s_lshr_b32 s{sT1}, s{sT1}, 3
        s_sub_u32 s{sT1}, s{sT1}, s{sT0}
        v_bfe_u32 v{T}, v{L}, 3, 1
        v_mul_u32_u24 v{T}, s{sT1}, v{T}
        v_add_u32 v{T}, s{sT0}, v{T}
        v_lshlrev_b32 v{T+2}, 4, v{T}
        v_bfe_u32 v{T+1}, v{L}, 2, 1
        v_lshl_add_u32 v{T}, v{T}, 3, v{T+1}
        s_lshl_b32 s{sT0}, s{sWV}, 8
        s_add_u32 s{sT0}, s{sT0}, {FLAG_OFF}
        v_and_b32 v{T+1}, 3, v{L}
        v_lshl_add_u32 v{T+1}, v{T+1}, 2, s{sT0}
        v_lshl_add_u32 v{vPollO}, v{T}, 7, v{T+1}
        v_add_u32 v{vPollH}, {128*128}, v{vPollO}
        """)
        self.vCnt = T + 2

    def setup_late(self):
        T = self.vT; L = self.vLane
        l = f"""
        s_lshl_b32 s{sT0}, s{sTOK}, 10
        s_add_u32 s{sT0}, s{sT0}, s{sOFF2}
        v_lshl_add_u32 v{self.vA}, v{L}, 4, s{sT0}
        v_add_u32 v{self.vA+1}, 4096, v{self.vA}
        v_lshl_add_u32 v{self.vA+2}, v{L}, 3, s{sT0}
        v_add_u32 v{self.vA+3}, 4096, v{self.vA+2}
        v_and_b32 v{T}, 15, v{L}
        v_lshrrev_b32 v{T+1}, 4, v{L}
        v_and_b32 v{T+2}, 7, v{L}
        v_xor_b32 v{T+2}, v{T+2}, v{T+1}
        s_lshl_b32 s{sT0}, s{sWV}, 12
        s_add_u32 s{sT0}, s{sT0}, {RED}
        v_lshl_add_u32 v{T+3}, v{T}, 8, s{sT0}
        v_lshl_add_u32 v{self.vRw}, v{T+2}, 4, v{T+3}
        v_xor_b32 v{T+2}, 4, v{T+2}
        v_lshl_add_u32 v{self.vRw+1}, v{T+2}, 4, v{T+3}
        s_lshl_b32 s{sT0}, s{sWV}, 2
        v_add_u32 v{T+2}, s{sT0}, v{T+1}
        v_and_b32 v{T+3}, 7, v{T+2}
        v_xor_b32 v{T+3}, v{T+3}, v{T}
        v_lshlrev_b32 v{T+3}, 4, v{T+3}
        v_lshl_add_u32 v{self.vRr}, v{T+2}, 8, v{T+3}
        s_lshl_b32 s{sT0}, s{sTOK}, 4
        v_add_u32 v{T+2}, s{sT0}, v{T+2}
        v_mul_u32_u24 v{T+2}, 1280, v{T+2}
        s_lshl_b32 s{sT0}, s{sCOL}, 7
        v_lshl_add_u32 v{T+3}, v{T}, 3, s{sT0}
        v_add_u32 v{self.vO}, v{T+2}, v{T+3}
        s_lshl_b32 s{sT0}, s{sTOK}, 6
        s_lshl_b32 s{sT1}, s{sWV}, 13
        s_add_u32 s{sT0}, s{sT0}, s{sT1}
        s_add_u32 s{sT0}, s{sT0}, {G_OFF}
        v_lshl_add_u32 v{self.vGaddr}, v{T}, 2, s{sT0}
        """.strip().split('\n')
        assert RED == 0
        return [x.strip() for x in l]
    def setup_tr2(self):
        return [f"v_add_u32 v{self.vTr2+u}, {SET1}, v{vTr+u}" for u in range(4)]

    def poll_issue(self, vaddr, srd=SWS):
        def f(): self.poll_id = self.e(f"buffer_load_dword v{vPD}, v{vaddr}, s[{srd}:{srd+3}], 0 offen sc1")
        f.cost = ['buffer_x']
        return f
    def poll_check(self, vaddr, want, srd=SWS):
        def f():
            e = self.e; self.nlab += 1
            lab = f"{self.role}_poll{self.nlab}"
            e(f"v_cmp_ne_u32 vcc, {want}, v{vPD}")
            e(f"s_cbranch_vccz {lab}_ok")
            e.raw(f"""    s_mov_b32 s3, 0
{lab}_spin:
    s_add_u32 s3, s3, 1
    s_cmp_gt_u32 s3, 0x8000
    s_cbranch_scc1 {lab}_ok
    s_sleep 1
    buffer_load_dword v{vPD}, v{vaddr}, s[{srd}:{srd+3}], 0 offen sc1
    s_waitcnt vmcnt(0)
    v_cmp_ne_u32 vcc, {want}, v{vPD}
    s_cbranch_vccnz {lab}_spin
{lab}_ok:""")
        f.cost = ['s_x', 'v_x', 's_x']
        return f
    def set_flag(self, store_id):
        def f():
            e = self.e
            e(f"v_mov_b32 v{self.vT+1}, 1")
            e.wait_vm(store_id() if callable(store_id) else store_id)
            e(f"buffer_store_dword v{self.vT+1}, v{vFlag}, s[{SWS}:{SWS+3}], 0 offen sc1")
        f.cost = ['v_x', 's_x', 'buffer_x']
        return f

    def stage_dma(self, i, base):
        e = self.e; out = []
        prev = [j for j, b in self.base.items() if b == base]
        self.base[i] = base
        def S(x): return (lambda: e(x))
        def Dm(x):
            def f(): self.stage_ids[i] = e(x)
            f.cost = ['buffer_x']; f.dma = 1; f.sep = 1
            return f
        if prev: out.append(lambda j=max(prev): e.wait_lg(self.rd_ids[j]))
        out.append(S(f"s_add_u32 m0, s{sM2}, {base}"))
        if i < NH:
            if i > 0: out.append(S(f"s_add_u32 s{sK2}, s{sK2}, {32*1280}"))
            for p in range(4): out.append(Dm(f"buffer_load_dwordx4 v{vH+p}, s[{SW2}:{SW2+3}], s{sK2} offen offset:{p*1024} lds"))
        else:
            s = i - NH
            if s != 2:
                rb = {0: 0, 1: 40, 3: 80, 4: 120}[s]
                out.append(S(f"s_add_u32 s{sK2}, s{sKO}, {rb*1280}"))
                for p in range(4):
                    if p == 2: out.append(S(f"s_add_u32 s{sK2}, s{sK2}, {4*1280}"))
                    out.append(Dm(f"buffer_load_dwordx4 v{vH+p}, s[{SWO}:{SWO+3}], s{sK2} offen offset:{p*1024} lds"))
            else:
                for p in range(4):
                    out.append(S(f"s_add_u32 s{sK2}, s{sKO}, {(80*(p>>1) + 40*(p&1) + 16)*1280 - 1024*p}"))
                    out.append(Dm(f"buffer_load_dwordx4 v{vY}, s[{SWO}:{SWO+3}], s{sK2} offen offset:{p*1024} lds"))
        return out
    def wreg(self, i, u): return 16 * (i % 16) + 4 * u
    def stage_read(self, i):
        e = self.e
        base = self.base[i]
        rb, off = (vTr, base) if base < SET1 else (self.vTr2, base - SET1)
        assert off + 2048 < 65536
        out = [lambda: e.wait_vm(self.stage_ids[i])]
        for u in range(4):
            for h in range(2):
                d = self.wreg(i, u) + 2 * h
                x = f"ds_read_b64_tr_b16 a[{d}:{d+1}], v{rb+u} offset:{off + 2048*h}"
                def f(x=x): self.rd_ids[i] = e(x)
                f.cost = [x]
                out.append(f)
        return out

    def a_load(self, n):
        e = self.e; aux = self.aux
        i, T = self.items[n]
        d = self.ring[n % self.NA]
        hi = 1 if T >= 4 else 0; off = (T - 4 * hi) * 1024
        out = []
        def Dm(x):
            def f(): self.a_ids[n] = e(x)
            f.cost = ['buffer_x']
            return f
        if i < NH:
            if T == 0 and i > 0: out.append(lambda: e(f"s_add_u32 s{sKA}, s{sKA}, {A2_STEP}"))
            out.append(Dm(f"buffer_load_dwordx4 v[{d}:{d+3}], v{self.vA+hi}, s[{SH}:{SH+3}], s{sKA} offen offset:{off} {aux}"))
        else:
            s = i - NH; so = sO0 + s
            if s != 2: out.append(Dm(f"buffer_load_dwordx4 v[{d}:{d+3}], v{self.vA+hi}, s[{SWS}:{SWS+3}], s{so} offen offset:{off} {aux}"))
            else:
                out.append(Dm(f"buffer_load_dwordx2 v[{d}:{d+1}], v{self.vA+2+hi}, s[{SWS}:{SWS+3}], s{so} offen offset:{off} {aux}"))
                out.append(Dm(f"buffer_load_dwordx2 v[{d+2}:{d+3}], v{self.vA+2+hi}, s[{SWS}:{SWS+3}], s{so} offen offset:{off+512} {aux}"))
        return out
    def first_loads(self, k=None):
        out = []
        k = self.NA if k is None else k
        while self.nload < k:
            out += self.a_load(self.nload); self.nload += 1
        return out

    def mainloop(self, n_read, n_dma, free_bases, extra=None):
        e = self.e; NT = self.NT; items = self.items; NA = self.NA
        sch = Sched(e)
        first = {}; last = {}
        for n, (i, T) in enumerate(items):
            r = self.ring[n % NA]
            for u in range(4):
                a = self.acc(T, u); w = self.wreg(i, u)
                c = f"v[{a}:{a+3}]" if i > 0 else "0"
                k = sch.main(f"v_mfma_f32_16x16x32_bf16 v[{a}:{a+3}], a[{w}:{w+3}], v[{r}:{r+3}], {c}")
                first.setdefault(n, k); last[n] = k
        nm = len(sch.mains)
        first_o = NH * NT
        step = [first[i * NT] for i in range(NH)] + [first[first_o]]
        otile = [first[first_o + 5 * T] for T in range(NT)] + [nm]
        self.step = step
        for n in range(self.nload, len(items)):
            g = last[n - NA] if n >= NA else -1
            if n == first_o:
                sch.add('a', self.poll_check(vPollO, 1), early=g, dead=g + 1)
                for T in range(NT):
                    x = f"buffer_load_dword v{self.vGm+T}, v{self.vGaddr}, s[{SWS}:{SWS+3}], 0 offen offset:{64*T} {self.aux}"
                    sch.add('a', x, early=g, dead=g + 2)
            if n == first_o - self.opt.get('pollead', 8): sch.add('a', self.poll_issue(vPollO), early=g, dead=g + 2)
            for fn in self.a_load(n): sch.add('a', fn, early=g, dead=g + 2)
        for n in range(1, len(items)):
            def w(n=n):
                if n in self.a_ids: e.wait_vm(self.a_ids[n])
            sch.add('aw', w, early=first[n] - 1, dead=first[n] - 1)
        free = list(free_bases); nd = n_dma; nr = n_read
        rem = NSL - n_read
        for i in range(NH - 1):
            want = min(NSL, n_read + -(-(i + 1) * rem // (NH - 2)), i + 16)
            l = []
            while nd < NSL and free:
                l += self.stage_dma(nd, free.pop(0)); nd += 1
            while nr < min(want, nd):
                l += self.stage_read(nr); free.append(self.base[nr]); nr += 1
            assert nr >= i + 2, (i, nr)
            span = step[i + 1] - step[i]
            for k, fn in enumerate(l):
                pos = step[i] + k * span // len(l)
                sch.add('stg', fn, early=pos, dead=min(pos + 2, step[i + 1] - 1))
        assert nr == NSL
        for T in range(NT):
            lo = last[(NH - 1) * NT + T] + 5
            if T > 0: lo = max(lo, otile[T - 1] + 1)
            hi = otile[T] - 2
            for k in range(16):
                pos = lo + k * (hi - lo + 1) // 16
                sch.add('sc', f"v_mul_f32 v{self.acc(T,0)+k}, v{self.vGm+T}, v{self.acc(T,0)+k}", early=pos, dead=min(pos + 1, hi))
        R = self.vR
        def writes(T):
            b = (T & 1) * 16384
            return [f"ds_write_b128 v{self.vRw + (u & 1)}, v[{self.acc(T,u)}:{self.acc(T,u)+3}] offset:{b + 128*(u>>1)}" for u in range(4)]
        def bar():
            e.wait_lg_all(); e("s_barrier")
        bar.cost = ['s_x', 's_barrier']
        def reduce_(T):
            b = (T & 1) * 16384
            l = [f"ds_read_b128 v[{R+4*w}:{R+4*w+3}], v{self.vRr} offset:{b + 4096*w}" for w in range(4)]
            add = [f"v_add_f32 v{R+k}, v{R+k}, v{R+4+k}" for k in range(4)] + [f"v_add_f32 v{R+8+k}, v{R+8+k}, v{R+12+k}" for k in range(4)]
            add += [f"v_add_f32 v{R+k}, v{R+k}, v{R+8+k}" for k in range(4)]
            add += [f"v_cvt_pk_bf16_f32 v{R}, v{R}, v{R+1}", f"v_cvt_pk_bf16_f32 v{R+1}, v{R+2}, v{R+3}"]
            if T > 0: add.append(f"v_add_u32 v{self.vO}, {16*1280}, v{self.vO}")
            add.append(f"buffer_store_dwordx2 v[{R}:{R+1}], v{self.vO}, s[{SOUT}:{SOUT+3}], 0 offen")
            return l, add
        sch.add('red', bar, early=otile[0] + 8, dead=otile[0] + 12)
        for T in range(1, NT):
            g = otile[T]
            if T >= 2:
                rd, add = reduce_(T - 2)
                for k, x in enumerate(rd): sch.add('red', x, early=g - 1 + k, dead=g + k)
            for k, x in enumerate(writes(T - 1)): sch.add('red', x, early=g + 4 + 2*k, dead=g + 5 + 2*k)
            if T >= 2:
                for k, x in enumerate(add): sch.add('red2', x, early=g + 6 + k * 11 // len(add), dead=g + 7 + k * 11 // len(add))
            sch.add('red', bar, early=g + 18, dead=g + 18)
        if self.tm.on:
            sch.add('ts', self.tm.stamp, early=step[7], dead=step[7]); sch.add('ts', self.tm.stamp, early=otile[0], dead=otile[0])
        if extra: extra(sch)
        sch.run(); self.over = sch.over
        self.tm.stamp()
        run = lambda l: [x() if callable(x) else e(x) for x in l]
        rd, add = reduce_(NT - 2)
        run(rd); run(add[:6]); run(writes(NT - 1)); run(add[6:]); bar()
        rd, add = reduce_(NT - 1)
        run(rd); run(add)
```

```python
class Item:
    __slots__ = ('fn', 'early', 'dead', 'cost', 'after', 'placed', 'name', 'seq', 'key')
    def __init__(self, fn, early=-1, dead=10**9, cost=1, after=(), name=''):
        self.fn = fn; self.early = early; self.dead = dead
        if isinstance(fn, str): cost = [fn.strip()]
        elif cost == 1: cost = getattr(fn, 'cost', ['s_x'])
        self.cost = cost
        self.after = [a for a in after if a is not None]; self.placed = None; self.name = name

def gap_time(lines):
    t = 4; prev = None
    for l in lines:
        op = l.split()[0]
        if op.startswith('ds_write'): k, c = 'x', 24
        elif op.startswith('ds_'): k, c = 't', (16 if (prev == 'b' and 'b128' in op) else 8)
        elif op.startswith(('buffer_', 'global_')): k, c = 'd', 12
        elif op.startswith('v_'):
            k = 'v'; c = 8 if (op.startswith(('v_exp', 'v_rcp', 'v_log', 'v_rsq')) or 'permlane' in op) else 4
            t = max(t, 8)
        elif op == 's_barrier': k, c = 'B', 12
        elif op == 's_nop': k, c = 's', 4 * (int(l.split()[1]) + 1) if False else 4
        else: k, c = 's', 4
        if prev in ('t', 'b') and k == 'd': t -= 4
        if prev == 'd' and k == 't': t -= 4
        t += c
        prev = 'b' if (k == 't' and 'b128' in op) else k
    return t
COST = {'t': 8, 'd': 12, 's': 4, 'v': 4, 'B': 12, 'x': 24}

class Sched:
    def __init__(self, e):
        self.e = e; self.streams = {}; self.mains = []; self.over = 0; self.order = []
    def main(self, x):
        self.mains.append(x); return len(self.mains) - 1
    def add(self, stream, fn, **kw):
        it = Item(fn, **kw); it.name = stream
        self.streams.setdefault(stream, []).append(it); return it
    def _run(self, x): return x() if callable(x) else self.e(x)
    @staticmethod
    def prio(it):
        op = it.cost[0].split()[0] if it.cost else 's'
        if any(c.startswith('s_barrier') for c in it.cost): return 0
        if op.startswith('ds_'): return 1
        if op.startswith(('buffer', 'global')): return 2
        if op.startswith('v_'): return 4
        return 3
    def lines(self, items):
        items = sorted(items, key=lambda it: (it.key, it.seq))
        return items
    def run(self):
        n = len(self.mains)
        gaps = {g: [] for g in range(-1, n)}
        seq = 0
        def put(it, g):
            it.placed = g; gaps[g].append(it)
        def cost(l):
            return max(16, gap_time([c for it in self.lines(l) for c in it.cost]))
        for k, l in self.streams.items():
            for it in l:
                seq += 1; it.seq = seq; it.key = self.prio(it)
                it.early = max(-1, min(it.early, n - 1)); it.dead = max(it.early, min(it.dead, n - 1))
        for k, l in self.streams.items():
            if all(it.early == it.dead for it in l):
                prev = None
                for it in l:
                    g = it.early
                    if prev is not None and g <= prev.placed:
                        g = prev.placed; it.key = max(it.key, prev.key)
                    put(it, g); prev = it
        for k, l in self.streams.items():
            if all(it.placed is not None for it in l): continue
            for i in range(len(l) - 2, -1, -1): l[i].dead = min(l[i].dead, l[i + 1].dead)
            prev = None
            for it in l:
                lo = it.early
                for a in it.after:
                    assert a.placed is not None; lo = max(lo, a.placed + 1)
                if prev is not None: lo = max(lo, prev.placed + getattr(it.fn, 'sep', 0))
                hi = max(lo, it.dead); hi = min(hi, n - 1); lo = min(lo, hi)
                best = None
                for g in range(lo, hi + 1):
                    k0 = it.key
                    if prev is not None and prev.placed == g: it.key = max(it.key, prev.key)
                    d = cost(gaps[g] + [it]) - cost(gaps[g])
                    it.key = k0
                    if best is None or d < best[0]: best = (d, g)
                g = best[1]
                if prev is not None and prev.placed == g: it.key = max(it.key, prev.key)
                put(it, g); prev = it
        self.hist = []
        for g in range(-1, n):
            if g >= 0: self._run(self.mains[g])
            n0 = len(self.e.out)
            for it in self.lines(gaps[g]): self._run(it.fn)
            gt = gap_time([x.strip() for x in self.e.out[n0:]])
            self.hist.append(gt)
            if 0 <= g < n - 1 and gt > 16: self.over += gt - 16
```

```python
import sys, json
from common import *
from p1 import P1
from p2 import P2, NSL

HDR = open('cdna_kernels/' + KN + '.s.ref').read().split('; Override launch')[0]
def srd(e, base, nbytes): e(f"s_mov_b32 s{base+2}, {nbytes}\ns_mov_b32 s{base+3}, 0x20000")
WB = lambda st: WOFF + (st % NWS) * WSLOT
XB = lambda k: XOFF + k * XSLOT

def entry(e, opt):
    e(f"s_cmp_ge_u32 s2, 256\ns_cbranch_scc1 L_done")
    for base, off in [(SX, 0), (SW, 8), (4, 32), (SWS, 72), (SGATE, 48), (SW2, 40), (SWO, 16), (SOUT, 56), (SDBG, 64)]:
        e(f"s_load_dwordx2 s[{base}:{base+1}], s[0:1], {off}")
    if opt.get('cpf', 1):
        e(f"""
        s_getpc_b64 s[6:7]
        s_lshr_b32 s3, s2, 3
        s_mul_i32 s3, s3, {opt['cpf_lines']*128}
        v_lshl_add_u32 v2, v0, 7, s3
        v_cmp_gt_u32 vcc, {opt['cpf_lines']}, v0
        s_and_saveexec_b64 s[{sT0}:{sT0+1}], vcc
        """)
        e.touch(f"global_load_dword v{vDUM}, v2, s[6:7]")
        e(f"s_mov_b64 exec, s[{sT0}:{sT0+1}]")
    e(f"""
    v_lshrrev_b32 v2, 6, v0
    v_and_b32 v1, 63, v0
    v_readfirstlane_b32 s{sWV}, v2
    s_and_b32 s{sT0}, s2, 7
    s_lshr_b32 s{sT1}, s2, 3
    s_lshr_b32 s{sRB}, s{sT0}, 2
    s_lshl_b32 s{sRB}, s{sRB}, 3
    s_and_b32 s{sT2}, s{sT1}, 7
    s_add_u32 s{sRB}, s{sRB}, s{sT2}
    s_and_b32 s{sC}, s{sT0}, 3
    s_lshl_b32 s{sC}, s{sC}, 1
    s_bfe_u32 s{sT2}, s{sT1}, 0x10003
    s_add_u32 s{sC}, s{sC}, s{sT2}
    s_lshr_b32 s{sROLE}, s{sT1}, 4
    """)
    e(f"""
    s_lshl_b32 s{sT0}, s{sROLE}, 4
    s_add_u32 s{sT0}, s{sT0}, s{sRB}
    s_lshl_b32 s{sT0}, s{sT0}, 3
    s_add_u32 s{sT0}, s{sT0}, s{sC}
    s_lshl_b32 s{sT0}, s{sT0}, 5
    s_add_u32 s{sT0}, s{sT0}, s{sWV}
    s_lshl_b32 s{sT0}, s{sT0}, 2
    s_add_u32 s{sT0}, s{sT0}, {FLAG_OFF}
    v_mov_b32 v{vFlag}, {OOB}
    v_mov_b32 v{vPD}, 0
    v_writelane_b32 v{vFlag}, s{sT0}, 0
    """)
    srd(e, SX, S*D*2); srd(e, SWS, WS_BYTES); srd(e, SGATE, 1280); srd(e, SW2, 1728*640*2); srd(e, SWO, 640*640*2)
    srd(e, SOUT, S*D*2); srd(e, SDBG, 256); srd(e, SH, 54*A2_STEP)
    e(f"s_mov_b32 s{SW+3}, 0x20000\ns_mov_b32 s{SPF+3}, 0x20000")

def pf_setup(e, p, role):
    T = p.vT; L = p.vLane
    e(f"""
    s_bfe_u32 s{sT0}, s2, 0x40003
    s_lshl_b32 s{sT0}, s{sT0}, 3
    s_and_b32 s{sT1}, s2, 7
    s_add_u32 s{sT0}, s{sT0}, s{sT1}
    v_mov_b32 v{T+3}, {OOB}
    """)
    if role == 'A':
        e(f"""
        s_lshl_b32 s{sT1}, s{sT0}, 4
        v_and_b32 v{T}, 15, v{L}
        v_add_u32 v{T}, s{sT1}, v{T}
        v_mul_u32_u24 v{T}, 1280, v{T}
        s_lshl_b32 s{sT1}, s{sWV}, 7
        v_add_u32 v{T+1}, s{sT1}, v{T}
        v_cmp_gt_u32 vcc, 16, v{L}
        v_cndmask_b32 v32, v{T+3}, v{T+1}, vcc
        v_lshrrev_b32 v{T+2}, 4, v{L}
        s_lshl_b32 s{sT1}, s{sWV}, 1
        s_add_u32 s{sT1}, s{sT1}, 4
        v_add_u32 v{T+2}, s{sT1}, v{T+2}
        v_lshl_add_u32 v{T+1}, v{T+2}, 7, v{T}
        s_cmp_lt_u32 s{sWV}, 3
        s_cselect_b32 s{sT1}, 32, 0
        v_cmp_gt_u32 vcc, s{sT1}, v{L}
        v_cndmask_b32 v33, v{T+3}, v{T+1}, vcc
        s_lshl_b32 s{sT0}, s{sT0}, 2
        s_add_u32 s{sT0}, s{sT0}, s{sWV}
        s_mul_i32 s{sT0}, s{sT0}, {13*128}
        v_lshl_add_u32 v{T+1}, v{L}, 7, s{sT0}
        v_cmp_gt_u32 vcc, 13, v{L}
        v_cndmask_b32 v{vPF}, v{T+3}, v{T+1}, vcc
        """)
    else:
        e(f"""
        s_lshl_b32 s{sT1}, s{sT0}, 2
        s_add_u32 s{sT1}, s{sT1}, s{sWV}
        s_mul_i32 s{sT1}, s{sT1}, {34*128}
        v_lshl_add_u32 v{T+1}, v{L}, 7, s{sT1}
        v_cmp_gt_u32 vcc, 34, v{L}
        v_cndmask_b32 v{vPF}, v{T+3}, v{T+1}, vcc
        s_cmp_lt_u32 s{sT0}, 64
        s_movk_i32 s{sT2}, 3456
        s_cselect_b32 s{sT2}, 3840, s{sT2}
        s_cselect_b32 s{sT3}, 30, 27
        s_and_b32 s{sT0}, s{sT0}, 63
        s_lshl_b32 s{sT1}, s{sT0}, 2
        s_add_u32 s{sT1}, s{sT1}, s{sWV}
        s_mul_i32 s{sT1}, s{sT1}, s{sT2}
        v_lshl_add_u32 v{T+1}, v{L}, 7, s{sT1}
        v_cmp_gt_u32 vcc, s{sT3}, v{L}
        v_cndmask_b32 v32, v{T+3}, v{T+1}, vcc
        s_mul_i32 s{sT0}, s{sT0}, 6
        s_lshl_b32 s{sT1}, s{sWV}, 1
        s_add_u32 s{sT0}, s{sT0}, s{sT1}
        s_add_u32 s{sT0}, s{sT0}, 256
        v_lshrrev_b32 v{T}, 5, v{L}
        v_add_u32 v{T}, s{sT0}, v{T}
        v_mul_u32_u24 v{T}, s{sT2}, v{T}
        v_and_b32 v{T+1}, 31, v{L}
        v_lshl_add_u32 v{T}, v{T+1}, 7, v{T}
        s_cmp_lt_u32 s{sWV}, 3
        s_cselect_b32 s{sT3}, s{sT3}, 0
        v_cmp_gt_u32 vcc, s{sT3}, v{T+1}
        v_cndmask_b32 v33, v{T+3}, v{T}, vcc
        """)
def pf_touch(e, v, srd_):
    def f(): e.touch(f"buffer_load_dword v{vDUM}, v{v}, s[{srd_}:{srd_+3}], 0 offen")
    f.cost = ['buffer_x']
    return f

def role_code(e, role, opt, tm):
    A = role == 'A'
    run = lambda l: [x() if callable(x) else e(x) for x in l]
    p = P1(e, role, opt); p.tm = tm
    q = P2(e, role, opt, tm)
    aux = opt.get('aux', 'sc1'); PF = opt.get('pf', 1)
    p.setup()
    if PF: pf_setup(e, p, role)
    if opt.get('ts2'): e("s_memtime s[96:97]")
    e.wait_lg_all()
    if opt.get('ts2'):
        e(f"v_writelane_b32 v{vTS}, s96, {tm.n}\nv_writelane_b32 v{vTS}, s96, {16+tm.n}\ns_mov_b32 s98, s4\ns_mov_b32 s99, s5"); tm.n += 1
        tm.stamp(); e("s_mov_b32 s4, s98\ns_mov_b32 s5, s99")
    e(f"s_mov_b32 s{SH}, s{SWS}\ns_mov_b32 s{SH+1}, s{SWS+1}")
    if A:
        e(f"s_mov_b32 s{SW+2}, {640*1920*2}\ns_mov_b32 s{SPF}, s{SX}\ns_mov_b32 s{SPF+1}, s{SX+1}\ns_mov_b32 s{SPF+2}, {S*D*2}")
    else:
        e(f"""
        s_bfe_u32 s{sT0}, s2, 0x40003
        s_cmp_lt_u32 s{sT0}, 8
        s_cselect_b32 s{SPF}, s{SW}, s4
        s_cselect_b32 s{SPF+1}, s{SW+1}, s5
        s_mov_b32 s{SPF+2}, {640*1728*2}
        s_cselect_b32 s{SPF+2}, {640*1920*2}, s{SPF+2}
        s_mov_b32 s{SW}, s4
        s_mov_b32 s{SW+1}, s5
        s_mov_b32 s{SW+2}, {640*1728*2}
        """)
    if PF: pf_touch(e, 32, SPF)()
    if PF == 2: pf_touch(e, 33, SPF)()
    e(f"buffer_store_dword v{vPD}, v{vFlag}, s[{SWS}:{SWS+3}], 0 offen sc1")
    p.prologue_dma()
    if PF == 1: pf_touch(e, 33, SPF)()
    if opt.get('ts2'): tm.stamp()
    p.setup_reads(); q.setup_early()
    T = p.vT
    if A:
        e(f"v_mov_b32 v34, v{q.vCnt}"); p.att_consts(); e(f"v_mov_b32 v{q.vCnt}, v34")
    e(f"""
    s_lshl_b32 s{sT0}, s{sRB}, 4
    s_cmp_eq_u32 s{sWV}, 0
    s_cselect_b32 s{sT0}, s{sT0}, {OOB}
    v_mov_b32 v{T}, {OOB}
    v_mov_b32 v{T+1}, 1
    v_writelane_b32 v{T}, s{sT0}, 0
    """)
    if opt.get('ts2'): tm.stamp()
    def extra(sch):
        sch.add('cnt', f"buffer_atomic_add v{T+1}, v{T}, s[{SDBG}:{SDBG+3}], 0 offen sc1", early=2, dead=6)
        g = p.step0[14]
        sch.add('cnt', q.poll_issue(q.vCnt, SDBG), early=g, dead=g + 6)
        g = p.step0[17]
        sch.add('cnt', q.poll_check(q.vCnt, 16, SDBG), early=g, dead=g + 6)
        if PF:
            st = opt.get('pf2', 5)
            sch.add('pf', pf_touch(e, vPF, SWO if A else SW2), early=p.step0[st] + 2, dead=p.step0[st] + 10)
        for k, (st, base) in enumerate([(17, E0), (17, WB(15)), (18, WB(16)), (19, WB(17))]):
            fns = q.stage_dma(k, base)
            lo = p.bpos[st] + 1; span = p.bpos[st + 1] - lo
            if st == 17: span //= 2; lo += span * k
            for j, fn in enumerate(fns):
                pos = lo + j * span // len(fns)
                sch.add('dma', fn, early=pos, dead=pos + 2, after=[p.bars[st]])
        if A:
            p.att_lastloop(sch)
            g = p.step0[19] + 24
            sch.add('cnt', q.poll_issue(vPollH), early=g, dead=g + 6)
    p.mainloop(extra); tm.stamp()
    if A:
        hooks = {}
        hooks['qk1'] = q.setup_tr2()
        hooks['bar'] = q.stage_dma(4, WB(18)) + q.stage_dma(5, WB(19)) + q.stage_dma(6, XB(0))
        h = []
        for i in range(4): h += q.stage_read(i)
        hooks['sm1'] = q.setup_late() + h
        h = []
        for i in range(4): h += q.stage_dma(7 + i, q.base[i])
        hooks['mid'] = [q.poll_check(vPollH, 1)] + q.first_loads(4)
        hooks['sm0'] = q.first_loads() + h
        p.epilogue_A(aux, hooks); tm.stamp()
        e(f"s_cmp_lg_u32 s{sOFF2}, 0\ns_cbranch_scc1 A_pub")
        snap = e.snapshot()
        def ex2(sch):
            g = opt.get('aflag', 24)
            sch.add('flag', q.set_flag(p.last_store), early=g, dead=g + 4)
        q.mainloop(4, 11, [], ex2)
    else:
        e("s_barrier")
        p.epilogue_F(aux); tm.stamp()
        run(q.setup_tr2())
        run(q.stage_dma(4, WB(18)) + q.stage_dma(5, WB(19)))
        run(q.setup_late())
        for i in range(4): run(q.stage_read(i))
        q.set_flag(p.last_store)(); tm.stamp()
        e(f"s_cmp_lg_u32 s{sOFF2}, 0\ns_cbranch_scc1 F_pub")
        snap = e.snapshot()
        free = [XB(0), XB(1)] + [q.base[i] for i in range(4)]
        nd = 6; nr = 4
        npoll = opt.get('npoll', 16)
        while nd < NSL:
            if nd == npoll: q.poll_issue(vPollH)()
            if not free:
                run(q.stage_read(nr)); free.append(q.base[nr]); nr += 1
            run(q.stage_dma(nd, free.pop(0))); nd += 1
        while nr < 12: run(q.stage_read(nr)); nr += 1
        q.poll_check(vPollH, 1)(); tm.stamp()
        weave(e, q.first_loads(), [x for i in range(12, 16) for x in q.stage_read(i)], start=8)
        q.mainloop(16, NSL, [])
    tm.stamp()
    if tm.on: e.wait_vm_all(); tm.stamp(); tm.flush()
    e("s_endpgm")
    e.restore(snap)
    e.raw(f"{role}_pub:")
    if A: q.set_flag(p.last_store)()
    tm.flush()
    e("s_endpgm")
    print(role, "over p1", p.over, "p2", q.over, file=sys.stderr)

def fused(opt):
    opt.setdefault('cpf_lines', 14)
    e = Emit(); k = KN + '_kernel'
    e.raw(kstart(k))
    tm = Stamps(e, opt.get('ts', 0)); tm.stamp()
    entry(e, opt)
    e(f"s_cmp_eq_u32 s{sROLE}, 0\ns_cbranch_scc0 L_F")
    snap = e.snapshot(); n0 = tm.n
    role_code(e, 'A', opt, tm)
    e.restore(snap); tm.n = n0
    e.raw("L_F:")
    role_code(e, 'F', opt, tm)
    e.raw("L_done:")
    e("s_endpgm")
    print(e.stats, "nops", e.nops, file=sys.stderr)
    txt = HDR + f"; @launch grid=(256,1,1) block=(256,1,1) lds={LDS_END}\n"
    txt += '.amdgcn_target "amdgcn-amd-amdhsa--gfx950"\n.text\n' + e.text()
    txt += f"; padding: the code prefetch above reads {32*opt['cpf_lines']*128} bytes from the entry\n.fill (({32*opt['cpf_lines']*128} + 512 - (. - {k})) / 4), 4, 0xbf810000\n" + kdesc(k)
    return txt

if __name__ == '__main__':
    opt = json.loads(sys.argv[2]) if len(sys.argv) > 2 else {}
    open(sys.argv[1], 'w').write(fused(opt))
```

```python
from emit import *
import struct
KN = 'gated_mix__sliding_local_dilated__dense_activation_relu__prompt'
S, D = 2048, 640
NSTEP2 = 74
A2_STEP = 128 * 1024
G_OFF = NSTEP2 * A2_STEP
FLAG_OFF = 0x980000
WS_BYTES = 268435456
WBLK = 1056; WSLOT = 16 * WBLK; NWS = 5
E0 = 0
WOFF = WSLOT
XOFF = WOFF + NWS * WSLOT; XSLOT = 144 * 128; NXS = 3
GOFF = XOFF + NXS * XSLOT
LDS_END = GOFF + 1280
OOB = 0x7ff00000
def f2h(x): return hex(struct.unpack('<I', struct.pack('<f', x))[0])

def kstart(name):
    return f".globl {name}\n.p2align 8\n.type {name},@function\n{name}:"
def kdesc(name, vgpr=512, accum=256, sgpr=102):
    return f""".section .rodata,"a"
.p2align 6
.amdhsa_kernel {name}
  .amdhsa_next_free_vgpr {vgpr}
  .amdhsa_next_free_sgpr {sgpr}
  .amdhsa_accum_offset {accum}
  .amdhsa_group_segment_fixed_size 0
  .amdhsa_kernarg_size 80
  .amdhsa_user_sgpr_count 2
  .amdhsa_user_sgpr_kernarg_segment_ptr 1
  .amdhsa_system_sgpr_workgroup_id_x 1
.end_amdhsa_kernel
.text
"""
SX, SW, SWS, SW2, SWO, SOUT, SGATE, SH, SDBG, SPF = 8, 12, 16, 20, 24, 28, 32, 36, 40, 44
sWV, sRB, sC, sROLE, sM0W, sM0X, sM0H, sKW, sKX, sKP, sDP, sROT = range(48, 60)
sT0, sT1, sT2, sT3 = 60, 61, 62, 63
sTOK, sCOL, sM2, sK2, sKA, sKO = range(64, 70)
sO0 = 70
sOFF2 = 75
sMASK = 76
sDW, sDX = 88, 91
sD2, sDA, sKB, sPO = 88, 89, 90, 91
sPG, sPS = 92, 93
vP = 92
vH, vY, vTr, vPollH, vPollO, vFlag, vPD, vDUM, vPF, vTS = 240, 244, 245, 249, 250, 251, 252, 253, 254, 255
sE = 94
def weave(e, main, side, start=0, end=None):
    end = len(main) if end is None else end
    run = lambda x: x() if callable(x) else e(x)
    k = 0; n = max(end - start, 1)
    for i, m in enumerate(main):
        run(m)
        if start <= i < end:
            tgt = (i - start + 1) * len(side) // n
            while k < tgt: run(side[k]); k += 1
    while k < len(side): run(side[k]); k += 1


STAMP_OFF = 0x1000000
class Stamps:
    def __init__(self, e, on):
        self.e = e; self.on = on; self.n = 0
    def stamp(self):
        if not self.on: return
        e = self.e
        assert self.n < 16
        e.wait_lg_all()
        e("s_memrealtime s[4:5]\ns_memtime s[6:7]")
        e.wait_lg_all()
        if self.n == 0: e(f"v_mov_b32 v{vTS}, 0")
        e(f"v_writelane_b32 v{vTS}, s4, {self.n}\nv_writelane_b32 v{vTS}, s6, {16+self.n}")
        self.n += 1
    def flush(self):
        if not self.on: return
        e = self.e
        e(f"""
        s_lshl_b32 s4, s2, 2
        s_add_u32 s4, s4, s{sWV}
        s_lshl_b32 s4, s4, 7
        s_add_u32 s4, s4, {STAMP_OFF}
        v_lshlrev_b32 v{vDUM}, 2, v1
        s_mov_b32 exec_hi, 0
        buffer_store_dword v{vTS}, v{vDUM}, s[{SWS}:{SWS+3}], s4 offen
        s_mov_b32 exec_hi, -1
        """)

def scc_groups(lines):
    out = []; i = 0
    while i < len(lines):
        x = lines[i]
        if x.startswith(('s_cmp', 's_bitcmp')):
            j = i; k = i + 1
            while k < len(lines) and not lines[k].startswith(('s_cmp', 's_bitcmp')):
                if lines[k].startswith('s_cselect'): j = k
                k += 1
            out.append(lines[i:j + 1]); i = j + 1
        else:
            out.append([x]); i += 1
    return out
```

```python
import re

REG_RE = re.compile(r'^(-|\|)?(v|a|s)(\d+|\[(\d+):(\d+)\])\|?$')

def regs_of(tok):
    tok = tok.strip()
    if tok.startswith('abs(') and tok.endswith(')'): tok = tok[4:-1]
    if tok.startswith('-abs(') and tok.endswith(')'): tok = tok[5:-1]
    if tok in ('vcc',): return [('s', 'vcc_lo'), ('s', 'vcc_hi')]
    if tok in ('vcc_lo', 'vcc_hi'): return [('s', tok)]
    if tok == 'exec': return [('s', 'exec_lo'), ('s', 'exec_hi')]
    if tok in ('exec_lo', 'exec_hi'): return [('s', tok)]
    if tok == 'm0': return [('s', 'm0')]
    m = REG_RE.match(tok)
    if not m: return []
    k = m.group(2)
    if m.group(4) is not None:
        return [(k, i) for i in range(int(m.group(4)), int(m.group(5)) + 1)]
    return [(k, int(m.group(3)))]

TRANS = ('v_exp_f32', 'v_log_f32', 'v_rcp_f32', 'v_rsq_f32', 'v_sqrt_f32', 'v_sin_f32', 'v_cos_f32', 'v_rcp_iflag_f32')
RMW = ('v_fmac_f32', 'v_dot2c_f32_bf16', 'v_pk_fmac')

class Inst:
    __slots__ = ('text', 'op', 'kind', 'rd', 'wr', 'passes', 'srcc', 'srcab', 'dpp', 'wide_store', 'data', 'id')
    def __init__(self, text):
        self.text = text
        t = text.split(';')[0].strip()
        parts = t.split(None, 1)
        op = parts[0]; self.op = op
        rest = parts[1] if len(parts) > 1 else ''
        ops = [x.strip() for x in rest.split(',')] if rest else []
        mods = ''
        if ops:
            last = ops[-1].split(None, 1)
            ops[-1] = last[0] if last else ''
            mods = last[1] if len(last) > 1 else ''
        self.rd, self.wr = set(), set()
        self.passes = 0; self.srcc = []; self.srcab = set(); self.dpp = ('_dpp' in op) or ('row_' in mods) or ('quad_perm' in rest)
        self.wide_store = False; self.data = set()
        R = lambda i: regs_of(ops[i]) if i < len(ops) else []
        allr = lambda a: [r for i in range(a, len(ops)) for r in R(i)]
        if op.startswith('v_mfma'):
            self.kind = 'mfma'
            self.wr = set(R(0)); self.srcab = set(R(1) + R(2)); self.srcc = R(3)
            self.rd = self.srcab | set(self.srcc)
            self.passes = 4 if ('16x16x32' in op or '16x16x16' in op) else 8
            assert any(s in op for s in ('16x16x32_bf16', '16x16x16_bf16', '16x16x4_4b_bf16', '32x32x16_bf16')), op
        elif op.startswith('v_'):
            self.kind = 'trans' if op.replace('_e32', '').replace('_e64', '') in TRANS else 'valu'
            if 'permlane' in op and 'swap' in op:
                self.wr = set(R(0) + R(1)); self.rd = set(R(0) + R(1))
            elif op.startswith('v_cmp'):
                self.wr = set(R(0)); self.rd = set(allr(1))
                if op.startswith('v_cmpx'): self.wr |= set(regs_of('exec'))
            elif op.startswith(('v_add_co', 'v_sub_co', 'v_addc_co', 'v_subb_co', 'v_mad_u64', 'v_div_scale')):
                self.wr = set(R(0) + R(1)); self.rd = set(allr(2))
            else:
                self.wr = set(R(0)); self.rd = set(allr(1))
                if op.startswith(RMW) or self.dpp or 'sdwa' in op or op.startswith('v_writelane'): self.rd |= set(R(0))
                if op.startswith('v_cndmask') and len(ops) == 3: self.rd |= set(regs_of('vcc'))
        elif op.startswith('ds_'):
            if op.startswith(('ds_read', 'ds_bpermute', 'ds_permute', 'ds_swizzle')):
                self.kind = 'ds_read'; self.wr = set(R(0)); self.rd = set(allr(1))
            else:
                self.kind = 'ds_write'; self.rd = set(allr(0))
        elif op.startswith(('buffer_', 'global_')):
            islds = (' lds' in ' ' + mods) or ('load_lds' in op)
            if op in ('buffer_wbl2', 'buffer_inv'):
                self.kind = 'vmem'
            elif 'load' in op and islds:
                self.kind = 'vmem'; self.rd = set(allr(0)) | {('s', 'm0')}
            elif 'load' in op:
                self.kind = 'vmem'; self.wr = set(R(0)); self.rd = set(allr(1))
            elif 'atomic' in op and 'sc0' in mods:
                self.kind = 'vmem'
                if op.startswith('global_'): self.wr = set(R(0)); self.rd = set(allr(1))
                else: self.wr = set(R(0)); self.rd = set(allr(0))
            else:
                self.kind = 'vmem'; self.rd = set(allr(0))
                if 'dwordx3' in op or 'dwordx4' in op:
                    self.wide_store = True
                    self.data = set(R(0)) if op.startswith('buffer_') else set(R(1))
        elif op.startswith('s_'):
            if op.startswith(('s_load', 's_buffer_load', 's_memtime', 's_memrealtime', 's_atomic')):
                self.kind = 'smem'; self.wr = set(R(0)); self.rd = set(allr(1))
            elif op.startswith(('s_cmp', 's_bitcmp')):
                self.kind = 'salu'; self.rd = set(allr(0))
            elif op.startswith(('s_waitcnt', 's_barrier', 's_nop', 's_sleep', 's_setprio', 's_endpgm', 's_branch', 's_cbranch')):
                self.kind = 'ctl'
            elif 'saveexec' in op:
                self.kind = 'salu'; self.wr = set(R(0) + regs_of('exec')); self.rd = set(allr(1) + regs_of('exec'))
            else:
                self.kind = 'salu'; self.wr = set(R(0)); self.rd = set(allr(1))
                if op.startswith(('s_addk', 's_mulk', 's_cmov')): self.rd |= self.wr
        else:
            raise ValueError('unknown instruction: ' + text)

    def states(self):
        if self.op == 's_nop': return int(self.text.split()[1].split(';')[0], 0) + 1
        return 1

class Emit:
    def __init__(self):
        self.out = []
        self.hist = []
        self.vm = []
        self.lg = []
        self.smem_pending = set()
        self.pend = {}
        self.nid = 0
        self.stats = {}
        self.nops = 0
        self.nbytes = 0
    def raw(self, s): self.out.append(s)
    def label(self, name, flush=True):
        if flush:
            self.drain_all()
            self._emit(Inst('s_nop 7')); self._emit(Inst('s_nop 4'))
        self.out.append(name + ':')
    def drain_all(self):
        if self.vm or self.lg or self.smem_pending:
            self._emit(Inst('s_waitcnt vmcnt(0) lgkmcnt(0)'))
        self.vm = []; self.lg = []; self.pend = {}; self.smem_pending = set()
    def _emit(self, ins):
        self.out.append('    ' + ins.text)
        self.hist.append(ins)
        if len(self.hist) > 40: self.hist.pop(0)
        self.stats[ins.kind] = self.stats.get(ins.kind, 0) + 1
    def _wait(self, vm_id=None, lg_id=None):
        parts = []
        if vm_id is not None and vm_id in self.vm:
            n = len(self.vm) - 1 - self.vm.index(vm_id)
            n = min(n, 63)
            done = self.vm[:len(self.vm) - n]; self.vm = self.vm[len(self.vm) - n:]
            parts.append(f'vmcnt({n})')
            ds = set(done); self.pend = {r: p for r, p in self.pend.items() if not (p[0] == 'vm' and p[1] in ds)}
        if lg_id is not None and lg_id in self.lg:
            n = len(self.lg) - 1 - self.lg.index(lg_id)
            n = min(n, 15)
            assert not self.smem_pending
            done = self.lg[:len(self.lg) - n]; self.lg = self.lg[len(self.lg) - n:]
            parts.append(f'lgkmcnt({n})')
            ds = set(done); self.pend = {r: p for r, p in self.pend.items() if not (p[0] == 'lg' and p[1] in ds)}
        if parts: self._emit(Inst('s_waitcnt ' + ' '.join(parts)))
    def wait_vm(self, i): self._wait(vm_id=i)
    def wait_lg(self, i): self._wait(lg_id=i)
    def wait_vm_all(self):
        if self.vm: self._wait(vm_id=self.vm[-1])
    def wait_lg_all(self):
        if self.smem_pending:
            self._emit(Inst('s_waitcnt lgkmcnt(0)')); self.smem_pending = set()
            self.lg = []; self.pend = {r: p for r, p in self.pend.items() if p[0] != 'lg'}
        elif self.lg: self._wait(lg_id=self.lg[-1])
    def _need(self, ins):
        need = 0; dist = 0
        isv = lambda s: {r for r in s if r[0] in 'va'}
        iss = lambda s: {r for r in s if r[0] == 's'}
        valu = ins.kind in ('valu', 'trans')
        for p in reversed(self.hist):
            req = 0
            pv = p.kind in ('valu', 'trans')
            if p.kind == 'mfma':
                big = {4: 8, 8: 12}[p.passes]
                if ins.kind == 'mfma':
                    if p.wr & ins.srcab: req = max(req, big)
                    if p.wr & set(ins.srcc):
                        if not (p.wr == set(ins.srcc) and p.passes == ins.passes): req = max(req, {4: 6, 8: 10}[p.passes])
                    elif p.wr & ins.wr:
                        req = max(req, big)
                elif valu or ins.kind in ('vmem', 'ds_read', 'ds_write'):
                    if p.wr & (ins.rd | ins.wr): req = max(req, big)
                if valu and set(p.srcc) & ins.wr: req = max(req, {4: 3, 8: 7}[p.passes])
                if ins.kind in ('vmem', 'ds_read') and set(p.srcc) & ins.wr: req = max(req, {4: 3, 8: 7}[p.passes])
            if pv:
                wv = isv(p.wr); ws = iss(p.wr)
                if ins.kind == 'mfma' and wv & ins.rd: req = max(req, 2)
                if valu and ws & ins.rd: req = max(req, 2)
                if ins.kind == 'vmem' and ws & ins.rd: req = max(req, 5)
                if ins.kind == 'salu' and ws & ins.rd: req = max(req, 1)
                if ins.op.startswith(('v_readfirstlane', 'v_readlane')) and wv & ins.rd: req = max(req, 1)
                if ins.op.startswith(('v_readlane', 'v_writelane')) and ws & ins.rd: req = max(req, 4)
                if valu and ins.dpp and wv & ins.rd: req = max(req, 2)
                if 'permlane' in ins.op and wv & ins.rd: req = max(req, 2)
                if p.kind == 'trans' and ins.kind == 'valu' and wv & ins.rd: req = max(req, 1)
                if ('s', 'exec_lo') in ws:
                    if ins.kind == 'mfma' or 'permlane' in ins.op or ins.op.startswith(('v_readfirstlane', 'v_readlane', 'v_writelane')): req = max(req, 4)
                    if valu and ins.dpp: req = max(req, 5)
                if ('sdwa' in p.op or 'op_sel' in p.text) and valu and wv & (ins.rd | ins.wr): req = max(req, 1)
            if p.wide_store and p.data & ins.wr: req = max(req, 2 if valu else 1)
            if p.kind == 'salu' and ('s', 'm0') in p.wr and ins.kind == 'vmem' and ('s', 'm0') in ins.rd: req = max(req, 1)
            need = max(need, req - dist)
            dist += p.states()
            if dist >= 12: break
        return need
    def __call__(self, text):
        ids = None
        for line in text.strip('\n').split('\n'):
            line = line.strip()
            if not line or line.startswith(';'): continue
            ids = self.one(line)
        return ids
    def touch(self, line):
        ins = Inst(line); w = ins.wr
        for r in w: assert r not in self.pend
        i = self.one(line)
        for r in w: self.pend.pop(r, None)
        return i
    def one(self, line):
        ins = Inst(line)
        touched = ins.rd | ins.wr
        if self.smem_pending & touched: self.wait_lg_all()
        vm_id = lg_id = None
        for r in touched:
            p = self.pend.get(r)
            if p:
                if p[0] == 'vm':
                    if vm_id is None or self.vm.index(p[1]) > self.vm.index(vm_id): vm_id = p[1]
                else:
                    if lg_id is None or self.lg.index(p[1]) > self.lg.index(lg_id): lg_id = p[1]
        if vm_id is not None or lg_id is not None: self._wait(vm_id, lg_id)
        n = self._need(ins)
        while n > 0:
            k = min(n, 16)
            self._emit(Inst(f's_nop {k-1}')); self.nops += k; n -= k
        self._emit(ins)
        self.nid += 1; ins.id = self.nid
        if ins.kind == 'vmem':
            self.vm.append(ins.id)
            for r in ins.wr: self.pend[r] = ('vm', ins.id)
        elif ins.kind in ('ds_read', 'ds_write'):
            self.lg.append(ins.id)
            for r in ins.wr: self.pend[r] = ('lg', ins.id)
        elif ins.kind == 'smem':
            self.smem_pending |= ins.wr
            if not ins.wr: self.smem_pending.add(('x', 0))
        elif ins.op == 's_waitcnt':
            raise ValueError('use wait_* helpers')
        return ins.id
    def capture(self, fn):
        rec = []
        orig = self.one
        self.one = lambda line: rec.append(line)
        try: fn()
        finally: del self.one
        return rec
    def text(self): return '\n'.join(self.out) + '\n'
    def snapshot(self):
        return (list(self.hist), list(self.vm), list(self.lg), set(self.smem_pending), dict(self.pend))
    def restore(self, s):
        self.hist, self.vm, self.lg, self.smem_pending, self.pend = list(s[0]), list(s[1]), list(s[2]), set(s[3]), dict(s[4])

def interleave(e, mains, fills):
    def run(x):
        return x() if callable(x) else e(x)
    for x in fills.get(-1, []): run(x)
    for i, m in enumerate(mains):
        run(m)
        for x in fills.get(i, []): run(x)
```

```python
from common import *
from sched import *

class P1:
    def __init__(self, e, role, opt):
        self.e = e; self.role = role; self.opt = opt
        A = role == 'A'
        self.pitch = 3840 if A else 3456
        v = 1
        self.vLane = v; v += 1
        self.vDw = v; v += 4
        self.vDx = v; v += 4
        self.vDh = v; v += 1
        self.vXo = v; v += 2
        self.vXh = v; v += 2
        self.vG = v; v += 1
        self.vWb = v; v += 8
        self.vT = v; v += 8
        assert v <= 32
        self.vXF = 32
        self.vWF = 64
        self.NF = opt.get('nf', 7) if A else opt.get('nfF', 5)
        self.vAcc = self.vWF + 4 * 8
        if A:
            b = self.vAcc
            self.accQ = lambda T, t: b + 20 * T + 4 * t
            self.accK = lambda T, t: b + 40 + 20 * T + 4 * t
            self.accV = lambda T, u: b + 80 + 20 * T + 4 * u
            self.hK, self.hV, self.hK4, self.hV4 = b + 120, b + 124, b + 128, b + 132
            self.accG = lambda T: b + 136 + 4 * T
            self.nacc = 144
        else:
            self.accF = lambda T, t: self.vAcc + 28 * T + 4 * t
            self.nacc = 112
        self.dma_ids = {}

    def setup(self):
        e = self.e; A = self.role == 'A'; T = self.vT; L = self.vLane
        self.rots = rots = self.opt.get('rots', [0])
        n = len(rots)
        if n > 1:
            e(f"s_and_b32 s{sT0}, s{sC}, 1")
            if n == 4: e(f"s_lshl_b32 s{sT0}, s{sT0}, 1\ns_add_u32 s{sT0}, s{sT0}, s{sROLE}")
            e(f"s_add_u32 s{sT0}, s{sT0}, s{sRB}\ns_and_b32 s{sT0}, s{sT0}, {n-1}\ns_mov_b32 s{sROT}, 0")
            for i, r in enumerate(rots[1:]):
                e(f"""
                s_cmp_eq_u32 s{sT0}, {i+1}
                s_cselect_b32 s{sROT}, {r}, s{sROT}
                s_cselect_b32 s{sDW+i}, {-19*32*self.pitch}, {32*self.pitch}
                s_cselect_b32 s{sDX+i}, {-9*128}, 128
                """.replace(f"s_cselect_b32 s{sDW+i}, {-19*32*self.pitch}, {32*self.pitch}", f"s_mov_b32 s{sT1}, {32*self.pitch}\ns_cselect_b32 s{sDW+i}, {-19*32*self.pitch}, s{sT1}").replace(f"s_cselect_b32 s{sDX+i}, {-9*128}, 128", f"s_movk_i32 s{sT1}, 128\ns_cselect_b32 s{sDX+i}, {-9*128}, s{sT1}"))
        if A:
            e(f"""
            s_lshl_b32 s{sM0H}, s{sWV}, 9
            s_add_u32 s{sM0H}, s{sM0H}, {XOFF}
            s_lshl_b32 s{sT1}, s{sWV}, 2
            v_lshrrev_b32 v{T}, 3, v{L}
            v_and_b32 v{T+2}, 7, v{L}
            v_add_u32 v{T+4}, s{sT1}, v{T}
            v_bfe_u32 v{T+5}, v{T+4}, 1, 3
            v_xor_b32 v{T+5}, v{T+5}, v{T+2}
            s_lshl_b32 s{sT0}, s{sRB}, 7
            s_sub_u32 s{sT0}, s{sT0}, 16
            v_add_u32 v{T+4}, s{sT0}, v{T+4}
            v_max_i32 v{T+4}, 0, v{T+4}
            v_mul_u32_u24 v{T+4}, 1280, v{T+4}
            v_lshl_add_u32 v{self.vDh}, v{T+5}, 4, v{T+4}
            """)

    def setup_first(self):
        e = self.e; T = self.vT; L = self.vLane
        e(f"""
        s_lshl_b32 s{sT0}, s{sRB}, 2
        s_add_u32 s{sT0}, s{sT0}, s{sWV}
        s_mul_i32 s{sT0}, s{sT0}, {32*1280}
        v_lshrrev_b32 v{T}, 3, v{L}
        v_and_b32 v{T+2}, 7, v{L}
        v_lshrrev_b32 v{T+3}, 4, v{L}
        v_mul_u32_u24 v{T+1}, 1280, v{T}
        v_xor_b32 v{T+4}, v{T+2}, v{T+3}
        v_add_u32 v{T+1}, s{sT0}, v{T+1}
        v_xor_b32 v{T+5}, 4, v{T+4}
        s_cmp_eq_u32 s{sROLE}, 0
        s_cselect_b32 s{sT0}, 69, 64
        s_cselect_b32 s{sT1}, 30, 32
        s_cselect_b32 s{sT2}, 205, 0
        s_movk_i32 s{sT3}, 3456
        s_cselect_b32 s{sKP}, 3840, s{sT3}
        s_movk_i32 s{sT3}, 448
        s_cselect_b32 s{sT3}, 160, s{sT3}
        v_lshl_add_u32 v{self.vDx}, v{T+4}, 4, v{T+1}
        v_lshl_add_u32 v{self.vDx+1}, v{T+5}, 4, v{T+1}
        v_mul_u32_u24 v{T}, s{sT0}, v{L}
        v_add_u32 v{self.vDx+1}, {8*1280-1024}, v{self.vDx+1}
        v_lshrrev_b32 v{T}, 11, v{T}
        v_add_u32 v{self.vDx+2}, {16*1280-2048}, v{self.vDx}
        v_mul_u32_u24 v{T+1}, s{sT1}, v{T}
        v_add_u32 v{self.vDx+3}, {16*1280-2048}, v{self.vDx+1}
        v_sub_u32 v{T+1}, v{L}, v{T+1}
        s_mul_i32 s{sT3}, s{sT3}, s{sC}
        v_mul_u32_u24 v{T+2}, s{sT2}, v{T+1}
        s_mul_i32 s{sT0}, s{sKP}, s{sWV}
        v_lshrrev_b32 v{T+2}, 11, v{T+2}
        s_lshl_b32 s{sT0}, s{sT0}, 3
        v_mad_i32_i24 v{T+1}, v{T+2}, -10, v{T+1}
        s_add_u32 s{sT0}, s{sT0}, s{sT3}
        v_mul_u32_u24 v{T+2}, 1280, v{T+2}
        s_lshl_b32 s{sT1}, s{sKP}, 2
        v_lshl_add_u32 v{T+2}, v{T+1}, 4, v{T+2}
        v_mul_u32_u24 v{T+3}, s{sT1}, v{T}
        v_lshrrev_b32 v{T}, 1, v{T}
        v_add3_u32 v{T+2}, v{T+2}, v{T+3}, s{sT0}
        v_lshl_add_u32 v{T}, v{T}, 5, v{T+1}
        v_mov_b32 v{T+3}, {OOB}
        v_cmp_gt_u32 vcc, 28, v{T}
        s_sub_u32 s{sT0}, s{sKP}, {WBLK}
        s_mul_i32 s{sM2}, s{sWV}, {4*WBLK}
        v_cndmask_b32 v{self.vDw}, v{T+3}, v{T+2}, vcc
        s_add_u32 s{sM0W}, s{sM2}, {WOFF}
        v_add_u32 v{self.vDw+1}, s{sT0}, v{self.vDw}
        s_lshl_b32 s{sM0X}, s{sWV}, 12
        v_add_u32 v{self.vDw+2}, s{sT0}, v{self.vDw+1}
        s_add_u32 s{sM0X}, s{sM0X}, {XOFF + 2048}
        v_add_u32 v{self.vDw+3}, s{sT0}, v{self.vDw+2}
        """)

    def setup_reads(self):
        e = self.e; A = self.role == 'A'; T = self.vT; L = self.vLane
        if not A: e(f"s_lshr_b32 s{sT0}, s{sWV}, 1\ns_lshl_b32 s{sT0}, s{sT0}, 13\ns_add_u32 s{sT0}, s{sT0}, {XOFF+2048}")
        e(f"""
        v_and_b32 v{T}, 15, v{L}
        v_lshrrev_b32 v{T+1}, 4, v{L}
        v_lshrrev_b32 v{T+2}, 1, v{T}
        v_xor_b32 v{T+2}, v{T+2}, v{T+1}
        v_lshlrev_b32 v{T+2}, 4, v{T+2}
        v_lshl_add_u32 v{T+2}, v{T}, 7, v{T+2}
        v_add_u32 v{self.vXh}, {XOFF}, v{T+2}
        v_xor_b32 v{T+3}, 64, v{T+2}
        v_add_u32 v{self.vXh+1}, {XOFF}, v{T+3}
        v_add_u32 v{self.vXo}, s{sM0X if A else sT0}, v{T+2}
        v_add_u32 v{self.vXo+1}, s{sM0X if A else sT0}, v{T+3}
        v_lshlrev_b32 v{self.vG}, 4, v{T+1}
        v_add_u32 v{self.vG}, {GOFF}, v{self.vG}
        v_lshrrev_b32 v{T+4}, 2, v{L}
        v_mul_u32_u24 v{T+4}, {WBLK}, v{T+4}
        v_add_u32 v{T+4}, {WOFF}, v{T+4}
        v_and_b32 v{T+5}, 3, v{L}
        v_lshl_add_u32 v{self.vWb+2}, v{T+5}, 3, v{T+4}
        v_add_u32 v{self.vWb+3}, {3*WSLOT}, v{self.vWb+2}
        """)
        if A:
            e(f"""
            v_mul_u32_u24 v{T+5}, 40, v{T+5}
            v_add_u32 v{self.vWb}, v{T+5}, v{T+4}
            v_add_u32 v{self.vWb+1}, {3*WSLOT}, v{self.vWb}
            s_lshl_b32 s{sT0}, s{sWV}, 3
            v_add_u32 v{self.vWb+4}, s{sT0}, v{self.vWb}
            v_add_u32 v{self.vWb+5}, s{sT0}, v{self.vWb+1}
            s_mul_i32 s{sT0}, s{sWV}, 40
            v_add_u32 v{self.vWb+6}, s{sT0}, v{self.vWb+2}
            v_add_u32 v{self.vWb+7}, s{sT0}, v{self.vWb+3}
            """)
        else:
            e(f"""
            s_and_b32 s{sT0}, s{sWV}, 1
            s_lshl_b32 s{sT1}, s{sT0}, 5
            s_add_u32 s{sT1}, s{sT1}, 192
            v_add_u32 v{self.vWb}, s{sT1}, v{self.vWb+2}
            v_add_u32 v{self.vWb+1}, s{sT1}, v{self.vWb+3}
            s_lshl_b32 s{sT1}, s{sT0}, 8
            v_add_u32 v{self.vWb+2}, s{sT1}, v{self.vWb+2}
            v_add_u32 v{self.vWb+3}, s{sT1}, v{self.vWb+3}
            """)

    def dma_w(self, st):
        e = self.e; out = []
        slot = st % NWS
        out.append(lambda: e(f"s_add_u32 m0, s{sM0W}, {slot*WSLOT}"))
        def first():
            wr = [i for i, r in enumerate(self.rots[1:]) if 20 - r == st]
            if st == 0: e(f"s_mul_i32 s{sKW}, s{sROT}, {32*self.pitch}" if len(self.rots) > 1 else f"s_mov_b32 s{sKW}, 0")
            elif wr: e(f"s_add_u32 s{sKW}, s{sKW}, s{sDW+wr[0]}")
            elif self.opt.get('kfix'): e(f"s_mov_b32 s{sKW}, {(st % self.opt['kfix'])*32*self.pitch}")
            else: e(f"s_add_u32 s{sKW}, s{sKW}, {32*self.pitch}")
        out.append(first)
        for p in range(4):
            def f(p=p):
                if self.opt.get('now') and st > 1: self.dma_ids[('w', st)] = -1; return
                self.dma_ids[('w', st)] = e(f"buffer_load_dwordx4 v{self.vDw+p}, s[{SW}:{SW+3}], s{sKW} offen offset:{p*WBLK} lds")
            f.dma = 1; f.cost = ['buffer_x']
            out.append(f)
        return out
    def x_m0(self, a):
        return lambda: self.e(f"s_add_u32 m0, s{sM0X}, {(a % NXS)*XSLOT}")
    def dma_x(self, a):
        e = self.e; out = []
        slot = a % NXS
        out.append(lambda: e(f"s_add_u32 m0, s{sM0X}, {slot*XSLOT}"))
        def first():
            wr = [i for i, r in enumerate(self.rots[1:]) if 20 - r == 2 * a]
            if a == 0: e(f"s_lshl_b32 s{sKX}, s{sROT}, 6" if len(self.rots) > 1 else f"s_mov_b32 s{sKX}, 0")
            elif wr: e(f"s_add_u32 s{sKX}, s{sKX}, s{sDX+wr[0]}")
            elif self.opt.get('kfix'): e(f"s_mov_b32 s{sKX}, {(a % (self.opt['kfix']//2))*128}")
            else: e(f"s_add_u32 s{sKX}, s{sKX}, 128")
        out.append(first)
        for p in range(4):
            def f(p=p):
                if self.opt.get('nox') and a > 0: self.dma_ids[('x', a)] = -1; return
                self.dma_ids[('x', a)] = e(f"buffer_load_dwordx4 v{self.vDx+p}, s[{SX}:{SX+3}], s{sKX} offen offset:{p*1024} lds")
            f.dma = 1; f.cost = ['buffer_x']
            out.append(f)
        if self.role == 'A':
            out.append(lambda: e(f"s_add_u32 m0, s{sM0H}, {slot*XSLOT}"))
            def h():
                e(f"s_mov_b32 exec_hi, 0")
                self.dma_ids[('x', a)] = e(f"buffer_load_dwordx4 v{self.vDh}, s[{SX}:{SX+3}], s{sKX} offen lds")
                e(f"s_mov_b32 exec_hi, -1")
            h.cost = ['s_x', 'buffer_x', 's_x']; h.dma = 1
            out.append(h)
        return out

    def frags(self):
        fr = []
        if self.role == 'A':
            for t in range(5): fr.append((0, 8*t, [('WX', self.accQ(0, t), 0), ('WX', self.accQ(1, t), 1)]))
            for t in range(5):
                m = [('WX', self.accK(0, t), 0), ('WX', self.accK(1, t), 1)]
                if t == 4: m.append(('WX', self.hK4, 2))
                fr.append((0, 160 + 8*t, m))
            for u in range(5):
                m = [('XW', self.accV(0, u), 0), ('XW', self.accV(1, u), 1)]
                if u == 4: m.append(('XW', self.hV4, 2))
                if u < 4: fr.append((2, 320 + 40*u, m))
                else: fr.append((0, 320 + 32, m))
            fr.append((4, 160, [('WX', self.hK, 2), ('GX', self.accG(0), 0)]))
            fr.append((6, 320, [('XW', self.hV, 2), ('GX', self.accG(1), 1)]))
            self.hstride = 480
        else:
            for t in range(7): fr.append((2 if t < 6 else 0, 32*t if t < 6 else 0, [('WX', self.accF(Tt, t), Tt) for Tt in range(4)]))
            self.hstride = 512
        return fr
    def read_frag(self, gf):
        e = self.e
        fr = self.fr; st, f = divmod(gf, len(fr))
        pat, off, _ = fr[f]
        slot = st % NWS
        base = self.vWb + pat + (1 if slot >= 3 else 0)
        o = (slot - (3 if slot >= 3 else 0)) * WSLOT + off
        d = self.vWF + 4 * (gf % self.NF)
        return [f"ds_read_b64_tr_b16 v[{d}:{d+1}], v{base} offset:{o}",
                f"ds_read_b64_tr_b16 v[{d+2}:{d+3}], v{base} offset:{o+self.hstride}"]
    def read_x(self, st):
        a, kk = divmod(st, 2); slot = a % NXS
        b = self.vXF + 16 * (st & 1)
        out = [f"ds_read_b128 v[{b}:{b+3}], v{self.vXo+kk} offset:{slot*XSLOT}",
               f"ds_read_b128 v[{b+4}:{b+7}], v{self.vXo+kk} offset:{slot*XSLOT+2048}"]
        if self.role == 'A':
            out += [f"ds_read_b128 v[{b+8}:{b+11}], v{self.vXh+kk} offset:{slot*XSLOT}",
                    f"ds_read_b128 v[{b+12}:{b+15}], v{self.vG} offset:{st*64}"]
        else:
            out += [f"ds_read_b128 v[{b+8}:{b+11}], v{self.vXo+kk} offset:{slot*XSLOT+4096}",
                    f"ds_read_b128 v[{b+12}:{b+15}], v{self.vXo+kk} offset:{slot*XSLOT+6144}"]
        return out
    def mfma(self, st, gf, spec):
        kind, acc, xi = spec
        w = self.vWF + 4 * (gf % self.NF); x = self.vXF + 16 * (st & 1) + 4 * xi
        if kind == 'GX': w = self.vXF + 16 * (st & 1) + 12
        a, b = (x, w) if kind == 'XW' else (w, x)
        c = f"v[{acc}:{acc+3}]" if st > 0 else "0"
        return f"v_mfma_f32_16x16x32_bf16 v[{acc}:{acc+3}], v[{a}:{a+3}], v[{b}:{b+3}], {c}"

    def barrier_for(self, st):
        e = self.e
        ids = [self.dma_ids[('w', st)]]
        if st % 2 == 0: ids.append(self.dma_ids[('x', st // 2)])
        live = [i for i in ids if i in e.vm]
        if live: e.wait_vm(max(live, key=e.vm.index))
        if not (self.opt.get('nobar') and st > 0): e("s_barrier")

    def prologue_dma(self):
        e = self.e
        if self.role == 'A':
            T = self.vT
            e(f"""
            s_mul_i32 s{sT0}, s{sWV}, 320
            s_add_u32 m0, s{sT0}, {GOFF}
            v_lshl_add_u32 v{T}, v{self.vLane}, 4, s{sT0}
            """)
            if len(self.rots) > 1:
                e(f"""
                s_lshl_b32 s{sT1}, s{sROT}, 6
                v_add_u32 v{T}, s{sT1}, v{T}
                v_subrev_u32 v{T+1}, 1280, v{T}
                v_min_u32 v{T}, v{T}, v{T+1}
                """)
            e(f"""
            s_mov_b64 exec, 0xfffff
            buffer_load_dwordx4 v{T}, s[{SGATE}:{SGATE+3}], 0 offen lds
            s_mov_b64 exec, -1
            """)
            for f in self.dma_x(0)[6:]: f()
        self.halo_id = e.vm[-1]
        self.dma_ids[('w', 0)] = self.dma_ids[('x', 0)] = e.first_id
        self.pre_issued = [('x', 0), ('w', 0), ('w', 1), ('x', 1), ('w', 2), ('w', 3), ('x', 2), ('w', 4)][:self.opt.get('npre', 2)]
    def prologue_dma2(self):
        for item in self.pre_issued[2:]:
            for f in (self.dma_x if item[0] == 'x' else self.dma_w)(item[1]): f()

    def mainloop(self, extra=None):
        e = self.e; opt = self.opt
        self.fr = fr = self.frags(); nf = len(fr); NF = self.NF
        NST = 20
        sch = Sched(e)
        first = {}; last = {}
        for st in range(NST):
            for f in range(nf):
                gf = st * nf + f
                for spec in fr[f][2]:
                    i = sch.main(self.mfma(st, gf, spec) if not opt.get('nomfma') else (lambda: None))
                    first.setdefault(gf, i); last[gf] = i
        step0 = [first[st * nf] for st in range(NST)] + [len(sch.mains)]
        self.step0 = step0
        lead = opt.get('lead', 9) if self.role == 'A' else opt.get('leadF', 12)
        ids = {}
        bars = {}
        self.barrier_for(0); self.tm.stamp()
        bpos = [-2] + [step0[st] - lead - 1 for st in range(1, NST)] + [step0[NST] - lead - 1]
        if self.role == 'A':
            def b0(): e.wait_vm(self.halo_id); e("s_barrier")
            sch.add('bar', b0, early=8, dead=8, cost=['s_x', 's_barrier'])
        for st in range(1, NST):
            def b(st=st): self.barrier_for(st)
            bars[st] = sch.add('bar', b, early=bpos[st], dead=bpos[st], cost=['s_x', 's_barrier'])
        self.bars = bars; self.bpos = bpos
        for st in range(NST):
            xr = self.read_x(st)
            l = []
            for f in range(nf):
                gf = st * nf + f
                rf = [(x, gf) for x in self.read_frag(gf)]
                l += rf if f else [rf[0], (xr[0], None), rf[1], (xr[1], None)]
                fx = (4, 8) if st else (9, 11)
                if self.role == 'A' and f in fx: l.append((xr[2 + (f == fx[1])], 'late' if st == 0 else None))
                if self.role == 'F' and f == 0: l += [(xr[2], None), (xr[3], None)]
            lo = bpos[st] + 1; G = bpos[st + 1] - lo
            if st == 0: lo = -lead; G = bpos[1] - lo
            for k, (x, gf) in enumerate(l):
                g = max(-1, lo + k * G // len(l))
                if gf == 'late': assert g > 8; gf = None
                if gf is not None and gf >= NF: assert g >= last[gf - NF], (st, gf, g, last[gf - NF])
                if gf is not None: assert g < first[gf] - 2 or st == 0, (st, gf, g, first[gf])
                def r(x=x, gf=gf):
                    if not opt.get('nomfma'): ids[gf] = e(x)
                sch.add('rd', r, early=g, dead=g, cost=[x])
        WG = opt.get('wg', 2) if self.role == 'A' else 1
        ng = NST * nf
        for gf in range(0, ng, WG):
            tgt = min(gf + WG - 1, ng - 1)
            def w(tgt=tgt):
                if tgt in ids: e.wait_lg(ids[tgt])
            if gf > 0: sch.add('wait', w, early=first[gf] - 2, dead=first[gf] - 1)
        pre = self.pre_issued
        per = [[] for _ in range(NST)]
        xsplit = {}
        for st in range(NST):
            l = []
            for s2 in range(NST):
                if ('w', s2) not in pre and max(s2 - 3, 0) == st: l.append((s2, self.dma_w(s2)))
            for a in range(10):
                if ('x', a) in pre: continue
                st0 = max(2 * (a - 2), 0)
                if st0 == st:
                    fns = self.dma_x(a)
                    if a >= 3 and opt.get('xsplit', 1):
                        l.append((2 * a - 0.5, fns[:5])); xsplit[st + 1] = (2 * a - 0.5, [self.x_m0(a)] + fns[5:])
                    else: l.append((2 * a - 0.5, fns))
            if st in xsplit: l.append(xsplit[st])
            l.sort(key=lambda t: t[0])
            for _, fns in l: per[st] += fns
        for st in range(NST):
            fns = per[st]
            nd = sum(1 for f in fns if getattr(f, 'dma', 0))
            b0 = max(bpos[st], -1)
            k = 0; span = bpos[st + 1] - b0 - 1
            for fn in fns:
                pos = b0 + 1 + int((k + opt.get('dph', 0.3)) * span / max(nd, 1))
                if getattr(fn, 'dma', 0): k += 1; fn.sep = 1
                else: pos -= 3
                if opt.get('nodma') and getattr(fn, 'dma', 0):
                    for q in range(20): self.dma_ids.setdefault(('w', q), -1); self.dma_ids.setdefault(('x', q), -1)
                    continue
                sch.add('dma', fn, early=pos, dead=min(pos + opt.get('dslack', 2), bpos[st + 1] - 1), after=[bars.get(st)])
        if self.tm.on and not opt.get('ts2'):
            for st in opt.get('tsst', (5, 10)): sch.add('ts', self.tm.stamp, early=step0[st], dead=step0[st])
        if extra: extra(sch)
        sch.run()
        self.over = sch.over

    def ffn_consts(self):
        e = self.e
        e(f"""
        s_mul_i32 s{sT0}, s{sC}, {7*A2_STEP}
        s_lshl_b32 s{sT1}, s{sRB}, 13
        s_add_u32 s{sT0}, s{sT0}, s{sT1}
        s_lshr_b32 s{sT1}, s{sWV}, 1
        s_lshl_b32 s{sT1}, s{sT1}, 12
        s_add_u32 s{sT0}, s{sT0}, s{sT1}
        s_and_b32 s{sT1}, s{sWV}, 1
        s_lshl_b32 s{sT2}, s{sT1}, 9
        s_add_u32 s{sT2}, s{sT2}, {3*A2_STEP}
        s_add_u32 s{sE+3}, s{sT0}, s{sT2}
        s_lshl_b32 s{sT1}, s{sT1}, 19
        s_add_u32 s{sE}, s{sT0}, s{sT1}
        s_add_u32 s{sE+1}, s{sE}, {A2_STEP}
        s_add_u32 s{sE+2}, s{sE}, {2*A2_STEP}
        v_lshlrev_b32 v{self.vT+4}, 4, v{self.vLane}
        v_lshlrev_b32 v{self.vT+5}, 3, v{self.vLane}
        """)
    def ffn_groups(self, aux):
        e = self.e; out = []
        def st(x):
            def f(): self.last_store = e(x)
            f.cost = [x]
            return f
        for m in range(4):
            for Tt in range(4):
                a = self.accF(Tt, 2*m); n = 4 if m < 3 else 2
                l = [f"v_cvt_pk_bf16_f32 v{a+i}, v{a+2*i}, v{a+2*i+1}" for i in range(n)]
                l += [f"v_pk_max_i16 v{a+i}, v{a+i}, 0" for i in range(n)]
                if m < 3: l.append(st(f"buffer_store_dwordx4 v[{a}:{a+3}], v{self.vT+4}, s[{SH}:{SH+3}], s{sE+m} offen offset:{Tt*1024} {aux}"))
                else: l.append(st(f"buffer_store_dwordx2 v[{a}:{a+1}], v{self.vT+5}, s[{SH}:{SH+3}], s{sE+3} offen offset:{Tt*1024} {aux}"))
                out.append((4 * min(2*m + 1, 6) + Tt, l))
        return out
    def ffn_lastloop(self, sch, aux):
        g0 = self.step0[19]; n = self.step0[20]
        self.ffn_rest = []
        pos = g0
        for rdy, l in self.ffn_groups(aux):
            pos = max(pos, g0 + rdy + 5)
            if pos + 4 < n and not self.ffn_rest:
                for k, x in enumerate(l): sch.add('cv', x, early=pos + k // 2, dead=pos + k // 2 + 1)
                pos += 4
            else: self.ffn_rest += l
    def epilogue_F(self, side=()):
        weave(self.e, self.ffn_rest, list(side))

    def att_consts(self):
        e = self.e; T = self.vT; L = self.vLane
        sPar, sM0, sM1, sG1, sG2, sG3 = [sMASK + 2 * i for i in range(6)]
        vSel = T + 4
        e(f"""
        v_and_b32 v{T}, 15, v{L}
        v_lshrrev_b32 v{T+1}, 4, v{L}
        v_and_b32 v{T+2}, 1, v{L}
        v_cmp_eq_u32 s[{sPar}:{sPar+1}], 1, v{T+2}
        v_lshl_add_u32 v{T+3}, v{T+1}, 2, v{T+2}
        v_cmp_le_u32 s[{sM0}:{sM0+1}], v{T+3}, v{T}
        v_add_u32 v{T+3}, 2, v{T+3}
        v_cmp_le_u32 s[{sM1}:{sM1+1}], v{T+3}, v{T}
        v_cmp_eq_u32 s[{sG1}:{sG1+1}], 1, v{T+1}
        v_cmp_eq_u32 s[{sG2}:{sG2+1}], 2, v{T+1}
        v_cmp_eq_u32 s[{sG3}:{sG3+1}], 3, v{T+1}
        v_mov_b32 v{T}, 0x0c0c0100
        v_mov_b32 v{T+1}, 0x01000c0c
        v_cndmask_b32 v{T}, v{T}, v{T+1}, s[{sPar}:{sPar+1}]
        v_mov_b32 v{T+1}, 0x0c0c0302
        v_mov_b32 v{T+2}, 0x03020c0c
        v_cndmask_b32 v{T+1}, v{T+1}, v{T+2}, s[{sPar}:{sPar+1}]
        v_mov_b32 v{T+2}, 0x0c0c0c0c
        v_cndmask_b32 v{vSel}, v{T}, v{T+2}, s[{sM0}:{sM0+1}]
        v_cndmask_b32 v{vSel+1}, v{T+1}, v{T+2}, s[{sM1}:{sM1+1}]
        v_cndmask_b32 v{vSel+2}, v{T+2}, v{T}, s[{sM0}:{sM0+1}]
        v_cndmask_b32 v{vSel+3}, v{T+2}, v{T+1}, s[{sM1}:{sM1+1}]
        s_lshr_b32 s{sT0}, s{sC}, 1
        s_lshl_b32 s{sE+3}, s{sT0}, 13
        s_mul_i32 s{sT0}, s{sT0}, 5
        s_add_u32 s{sT0}, s{sT0}, 54
        s_and_b32 s{sT1}, s{sC}, 1
        s_mul_i32 s{sT2}, s{sT1}, 3
        s_add_u32 s{sT2}, s{sT2}, s{sT0}
        s_lshl_b32 s{sT2}, s{sT2}, 17
        s_add_u32 s{sT0}, s{sT0}, 2
        s_lshl_b32 s{sT0}, s{sT0}, 17
        s_lshl_b32 s{sT1}, s{sT1}, 9
        s_add_u32 s{sT0}, s{sT0}, s{sT1}
        s_lshl_b32 s{sT1}, s{sRB}, 13
        s_lshl_b32 s{sT3}, s{sWV}, 11
        s_add_u32 s{sT1}, s{sT1}, s{sT3}
        s_add_u32 s{sE}, s{sT0}, s{sT1}
        s_add_u32 s{sE+1}, s{sT2}, s{sT1}
        s_add_u32 s{sE+2}, s{sE+1}, {A2_STEP}
        s_lshr_b32 s{sT1}, s{sT1}, 4
        s_add_u32 s{sT1}, s{sT1}, {G_OFF}
        s_add_u32 s{sE+3}, s{sE+3}, s{sT1}
        s_bitcmp1_b32 s{sC}, 0
        s_cselect_b32 s{sT1}, {OOB}, 0
        s_add_u32 s{sE+3}, s{sE+3}, s{sT1}
        s_or_b32 s{sT1}, s{sRB}, s{sWV}
        s_cmp_eq_u32 s{sT1}, 0
        s_cselect_b32 s{sE+4}, 0xff800000, 0
        s_mov_b32 s{sE+5}, {f2h(1.4426950408889634 * 20 ** -0.5)}
        """)

    EX = XOFF + XSLOT
    @staticmethod
    def cvt2(d, a): return [f"v_cvt_pk_bf16_f32 v{d}, v{a}, v{a+1}", f"v_cvt_pk_bf16_f32 v{d+1}, v{a+2}, v{a+3}"]

    def att_lastloop(self, sch):
        e = self.e; L = self.vLane
        g0 = self.step0[19]
        pre = [f"s_add_u32 s{sT0}, s{sWV}, 1", f"s_mul_i32 s{sT0}, s{sT0}, 5120", f"s_add_u32 s{sT0}, s{sT0}, {self.EX}",
               f"v_lshlrev_b32 v{self.vDx+1}, 3, v{L}", f"v_add_u32 v{self.vDx}, s{sT0}, v{self.vDx+1}",
               f"s_lshl_b32 s{sT0}, s{sWV}, 9", f"s_add_u32 s{sT0}, s{sT0}, {self.EX}",
               f"v_add_u32 v{self.vDx+2}, s{sT0}, v{self.vDx+1}", f"v_add_u32 v{self.vDx+3}, {self.EX}, v{self.vDx+1}",
               f"v_lshlrev_b32 v{self.vDw}, 4, v{L}", f"v_and_b32 v{self.vDw+1}, 15, v{L}", f"v_lshlrev_b32 v{self.vDw+1}, 2, v{self.vDw+1}"]
        for k, x in enumerate(pre): sch.add('cv', x, early=g0 - 14 + k, dead=g0 + 4)
        lag = 5
        for t in range(5):
            for Tt in (0, 1):
                for x in self.cvt2(self.accQ(Tt, t), self.accQ(Tt, t)): sch.add('cv', x, early=g0 + 2*t + Tt + lag, dead=g0 + 30)
        for t in range(5):
            for Tt in (0, 1):
                for x in self.cvt2(self.accK(Tt, t), self.accK(Tt, t)): sch.add('cv', x, early=g0 + 10 + 2*t + Tt + lag, dead=g0 + 34)
        for x in self.cvt2(self.hK4, self.hK4): sch.add('cv', x, early=g0 + 20 + lag, dead=g0 + 35)

    def epilogue_A(self, aux='', hooks=None):
        e = self.e; T = self.vT; L = self.vLane; hooks = hooks or {}
        sPar, sM0, sM1, sG1, sG2, sG3 = [sMASK + 2 * i for i in range(6)]
        vSel = T + 4; cvt2 = self.cvt2
        H = lambda n: list(hooks.get(n, []))
        Vp = lambda Tt, u: 32 + 6 * u + 2 * (Tt + 1)
        Kp = lambda Tt, t: self.accK(Tt, t) if Tt >= 0 else self.hK + 2 * t
        Qp = self.accQ
        Sc = {1: 62, 0: 176}; Sp = {1: 78, 0: 192}
        vE, vE8, vEh, vE0 = self.vDx, self.vDx + 1, self.vDx + 2, self.vDx + 3
        def qk(Tt):
            l = []
            for t in range(5):
                for (Sr, kt) in ((Sc[Tt], Tt), (Sp[Tt], Tt - 1)):
                    c = f"v[{Sr}:{Sr+15}]" if t else "0"
                    l.append(f"v_mfma_f32_16x16x4_4b_bf16 v[{Sr}:{Sr+15}], v[{Kp(kt,t)}:{Kp(kt,t)+1}], v[{Qp(Tt,t)}:{Qp(Tt,t)+1}], {c}")
            return l
        side = [f"ds_write_b64 v{vE}, v[{Kp(1,t)}:{Kp(1,t)+1}] offset:{512*t}" for t in range(5)]
        side.append(f"ds_write_b64 v{vE0}, v[{self.hK4}:{self.hK4+1}] offset:2048")
        for u in range(5):
            side += cvt2(Vp(1, u), self.accV(1, u)) + [f"ds_write_b64 v{vE}, v[{Vp(1,u)}:{Vp(1,u)+1}] offset:{2560+512*u}"]
        side += cvt2(self.hV4, self.hV4) + [f"ds_write_b64 v{vE0}, v[{self.hV4}:{self.hV4+1}] offset:{2560+2048}"]
        side += cvt2(self.hK, self.hK) + [f"ds_write_b64 v{vEh}, v[{self.hK}:{self.hK+1}]"]
        side += cvt2(self.hV, self.hV) + [f"ds_write_b64 v{vEh}, v[{self.hV}:{self.hV+1}] offset:2560"]
        for u in range(5): side += cvt2(Vp(0, u), self.accV(0, u))
        side.append(f"v_subrev_u32 v{vE}, 5120, v{vE}")
        weave(e, qk(1), side + H('qk1'))
        e.wait_lg_all(); e("s_barrier")
        for t in range(5): e(f"ds_read_b64 v[{Kp(-1,t)}:{Kp(-1,t)+1}], v{vE} offset:{512*t}")
        for u in range(5): e(f"ds_read_b64 v[{Vp(-1,u)}:{Vp(-1,u)+1}], v{vE} offset:{2560+512*u}")
        gate = []
        for op in range(5):
            for Tt in range(2):
                g = self.accG(Tt)
                gate.append([f"v_mul_f32 v{g}, {f2h(-1.4426950408889634)}, v{g}", f"v_exp_f32 v{g}, v{g}", f"v_add_f32 v{g}, 1.0, v{g}",
                             f"v_rcp_f32 v{g}, v{g}", f"v_sub_f32 v{g+1}, 1.0, v{g}"][op])
        for Tt in range(2):
            gate.append(f"buffer_store_dword v{self.accG(Tt)+1}, v{self.vDw+1}, s[{SWS}:{SWS+3}], s{sE+3} offen offset:{64*Tt} {aux}")
        weave(e, gate, H('bar'))
        def softmax(Tt):
            sc, sp = Sc[Tt], Sp[Tt]; l = []
            m0 = [sc + 4*bb for bb in range(4)]; m1 = [sc + 4*bb + 2 for bb in range(4)]
            for bb in range(4):
                c0, p0 = sc + 4*bb, sp + 4*bb
                l += [f"v_cndmask_b32 v{c0}, v{c0}, v{c0+1}, s[{sPar}:{sPar+1}]", f"v_cndmask_b32 v{c0+2}, v{c0+2}, v{c0+3}, s[{sPar}:{sPar+1}]",
                      f"v_cndmask_b32 v{p0}, v{p0}, v{p0+1}, s[{sPar}:{sPar+1}]", f"v_cndmask_b32 v{p0+2}, v{p0+2}, v{p0+3}, s[{sPar}:{sPar+1}]"]
                if Tt == 0: l += [f"v_add_f32 v{p0}, s{sE+4}, v{p0}", f"v_add_f32 v{p0+2}, s{sE+4}, v{p0+2}"]
            for bb in range(4):
                c0, p0 = sc + 4*bb, sp + 4*bb
                l += [f"v_cndmask_b32 v{c0}, v{p0}, v{c0}, s[{sM0}:{sM0+1}]"]
            for bb in range(4):
                c0, p0 = sc + 4*bb, sp + 4*bb
                l += [f"v_cndmask_b32 v{c0+2}, v{p0+2}, v{c0+2}, s[{sM1}:{sM1+1}]"]
            for m in (m0, m1): l += [f"v_permlane32_swap_b32 v{m[0]}, v{m[2]}", f"v_permlane32_swap_b32 v{m[1]}, v{m[3]}"]
            for m in (m0, m1): l += [f"v_permlane16_swap_b32 v{m[0]}, v{m[1]}", f"v_permlane16_swap_b32 v{m[2]}, v{m[3]}"]
            vals = m0 + m1; t0, t1 = sp, sp + 1
            l += [f"v_max3_f32 v{t0}, v{vals[0]}, v{vals[1]}, v{vals[2]}", f"v_max3_f32 v{t1}, v{vals[3]}, v{vals[4]}, v{vals[5]}",
                  f"v_max3_f32 v{t0}, v{t0}, v{vals[6]}, v{vals[7]}", f"v_max_f32 v{t0}, v{t0}, v{t1}", f"v_mul_f32 v{t0}, s{sE+5}, v{t0}"]
            l += [f"v_fma_f32 v{x}, v{x}, s{sE+5}, -v{t0}" for x in vals]
            l += [f"v_exp_f32 v{x}, v{x}" for x in vals]
            l += [f"v_add_f32 v{t0}, v{vals[0]}, v{vals[1]}", f"v_add_f32 v{t1}, v{vals[2]}, v{vals[3]}", f"v_add_f32 v{t0+2}, v{vals[4]}, v{vals[5]}",
                  f"v_add_f32 v{t0}, v{t0}, v{t1}", f"v_add_f32 v{t0+3}, v{vals[6]}, v{vals[7]}", f"v_add_f32 v{t0}, v{t0}, v{t0+2}",
                  f"v_add_f32 v{t0}, v{t0}, v{t0+3}", f"v_rcp_f32 v{t0}, v{t0}", f"v_mul_f32 v{t0}, v{t0}, v{self.accG(Tt)}"]
            l += [f"v_mul_f32 v{x}, v{t0}, v{x}" for x in (vals[0], vals[4], vals[2], vals[6], vals[1], vals[5], vals[3], vals[7])]
            P = [sp + 4 + i for i in range(4)]
            l += [f"v_cvt_pk_bf16_f32 v{P[i]}, v{m0[i]}, v{m1[i]}" for i in (0, 2, 1, 3)]
            l += [f"v_permlane32_swap_b32 v{P[0]}, v{P[2]}", f"v_permlane32_swap_b32 v{P[1]}, v{P[3]}",
                  f"v_permlane16_swap_b32 v{P[0]}, v{P[1]}", f"v_permlane16_swap_b32 v{P[2]}, v{P[3]}"]
            for bb in range(4): l += [f"v_perm_b32 v{sc+4*bb+i}, v{P[bb]}, v{P[bb]}, v{vSel+i}" for i in range(4)]
            return l
        O = [96 + 4*i for i in range(8)]
        def pv(Tt):
            sc = Sc[Tt]; l = []
            for bb in range(4):
                l.append(f"v_mfma_f32_16x16x32_bf16 v[{O[bb]}:{O[bb]+3}], v[{Vp(Tt-1,bb)}:{Vp(Tt-1,bb)+3}], v[{sc+4*bb}:{sc+4*bb+3}], 0")
            for bb in range(4):
                l.append(f"v_mfma_f32_16x16x32_bf16 v[{O[4+bb]}:{O[4+bb]+3}], v[{Vp(Tt-1,4)}:{Vp(Tt-1,4)+3}], v[{sc+4*bb}:{sc+4*bb+3}], 0")
            return l
        def final(Tt):
            sp = Sp[Tt]; o = sp + 8; o4 = sp; l = []
            def st(x):
                def f(): self.last_store = e(x)
                return f
            for bb in range(4): l += cvt2(o + 2*bb, O[bb])
            l.insert(4, st(f"buffer_store_dwordx4 v[{o}:{o+3}], v{self.vDw}, s[{SWS}:{SWS+3}], s{sE+1} offen offset:{1024*Tt} {aux}"))
            l.append(st(f"buffer_store_dwordx4 v[{o+4}:{o+7}], v{self.vDw}, s[{SWS}:{SWS+3}], s{sE+2} offen offset:{1024*Tt} {aux}"))
            for bb in range(4): l += cvt2(o4 + 2*bb, O[4+bb])
            for bb, sg in ((1, sG1), (2, sG2), (3, sG3)):
                l += [f"v_cndmask_b32 v{o4}, v{o4}, v{o4+2*bb}, s[{sg}:{sg+1}]", f"v_cndmask_b32 v{o4+1}, v{o4+1}, v{o4+2*bb+1}, s[{sg}:{sg+1}]"]
            l.append(st(f"buffer_store_dwordx2 v[{o4}:{o4+1}], v{vE8}, s[{SWS}:{SWS+3}], s{sE} offen offset:{1024*Tt} {aux}"))
            return l
        s1 = softmax(1)
        q0 = qk(0); h = H('sm1'); side = []
        for i in range(max(len(q0), 1)):
            side.append(q0[i]); side += h[i * len(h) // len(q0):(i + 1) * len(h) // len(q0)]
        weave(e, s1, side, start=4, end=len(s1) - 12)
        s0 = softmax(0)
        weave(e, s0[:20], pv(1), start=0, end=16)
        weave(e, final(1), H('mid'))
        weave(e, s0[20:], H('sm0'))
        weave(e, pv(0), H('pv0'))
        weave(e, final(0), H('end'))
```

```python
from common import *
from sched import *
NH = 14; NSL = 19
SET1 = WOFF + 3 * WSLOT
RED = 0

class P2:
    def __init__(self, e, role, opt, tm):
        self.e = e; self.role = role; self.opt = opt; self.tm = tm
        self.NT = NT = 4 if role == 'A' else 7
        self.vLane = 1
        self.vGm = 2; self.vA = 11; self.vRw = 15; self.vRr = 17; self.vO = 18; self.vGaddr = 19; self.vTr2 = 20; self.vT = 24
        self.vAcc = 32
        if role == 'A':
            self.vR = 96; self.ring = [128 + 4*i for i in range(12)] + [208 + 4*i for i in range(6)]
        else:
            self.vR = 144; self.ring = [160 + 4*i for i in range(20)]
        self.ring = self.ring[:opt.get('na', 20)]
        self.NA = len(self.ring)
        self.stage_ids = {}; self.base = {}; self.rd_ids = {}; self.a_ids = {}
        self.acc = lambda T, u: self.vAcc + 16 * T + 4 * u
        self.items = [(i, T) for i in range(NH) for T in range(NT)] + [(NH + s, T) for T in range(NT) for s in range(5)]
        self.nload = 0; self.nlab = 0
        self.aux = opt.get('aux', 'sc1')

    def setup_early(self):
        e = self.e; T = self.vT; L = self.vLane; A = self.role == 'A'
        nt, t0, n = (4, 84, 11) if A else (7, 0, 12)
        e(f"""
        s_lshr_b32 s{sT1}, s2, 3
        s_and_b32 s{sT1}, s{sT1}, 15
        s_mul_i32 s{sT2}, s{sT1}, 13
        s_lshr_b32 s{sT2}, s{sT2}, 6
        s_mul_i32 s{sT3}, s{sT2}, 5
        s_sub_u32 s{sCOL}, s{sT1}, s{sT3}
        s_bitcmp1_b32 s2, 0
        s_cselect_b32 s{sT3}, 5, 0
        s_add_u32 s{sCOL}, s{sCOL}, s{sT3}
        s_cmp_ge_u32 s{sT2}, 3
        s_cselect_b32 s{sOFF2}, {OOB}, 0
        s_bfe_u32 s{sT0}, s2, 0x20001
        s_mul_i32 s{sT0}, s{sT0}, 3
        s_add_u32 s{sT0}, s{sT0}, s{sT2}
        s_cmp_ge_u32 s{sT0}, {n}
        s_cselect_b32 s{sOFF2}, {OOB}, s{sOFF2}
        s_min_u32 s{sT0}, s{sT0}, {n-1}
        s_mul_i32 s{sTOK}, s{sT0}, {nt}
        s_add_u32 s{sTOK}, s{sTOK}, {t0}
        s_lshl_b32 s{sT0}, s{sCOL}, 7
        s_add_u32 s{sT0}, s{sT0}, s{sOFF2}
        v_lshrrev_b32 v{T}, 3, v{L}
        v_and_b32 v{T+1}, 7, v{L}
        v_lshrrev_b32 v{T+2}, 4, v{L}
        v_lshlrev_b32 v{T+3}, 1, v{T+2}
        v_xor_b32 v{T+1}, v{T+1}, v{T+3}
        v_lshl_add_u32 v{T+1}, v{T+1}, 4, s{sT0}
        v_mul_u32_u24 v{T+3}, 1280, v{T}
        v_add_u32 v{vH}, v{T+3}, v{T+1}
        v_add_u32 v{vH+1}, {1*(8*1280-1024)}, v{vH}
        v_add_u32 v{vH+2}, {2*(8*1280-1024)}, v{vH}
        v_add_u32 v{vH+3}, {3*(8*1280-1024)}, v{vH}
        v_lshrrev_b32 v{T+3}, 2, v{T}
        v_mul_u32_u24 v{T+3}, {16*1280}, v{T+3}
        v_add_u32 v{vY}, v{T+3}, v{vH}
        v_lshrrev_b32 v{T}, 2, v{L}
        v_lshrrev_b32 v{T+1}, 1, v{T}
        v_and_b32 v{T+1}, 3, v{T+1}
        v_and_b32 v{T+2}, 3, v{L}
        v_lshlrev_b32 v{T+2}, 3, v{T+2}
        v_lshl_add_u32 v{T+2}, v{T}, 7, v{T+2}
        v_add_u32 v{T+2}, s{sM2}, v{T+2}
        """)
        for u in range(4):
            e(f"v_xor_b32 v{T+3}, {u}, v{T+1}\nv_lshl_add_u32 v{vTr+u}, v{T+3}, 5, v{T+2}")
        e(f"""
        s_mul_i32 s{sK2}, s{sWV}, {14*32*1280}
        s_mul_i32 s{sKA}, s{sWV}, {14*A2_STEP}
        s_mul_i32 s{sKO}, s{sWV}, {160*1280}
        s_mul_i32 s{sO0}, s{sWV}, {5*A2_STEP}
        s_add_u32 s{sO0}, s{sO0}, {54*A2_STEP}
        """)
        for s in range(1, 5): e(f"s_add_u32 s{sO0+s}, s{sO0}, {s*A2_STEP}")
        e(f"""
        s_lshr_b32 s{sT0}, s{sTOK}, 3
        s_add_u32 s{sT1}, s{sTOK}, {nt-1}
        s_lshr_b32 s{sT1}, s{sT1}, 3
        s_sub_u32 s{sT1}, s{sT1}, s{sT0}
        v_bfe_u32 v{T}, v{L}, 3, 1
        v_mul_u32_u24 v{T}, s{sT1}, v{T}
        v_add_u32 v{T}, s{sT0}, v{T}
        v_lshlrev_b32 v{T+2}, 4, v{T}
        v_bfe_u32 v{T+1}, v{L}, 2, 1
        v_lshl_add_u32 v{T}, v{T}, 3, v{T+1}
        s_lshl_b32 s{sT0}, s{sWV}, 8
        s_add_u32 s{sT0}, s{sT0}, {FLAG_OFF}
        v_and_b32 v{T+1}, 3, v{L}
        v_lshl_add_u32 v{T+1}, v{T+1}, 2, s{sT0}
        v_lshl_add_u32 v{vPollO}, v{T}, 7, v{T+1}
        v_add_u32 v{vPollH}, {128*128}, v{vPollO}
        """)
        self.vCnt = T + 2

    def setup_late(self):
        T = self.vT; L = self.vLane
        l = f"""
        s_lshl_b32 s{sT0}, s{sTOK}, 10
        s_add_u32 s{sT0}, s{sT0}, s{sOFF2}
        v_lshl_add_u32 v{self.vA}, v{L}, 4, s{sT0}
        v_add_u32 v{self.vA+1}, 4096, v{self.vA}
        v_lshl_add_u32 v{self.vA+2}, v{L}, 3, s{sT0}
        v_add_u32 v{self.vA+3}, 4096, v{self.vA+2}
        v_and_b32 v{T}, 15, v{L}
        v_lshrrev_b32 v{T+1}, 4, v{L}
        v_and_b32 v{T+2}, 7, v{L}
        v_xor_b32 v{T+2}, v{T+2}, v{T+1}
        s_lshl_b32 s{sT0}, s{sWV}, 12
        s_add_u32 s{sT0}, s{sT0}, {RED}
        v_lshl_add_u32 v{T+3}, v{T}, 8, s{sT0}
        v_lshl_add_u32 v{self.vRw}, v{T+2}, 4, v{T+3}
        v_xor_b32 v{T+2}, 4, v{T+2}
        v_lshl_add_u32 v{self.vRw+1}, v{T+2}, 4, v{T+3}
        s_lshl_b32 s{sT0}, s{sWV}, 2
        v_add_u32 v{T+2}, s{sT0}, v{T+1}
        v_and_b32 v{T+3}, 7, v{T+2}
        v_xor_b32 v{T+3}, v{T+3}, v{T}
        v_lshlrev_b32 v{T+3}, 4, v{T+3}
        v_lshl_add_u32 v{self.vRr}, v{T+2}, 8, v{T+3}
        s_lshl_b32 s{sT0}, s{sTOK}, 4
        v_add_u32 v{T+2}, s{sT0}, v{T+2}
        v_mul_u32_u24 v{T+2}, 1280, v{T+2}
        s_lshl_b32 s{sT0}, s{sCOL}, 7
        v_lshl_add_u32 v{T+3}, v{T}, 3, s{sT0}
        v_add_u32 v{self.vO}, v{T+2}, v{T+3}
        s_lshl_b32 s{sT0}, s{sTOK}, 6
        s_lshl_b32 s{sT1}, s{sWV}, 13
        s_add_u32 s{sT0}, s{sT0}, s{sT1}
        s_add_u32 s{sT0}, s{sT0}, {G_OFF}
        v_lshl_add_u32 v{self.vGaddr}, v{T}, 2, s{sT0}
        """.strip().split('\n')
        assert RED == 0
        return [x.strip() for x in l]
    def setup_tr2(self):
        return [f"v_add_u32 v{self.vTr2+u}, {SET1}, v{vTr+u}" for u in range(4)]

    def poll_issue(self, vaddr, srd=SWS):
        def f(): self.poll_id = self.e(f"buffer_load_dword v{vPD}, v{vaddr}, s[{srd}:{srd+3}], 0 offen sc1")
        f.cost = ['buffer_x']
        return f
    def poll_check(self, vaddr, want, srd=SWS):
        def f():
            e = self.e; self.nlab += 1
            lab = f"{self.role}_poll{self.nlab}"
            cmp = 'v_cmp_ne_u32' if want == 1 else 'v_cmp_gt_u32'
            e(f"{cmp} vcc, {want}, v{vPD}")
            e(f"s_cbranch_vccz {lab}_ok")
            e.raw(f"""    s_mov_b32 s3, 0
{lab}_spin:
    s_add_u32 s3, s3, 1
    s_cmp_gt_u32 s3, 0x8000
    s_cbranch_scc1 {lab}_ok
    s_sleep 1
    buffer_load_dword v{vPD}, v{vaddr}, s[{srd}:{srd+3}], 0 offen sc1
    s_waitcnt vmcnt(0)
    {cmp} vcc, {want}, v{vPD}
    s_cbranch_vccnz {lab}_spin
{lab}_ok:""")
        f.cost = ['s_x', 'v_x', 's_x']
        return f
    def set_flag(self, store_id):
        def f():
            e = self.e
            e(f"v_mov_b32 v{self.vT+1}, 1")
            e.wait_vm(store_id() if callable(store_id) else store_id)
            e(f"buffer_store_dword v{self.vT+1}, v{vFlag}, s[{SWS}:{SWS+3}], 0 offen sc1")
        f.cost = ['v_x', 's_x', 'buffer_x']
        return f

    def stage_dma(self, i, base):
        e = self.e; out = []
        prev = [j for j, b in self.base.items() if b == base]
        self.base[i] = base
        def S(x): return (lambda: e(x))
        def Dm(x):
            def f(): self.stage_ids[i] = e(x)
            f.cost = ['buffer_x']; f.dma = 1; f.sep = 1
            return f
        if prev: out.append(lambda j=max(prev): e.wait_lg(self.rd_ids[j]))
        out.append(S(f"s_add_u32 m0, s{sM2}, {base}"))
        if i < NH:
            if i > 0: out.append(S(f"s_add_u32 s{sK2}, s{sK2}, {32*1280}"))
            for p in range(4): out.append(Dm(f"buffer_load_dwordx4 v{vH+p}, s[{SW2}:{SW2+3}], s{sK2} offen offset:{p*1024} lds"))
        else:
            s = i - NH
            if s != 2:
                rb = {0: 0, 1: 40, 3: 80, 4: 120}[s]
                out.append(S(f"s_add_u32 s{sK2}, s{sKO}, {rb*1280}"))
                for p in range(4):
                    if p == 2: out.append(S(f"s_add_u32 s{sK2}, s{sK2}, {4*1280}"))
                    out.append(Dm(f"buffer_load_dwordx4 v{vH+p}, s[{SWO}:{SWO+3}], s{sK2} offen offset:{p*1024} lds"))
            else:
                for p in range(4):
                    out.append(S(f"s_add_u32 s{sK2}, s{sKO}, {(80*(p>>1) + 40*(p&1) + 16)*1280 - 1024*p}"))
                    out.append(Dm(f"buffer_load_dwordx4 v{vY}, s[{SWO}:{SWO+3}], s{sK2} offen offset:{p*1024} lds"))
        return out
    def wreg(self, i, u): return 16 * (i % 16) + 4 * u
    def stage_read(self, i):
        e = self.e
        base = self.base[i]
        rb, off = (vTr, base) if base < SET1 else (self.vTr2, base - SET1)
        assert off + 2048 < 65536
        out = [lambda: e.wait_vm(self.stage_ids[i])]
        for u in range(4):
            for h in range(2):
                d = self.wreg(i, u) + 2 * h
                x = f"ds_read_b64_tr_b16 a[{d}:{d+1}], v{rb+u} offset:{off + 2048*h}"
                def f(x=x): self.rd_ids[i] = e(x)
                f.cost = [x]
                out.append(f)
        return out

    def a_load(self, n):
        e = self.e; aux = self.aux
        i, T = self.items[n]
        d = self.ring[n % self.NA]
        hi = 1 if T >= 4 else 0; off = (T - 4 * hi) * 1024
        out = []
        def Dm(x):
            def f(): self.a_ids[n] = e(x)
            f.cost = ['buffer_x']
            return f
        if i < NH:
            if T == 0 and i > 0: out.append(lambda: e(f"s_add_u32 s{sKA}, s{sKA}, {A2_STEP}"))
            if i % 7 != 3: out.append(Dm(f"buffer_load_dwordx4 v[{d}:{d+3}], v{self.vA+hi}, s[{SH}:{SH+3}], s{sKA} offen offset:{off} {aux}"))
            else:
                out.append(Dm(f"buffer_load_dwordx2 v[{d}:{d+1}], v{self.vA+2+hi}, s[{SH}:{SH+3}], s{sKA} offen offset:{off} {aux}"))
                out.append(Dm(f"buffer_load_dwordx2 v[{d+2}:{d+3}], v{self.vA+2+hi}, s[{SH}:{SH+3}], s{sKA} offen offset:{off+512} {aux}"))
        else:
            s = i - NH; so = sO0 + s
            if s != 2: out.append(Dm(f"buffer_load_dwordx4 v[{d}:{d+3}], v{self.vA+hi}, s[{SWS}:{SWS+3}], s{so} offen offset:{off} {aux}"))
            else:
                out.append(Dm(f"buffer_load_dwordx2 v[{d}:{d+1}], v{self.vA+2+hi}, s[{SWS}:{SWS+3}], s{so} offen offset:{off} {aux}"))
                out.append(Dm(f"buffer_load_dwordx2 v[{d+2}:{d+3}], v{self.vA+2+hi}, s[{SWS}:{SWS+3}], s{so} offen offset:{off+512} {aux}"))
        return out
    def first_loads(self, k=None):
        out = []
        k = self.NA if k is None else k
        while self.nload < k:
            out += self.a_load(self.nload); self.nload += 1
        return out

    def mainloop(self, n_read, n_dma, free_bases, extra=None):
        e = self.e; NT = self.NT; items = self.items; NA = self.NA
        sch = Sched(e)
        first = {}; last = {}
        for n, (i, T) in enumerate(items):
            r = self.ring[n % NA]
            for u in range(4):
                a = self.acc(T, u); w = self.wreg(i, u)
                c = f"v[{a}:{a+3}]" if i > 0 else "0"
                k = sch.main(f"v_mfma_f32_16x16x32_bf16 v[{a}:{a+3}], a[{w}:{w+3}], v[{r}:{r+3}], {c}")
                first.setdefault(n, k); last[n] = k
        nm = len(sch.mains)
        first_o = NH * NT
        step = [first[i * NT] for i in range(NH)] + [first[first_o]]
        otile = [first[first_o + 5 * T] for T in range(NT)] + [nm]
        self.step = step
        for n in range(self.nload, len(items)):
            g = last[n - NA] if n >= NA else -1
            if n == first_o:
                sch.add('a', self.poll_check(vPollO, 1), early=g, dead=g + 1)
                for T in range(NT):
                    x = f"buffer_load_dword v{self.vGm+T}, v{self.vGaddr}, s[{SWS}:{SWS+3}], 0 offen offset:{64*T} {self.aux}"
                    sch.add('a', x, early=g, dead=g + 2)
            if n == first_o - self.opt.get('pollead', 8): sch.add('a', self.poll_issue(vPollO), early=g, dead=g + 2)
            for fn in self.a_load(n): sch.add('a', fn, early=g, dead=g + 2)
        for n in range(1, len(items)):
            def w(n=n):
                if n in self.a_ids: e.wait_vm(self.a_ids[n])
            sch.add('aw', w, early=first[n] - 1, dead=first[n] - 1)
        free = list(free_bases); nd = n_dma; nr = n_read
        rem = NSL - n_read
        for i in range(NH - 1):
            want = min(NSL, n_read + -(-(i + 1) * rem // (NH - 2)), i + 16)
            l = []
            while nd < NSL and free:
                l += self.stage_dma(nd, free.pop(0)); nd += 1
            while nr < min(want, nd):
                l += self.stage_read(nr); free.append(self.base[nr]); nr += 1
            assert nr >= i + 2, (i, nr)
            span = step[i + 1] - step[i]
            for k, fn in enumerate(l):
                pos = step[i] + k * span // len(l)
                sch.add('stg', fn, early=pos, dead=min(pos + 2, step[i + 1] - 1))
        assert nr == NSL
        for T in range(NT):
            lo = last[(NH - 1) * NT + T] + 5
            if T > 0: lo = max(lo, otile[T - 1] + 1)
            hi = otile[T] - 2
            for k in range(16):
                pos = lo + k * (hi - lo + 1) // 16
                sch.add('sc', f"v_mul_f32 v{self.acc(T,0)+k}, v{self.vGm+T}, v{self.acc(T,0)+k}", early=pos, dead=min(pos + 1, hi))
        R = self.vR
        def writes(T):
            b = (T & 1) * 16384
            return [f"ds_write_b128 v{self.vRw + (u & 1)}, v[{self.acc(T,u)}:{self.acc(T,u)+3}] offset:{b + 128*(u>>1)}" for u in range(4)]
        def bar():
            e.wait_lg_all(); e("s_barrier")
        bar.cost = ['s_x', 's_barrier']
        def reduce_(T):
            b = (T & 1) * 16384
            l = [f"ds_read_b128 v[{R+4*w}:{R+4*w+3}], v{self.vRr} offset:{b + 4096*w}" for w in range(4)]
            add = [f"v_add_f32 v{R+k}, v{R+k}, v{R+4+k}" for k in range(4)] + [f"v_add_f32 v{R+8+k}, v{R+8+k}, v{R+12+k}" for k in range(4)]
            add += [f"v_add_f32 v{R+k}, v{R+k}, v{R+8+k}" for k in range(4)]
            add += [f"v_cvt_pk_bf16_f32 v{R}, v{R}, v{R+1}", f"v_cvt_pk_bf16_f32 v{R+1}, v{R+2}, v{R+3}"]
            if T > 0: add.append(f"v_add_u32 v{self.vO}, {16*1280}, v{self.vO}")
            add.append(f"buffer_store_dwordx2 v[{R}:{R+1}], v{self.vO}, s[{SOUT}:{SOUT+3}], 0 offen")
            return l, add
        sch.add('red', bar, early=otile[0] + 8, dead=otile[0] + 12)
        for T in range(1, NT):
            g = otile[T]
            if T >= 2:
                rd, add = reduce_(T - 2)
                for k, x in enumerate(rd): sch.add('red', x, early=g - 1 + k, dead=g + k)
            for k, x in enumerate(writes(T - 1)): sch.add('red', x, early=g + 4 + 2*k, dead=g + 5 + 2*k)
            if T >= 2:
                for k, x in enumerate(add): sch.add('red2', x, early=g + 6 + k * 11 // len(add), dead=g + 7 + k * 11 // len(add))
            sch.add('red', bar, early=g + 18, dead=g + 18)
        if self.tm.on and not self.opt.get('ts3'):
            sch.add('ts', self.tm.stamp, early=step[7], dead=step[7]); sch.add('ts', self.tm.stamp, early=otile[0], dead=otile[0])
        if extra: extra(sch)
        sch.run(); self.over = sch.over
        self.tm.stamp()
        run = lambda l: [x() if callable(x) else e(x) for x in l]
        rd, add = reduce_(NT - 2)
        run(rd); run(add[:6]); run(writes(NT - 1)); run(add[6:]); bar()
        rd, add = reduce_(NT - 1)
        run(rd); run(add)
```

```python
import sys, json
from common import *
from p1 import P1
from p2 import P2, NSL

HDR = open('cdna_kernels/' + KN + '.s.ref').read().split('; Override launch')[0]
def srd(e, base, nbytes): e(f"s_mov_b32 s{base+2}, {nbytes}\ns_mov_b32 s{base+3}, 0x20000")
WB = lambda st: WOFF + (st % NWS) * WSLOT
XB = lambda k: XOFF + k * XSLOT

def entry(e, opt, tm):
    e(f"s_cmp_ge_u32 s2, 256\ns_cbranch_scc1 L_done")
    if opt.get('cpf0', 1):
        e(f"s_getpc_b64 s[6:7]\nv_min_u32 v34, 15, v0\nv_lshlrev_b32 v34, 7, v34")
        e.touch(f"global_load_dword v{vDUM}, v34, s[6:7]")
    if opt.get('cpf', 1) == 1:
        assert opt['cpf_lines'] == 16
        e(f"s_lshr_b32 s3, s2, 3\ns_lshl_b32 s3, s3, 11\nv_add_u32 v35, s3, v34")
        e.touch(f"global_load_dword v{vDUM}, v35, s[6:7]")
    for base, off in [(SX, 0), (SPF, 8), (SW, 32), (SWS, 72), (SGATE, 48), (SW2, 40), (SWO, 16), (SOUT, 56), (SDBG, 64)]:
        e(f"s_load_dwordx2 s[{base}:{base+1}], s[0:1], {off}")
    e(f"""
    v_lshrrev_b32 v2, 6, v0
    v_and_b32 v1, 63, v0
    s_lshr_b32 s{sT1}, s2, 3
    v_readfirstlane_b32 s{sWV}, v2
    s_bfe_u32 s{sRB}, s2, 0x10002
    s_lshl_b32 s{sRB}, s{sRB}, 3
    s_and_b32 s{sT2}, s{sT1}, 7
    s_add_u32 s{sRB}, s{sRB}, s{sT2}
    s_and_b32 s{sC}, s2, 3
    s_lshl_b32 s{sC}, s{sC}, 1
    s_bfe_u32 s{sT2}, s2, 0x10006
    s_add_u32 s{sC}, s{sC}, s{sT2}
    s_lshr_b32 s{sROLE}, s2, 7
    """)
    p = P1(e, 'F', opt); p.rots = [0]
    if opt.get('ts3'): e("s_memtime s[88:89]")
    p.setup_first()
    if opt.get('ts3'): e("s_memtime s[90:91]")
    srd(e, SX, S*D*2)
    PF = opt.get('pf', '0D1')
    if PF and PF[0] != 'D': pf_setup(e)
    e(f"""
    s_mov_b32 s{SW+3}, 0x20000
    s_mov_b32 s{SPF+3}, 0x20000
    s_cmp_eq_u32 s{sROLE}, 0
    s_mov_b32 s{SW+2}, {640*1728*2}
    s_cselect_b32 s{SW+2}, {640*1920*2}, s{SW+2}
    s_mov_b32 s{SPF+2}, {640*1920*2}
    s_cselect_b32 s{SPF+2}, {640*1728*2}, s{SPF+2}
    """)
    e.wait_lg_all()
    if opt.get('ts3'):
        e("s_memtime s[92:93]"); e.wait_lg_all()
        for r in (88, 90, 92):
            e(f"v_writelane_b32 v{vTS}, s{r}, {tm.n}\nv_writelane_b32 v{vTS}, s{r}, {16+tm.n}"); tm.n += 1
        e(f"s_cmp_eq_u32 s{sROLE}, 0")
    e(f"""
    s_mov_b32 s4, s{SW}
    s_mov_b32 s5, s{SW+1}
    s_cselect_b32 s{SW}, s{SPF}, s{SW}
    s_cselect_b32 s{SW+1}, s{SPF+1}, s{SW+1}
    s_cselect_b32 s{SPF}, s4, s{SPF}
    s_cselect_b32 s{SPF+1}, s5, s{SPF+1}
    """)
    for c in (PF or 'D'):
        if c in '01':
            for f in pf_site(e, int(c), PF1): f()
        if c == 'D':
            for f in p.dma_x(0) + p.dma_w(0): f()
            if PF and PF[0] == 'D': pf_setup(e)
    if opt.get('ts2'): e("s_mov_b32 s98, s4\ns_mov_b32 s99, s5"); tm.stamp(); e("s_mov_b32 s4, s98\ns_mov_b32 s5, s99")
    if opt.get('cpf', 1) == 2:
        e(f"""
        s_getpc_b64 s[6:7]
        s_lshr_b32 s3, s2, 3
        s_mul_i32 s3, s3, {opt['cpf_lines']*128}
        v_lshl_add_u32 v34, v0, 7, s3
        v_cmp_gt_u32 vcc, {opt['cpf_lines']}, v0
        s_and_saveexec_b64 s[{sT0}:{sT0+1}], vcc
        """)
        e.touch(f"global_load_dword v{vDUM}, v34, s[6:7]")
        e(f"s_mov_b64 exec, s[{sT0}:{sT0+1}]")
    e(f"""
    s_lshl_b32 s{sT0}, s{sROLE}, 4
    s_add_u32 s{sT0}, s{sT0}, s{sRB}
    s_lshl_b32 s{sT0}, s{sT0}, 3
    s_add_u32 s{sT0}, s{sT0}, s{sC}
    s_lshl_b32 s{sT0}, s{sT0}, 5
    s_add_u32 s{sT0}, s{sT0}, s{sWV}
    s_lshl_b32 s{sT0}, s{sT0}, 2
    s_add_u32 s{sT0}, s{sT0}, {FLAG_OFF}
    v_mov_b32 v{vFlag}, {OOB}
    v_mov_b32 v{vPD}, 0
    v_writelane_b32 v{vFlag}, s{sT0}, 0
    """)
    srd(e, SWS, WS_BYTES)
    e.first_id = p.dma_ids[('w', 0)]
    srd(e, SGATE, 1280); srd(e, SW2, 1728*640*2); srd(e, SWO, 640*640*2)
    srd(e, SOUT, S*D*2); srd(e, SDBG, 256); srd(e, SH, 54*A2_STEP)
    e(f"s_mov_b32 s{SH}, s{SWS}\ns_mov_b32 s{SH+1}, s{SWS+1}")

def pf_setup(e):
    e(f"""
    s_lshr_b32 s{sT0}, s2, 3
    s_mul_i32 s{sT1}, s{sT0}, 13
    s_lshr_b32 s{sT1}, s{sT1}, 6
    s_mul_i32 s{sT2}, s{sT1}, 5
    s_sub_u32 s{sT2}, s{sT0}, s{sT2}
    s_cmp_lt_u32 s{sT0}, 30
    s_cselect_b32 s{sPG}, s{sT2}, 7
    s_and_b32 s{sT0}, s2, 7
    s_mul_i32 s{sT0}, s{sT0}, 6
    s_add_u32 s{sT0}, s{sT0}, s{sT1}
    s_lshl_b32 s{sT0}, s{sT0}, 2
    s_add_u32 s{sDP}, s{sT0}, s{sWV}
    s_mul_i32 s{sT0}, s{sDP}, {20*128}
    v_min_u32 v{vP}, 19, v1
    s_mul_i32 s{sT1}, s{sT2}, s{sKP}
    v_lshl_add_u32 v{vP}, v{vP}, 7, s{sT0}
    s_lshl_b32 s{sT1}, s{sT1}, 7
    s_mul_i32 s{sT3}, s{sT2}, {128*(3840+3456)}
    s_sub_u32 s{sT3}, s{sT3}, s{sT1}
    v_add_u32 v{vP+1}, s{sT3}, v{vP}
    v_add_u32 v{vP}, s{sT1}, v{vP}
    v_min_u32 v{vP+2}, 21, v1
    s_mul_i32 s{sT0}, s{sDP}, {11*1280}
    s_lshl_b32 s{sT1}, s{sT2}, 8
    v_and_b32 v34, 1, v{vP+2}
    s_add_u32 s{sT0}, s{sT0}, s{sT1}
    v_lshrrev_b32 v{vP+2}, 1, v{vP+2}
    v_lshl_add_u32 v34, v34, 7, s{sT0}
    v_mad_u32_u24 v{vP+2}, v{vP+2}, s{sE}, v34
    """.replace(f"    v_min_u32 v{vP+2}, 21, v1\n", f"    v_min_u32 v{vP+2}, 21, v1\n    s_movk_i32 s{sE}, 1280\n"))
def pf2_setup(e):
    e(f"""
    s_mul_i32 s{sT0}, s{sPG}, {4736*128}
    s_mul_i32 s{sT1}, s{sDP}, {25*128}
    s_add_u32 s{sT0}, s{sT0}, s{sT1}
    v_min_u32 v{vPF}, 24, v1
    v_lshl_add_u32 v{vPF}, v{vPF}, 7, s{sT0}
    v_subrev_u32 v{vP+3}, {1728*1280}, v{vPF}
    """)
def pf_site(e, g, what):
    def sel(): e(f"s_cmp_eq_u32 s{sPG}, {g}\ns_cselect_b32 s{sPS}, 0, {OOB}")
    sel.cost = ['s_x', 's_x']
    out = [sel]
    for v, srd_ in what:
        def f(v=v, srd_=srd_): e.touch(f"buffer_load_dword v{vDUM}, v{v}, s[{srd_}:{srd_+3}], s{sPS} offen")
        f.cost = ['buffer_x']; f.sep = 1
        out.append(f)
    return out
PF1 = [(vP + 2, SX), (vP, SW), (vP + 1, SPF)]
PF2 = [(vPF, SW2), (vP + 3, SWO)]

def role_code(e, role, opt, tm):
    A = role == 'A'
    run = lambda l: [x() if callable(x) else e(x) for x in l]
    p = P1(e, role, opt); p.tm = tm
    q = P2(e, role, opt, tm)
    aux = opt.get('aux', 'sc1'); PF = opt.get('pf', '0D1')
    p.setup()
    p.prologue_dma()
    e(f"buffer_store_dword v{vPD}, v{vFlag}, s[{SWS}:{SWS+3}], 0 offen sc1")
    p.prologue_dma2()
    if opt.get('ts2'): tm.stamp()
    p.setup_reads()
    T = p.vT
    def late():
        e(f"""
        s_lshl_b32 s{sT0}, s{sRB}, 4
        s_cmp_eq_u32 s{sWV}, 0
        s_cselect_b32 s{sT0}, s{sT0}, {OOB}
        v_mov_b32 v{T}, {OOB}
        v_mov_b32 v{T+1}, 1
        v_writelane_b32 v{T}, s{sT0}, 0
        ATOMIC
        """)
        if PF: pf2_setup(e)
        (p.att_consts if A else p.ffn_consts)()
        q.setup_early()
    late_l = scc_groups(e.capture(late))
    if opt.get('ts2'): tm.stamp()
    def extra(sch):
        lo = p.step0[1]; hi = p.step0[opt.get('late_end', 9)]
        for k, x in enumerate(late_l):
            pos = lo + k * (hi - lo) // len(late_l)
            if x == ['ATOMIC']:
                sch.add('cnt', f"buffer_atomic_add v{T+1}, v{T}, s[{SDBG}:{SDBG+3}], 0 offen sc1", early=p.bpos[2] + 1, dead=p.bpos[2] + 6, after=[p.bars[2]])
            else: sch.add('cnt', (lambda x=x: e('\n'.join(x))), early=pos, dead=max(pos, p.bpos[2] + 7) + 3, cost=x)
        if PF:
            sites = [(st, 2 + k, PF1) for k, st in enumerate(opt.get('pfs', [1, 5, 9]))] + [(st, k, PF2) for k, st in enumerate(opt.get('pfs2', [10, 11, 12, 13, 14]))]
            for st, g_, what in sorted(sites, key=lambda t: t[0]):
                for fn in pf_site(e, g_, what): sch.add('pf', fn, early=p.step0[st] + 1, dead=p.step0[st] + 14)
        g = p.step0[14]
        sch.add('cnt', q.poll_issue(q.vCnt, SDBG), early=g, dead=g + 6)
        g = p.step0[17]
        sch.add('cnt', q.poll_check(q.vCnt, 16, SDBG), early=g, dead=g + 6)
        for k, (st, base) in enumerate([(17, E0), (17, WB(15)), (18, WB(16)), (19, WB(17))]):
            fns = q.stage_dma(k, base)
            lo = p.bpos[st] + 1; span = p.bpos[st + 1] - lo
            if st == 17: span //= 2; lo += span * k
            for j, fn in enumerate(fns):
                pos = lo + j * span // len(fns)
                sch.add('dma', fn, early=pos, dead=pos + 2, after=[p.bars[st]])
        if A:
            p.att_lastloop(sch)
            g = p.step0[19] + 24
            sch.add('cnt', q.poll_issue(vPollH), early=g, dead=g + 6)
        else: p.ffn_lastloop(sch, aux)
    p.mainloop(extra); tm.stamp()
    if A:
        hooks = {}
        hooks['qk1'] = q.setup_tr2()
        hooks['bar'] = q.stage_dma(4, WB(18)) + q.stage_dma(5, WB(19)) + q.stage_dma(6, XB(0))
        h = []
        for i in range(4): h += q.stage_read(i)
        hooks['sm1'] = q.setup_late() + h
        h = []
        for i in range(4): h += q.stage_dma(7 + i, q.base[i])
        hooks['mid'] = [q.poll_check(vPollH, 1)] + q.first_loads(4)
        hooks['sm0'] = q.first_loads() + h
        p.epilogue_A(aux, hooks); tm.stamp()
        e(f"s_cmp_lg_u32 s{sOFF2}, 0\ns_cbranch_scc1 A_pub")
        snap = e.snapshot()
        def ex2(sch):
            g = opt.get('aflag', 24)
            sch.add('flag', q.set_flag(p.last_store), early=g, dead=g + 4)
        q.mainloop(4, 11, [], ex2)
    else:
        p.epilogue_F(); tm.stamp()
        e("s_barrier")
        run(q.setup_tr2())
        run(q.stage_dma(4, WB(18)) + q.stage_dma(5, WB(19)))
        run(q.setup_late())
        for i in range(4): run(q.stage_read(i))
        q.set_flag(p.last_store)(); tm.stamp()
        e(f"s_cmp_lg_u32 s{sOFF2}, 0\ns_cbranch_scc1 F_pub")
        snap = e.snapshot()
        free = [XB(0), XB(1)] + [q.base[i] for i in range(4)]
        nd = 6; nr = 4
        npoll = opt.get('npoll', 16)
        while nd < NSL:
            if nd == npoll: q.poll_issue(vPollH)()
            if not free:
                run(q.stage_read(nr)); free.append(q.base[nr]); nr += 1
            run(q.stage_dma(nd, free.pop(0))); nd += 1
        while nr < 12: run(q.stage_read(nr)); nr += 1
        q.poll_check(vPollH, 1)(); tm.stamp()
        weave(e, q.first_loads(), [x for i in range(12, 16) for x in q.stage_read(i)], start=8)
        q.mainloop(16, NSL, [])
    tm.stamp()
    if tm.on: e.wait_vm_all(); tm.stamp(); tm.flush()
    e("s_endpgm")
    e.restore(snap)
    e.raw(f"{role}_pub:")
    if A: q.set_flag(p.last_store)()
    tm.flush()
    e("s_endpgm")
    print(role, "over p1", p.over, "p2", q.over, file=sys.stderr)

def fused(opt):
    opt.setdefault('cpf_lines', 16)
    e = Emit(); k = KN + '_kernel'
    e.raw(kstart(k))
    tm = Stamps(e, opt.get('ts', 0)); tm.stamp()
    entry(e, opt, tm)
    e(f"s_cmp_eq_u32 s{sROLE}, 0\ns_cbranch_scc0 L_F")
    snap = e.snapshot(); n0 = tm.n
    role_code(e, 'A', opt, tm)
    e.restore(snap); tm.n = n0
    e.raw("L_F:")
    role_code(e, 'F', opt, tm)
    e.raw("L_done:")
    e("s_endpgm")
    print(e.stats, "nops", e.nops, file=sys.stderr)
    txt = HDR + f"; @launch grid=(256,1,1) block=(256,1,1) lds={LDS_END}\n"
    txt += '.amdgcn_target "amdgcn-amd-amdhsa--gfx950"\n.text\n' + e.text()
    txt += f"; padding: the code prefetch above reads {32*opt['cpf_lines']*128} bytes from the entry\n.fill (({32*opt['cpf_lines']*128} + 512 - (. - {k})) / 4), 4, 0xbf810000\n" + kdesc(k)
    return txt

if __name__ == '__main__':
    opt = json.loads(sys.argv[2]) if len(sys.argv) > 2 else {}
    open(sys.argv[1], 'w').write(fused(opt))
```

```python
from common import *
from sched import *

class P1:
    def __init__(self, e, role, opt):
        self.e = e; self.role = role; self.opt = opt
        A = role == 'A'
        self.pitch = 3840 if A else 3456
        v = 1
        self.vLane = v; v += 1
        self.vDw = v; v += 4
        self.vDx = v; v += 4
        self.vDh = v; v += 1
        self.vXo = v; v += 2
        self.vXh = v; v += 2
        self.vG = v; v += 1
        self.vWb = v; v += 8
        self.vT = v; v += 8
        assert v <= 32
        self.vXF = 32
        self.vWF = 64
        self.NF = opt.get('nf', 7) if A else opt.get('nfF', 5)
        self.vAcc = self.vWF + 4 * 8
        if A:
            b = self.vAcc
            self.accQ = lambda T, t: b + 20 * T + 4 * t
            self.accK = lambda T, t: b + 40 + 20 * T + 4 * t
            self.accV = lambda T, u: b + 80 + 20 * T + 4 * u
            self.hK, self.hV, self.hK4, self.hV4 = b + 120, b + 124, b + 128, b + 132
            self.accG = lambda T: b + 136 + 4 * T
            self.nacc = 144
        else:
            self.accF = lambda T, t: self.vAcc + 28 * T + 4 * t
            self.nacc = 112
        self.dma_ids = {}

    def setup(self):
        e = self.e; A = self.role == 'A'; T = self.vT; L = self.vLane
        self.rots = rots = self.opt.get('rots', [0])
        n = len(rots)
        if n > 1:
            e(f"s_and_b32 s{sT0}, s{sC}, 1")
            if n == 4: e(f"s_lshl_b32 s{sT0}, s{sT0}, 1\ns_add_u32 s{sT0}, s{sT0}, s{sROLE}")
            e(f"s_add_u32 s{sT0}, s{sT0}, s{sRB}\ns_and_b32 s{sT0}, s{sT0}, {n-1}\ns_mov_b32 s{sROT}, 0")
            for i, r in enumerate(rots[1:]):
                e(f"""
                s_cmp_eq_u32 s{sT0}, {i+1}
                s_cselect_b32 s{sROT}, {r}, s{sROT}
                s_cselect_b32 s{sDW+i}, {-19*32*self.pitch}, {32*self.pitch}
                s_cselect_b32 s{sDX+i}, {-9*128}, 128
                """.replace(f"s_cselect_b32 s{sDW+i}, {-19*32*self.pitch}, {32*self.pitch}", f"s_mov_b32 s{sT1}, {32*self.pitch}\ns_cselect_b32 s{sDW+i}, {-19*32*self.pitch}, s{sT1}").replace(f"s_cselect_b32 s{sDX+i}, {-9*128}, 128", f"s_movk_i32 s{sT1}, 128\ns_cselect_b32 s{sDX+i}, {-9*128}, s{sT1}"))
        if A:
            e(f"""
            s_lshl_b32 s{sM0H}, s{sWV}, 9
            s_add_u32 s{sM0H}, s{sM0H}, {XOFF}
            s_lshl_b32 s{sT1}, s{sWV}, 2
            v_lshrrev_b32 v{T}, 3, v{L}
            v_and_b32 v{T+2}, 7, v{L}
            v_add_u32 v{T+4}, s{sT1}, v{T}
            v_bfe_u32 v{T+5}, v{T+4}, 1, 3
            v_xor_b32 v{T+5}, v{T+5}, v{T+2}
            s_lshl_b32 s{sT0}, s{sRB}, 7
            s_sub_u32 s{sT0}, s{sT0}, 16
            v_add_u32 v{T+4}, s{sT0}, v{T+4}
            v_max_i32 v{T+4}, 0, v{T+4}
            v_mul_u32_u24 v{T+4}, 1280, v{T+4}
            v_lshl_add_u32 v{self.vDh}, v{T+5}, 4, v{T+4}
            """)

    def setup_first(self):
        e = self.e; T = self.vT; L = self.vLane
        e(f"""
        s_lshl_b32 s{sT0}, s{sRB}, 2
        s_add_u32 s{sT0}, s{sT0}, s{sWV}
        s_mul_i32 s{sT0}, s{sT0}, {32*1280}
        v_lshrrev_b32 v{T}, 3, v{L}
        v_and_b32 v{T+2}, 7, v{L}
        v_lshrrev_b32 v{T+3}, 4, v{L}
        v_mul_u32_u24 v{T+1}, 1280, v{T}
        v_xor_b32 v{T+4}, v{T+2}, v{T+3}
        v_add_u32 v{T+1}, s{sT0}, v{T+1}
        v_xor_b32 v{T+5}, 4, v{T+4}
        s_cmp_eq_u32 s{sROLE}, 0
        s_cselect_b32 s{sT0}, 69, 64
        s_cselect_b32 s{sT1}, 30, 32
        s_cselect_b32 s{sT2}, 205, 0
        s_movk_i32 s{sT3}, 3456
        s_cselect_b32 s{sKP}, 3840, s{sT3}
        s_movk_i32 s{sT3}, 448
        s_cselect_b32 s{sT3}, 160, s{sT3}
        v_lshl_add_u32 v{self.vDx}, v{T+4}, 4, v{T+1}
        v_lshl_add_u32 v{self.vDx+1}, v{T+5}, 4, v{T+1}
        v_mul_u32_u24 v{T}, s{sT0}, v{L}
        v_add_u32 v{self.vDx+1}, {8*1280-1024}, v{self.vDx+1}
        v_lshrrev_b32 v{T}, 11, v{T}
        v_add_u32 v{self.vDx+2}, {16*1280-2048}, v{self.vDx}
        v_mul_u32_u24 v{T+1}, s{sT1}, v{T}
        v_add_u32 v{self.vDx+3}, {16*1280-2048}, v{self.vDx+1}
        v_sub_u32 v{T+1}, v{L}, v{T+1}
        s_mul_i32 s{sT3}, s{sT3}, s{sC}
        v_mul_u32_u24 v{T+2}, s{sT2}, v{T+1}
        s_mul_i32 s{sT0}, s{sKP}, s{sWV}
        v_lshrrev_b32 v{T+2}, 11, v{T+2}
        s_lshl_b32 s{sT0}, s{sT0}, 3
        v_mad_i32_i24 v{T+1}, v{T+2}, -10, v{T+1}
        s_add_u32 s{sT0}, s{sT0}, s{sT3}
        v_mul_u32_u24 v{T+2}, 1280, v{T+2}
        s_lshl_b32 s{sT1}, s{sKP}, 2
        v_lshl_add_u32 v{T+2}, v{T+1}, 4, v{T+2}
        v_mul_u32_u24 v{T+3}, s{sT1}, v{T}
        v_lshrrev_b32 v{T}, 1, v{T}
        v_add3_u32 v{T+2}, v{T+2}, v{T+3}, s{sT0}
        v_lshl_add_u32 v{T}, v{T}, 5, v{T+1}
        v_mov_b32 v{T+3}, {OOB}
        v_cmp_gt_u32 vcc, 28, v{T}
        s_sub_u32 s{sT0}, s{sKP}, {WBLK}
        s_mul_i32 s{sM2}, s{sWV}, {4*WBLK}
        v_cndmask_b32 v{self.vDw}, v{T+3}, v{T+2}, vcc
        s_add_u32 s{sM0W}, s{sM2}, {WOFF}
        v_add_u32 v{self.vDw+1}, s{sT0}, v{self.vDw}
        s_lshl_b32 s{sM0X}, s{sWV}, 12
        v_add_u32 v{self.vDw+2}, s{sT0}, v{self.vDw+1}
        s_add_u32 s{sM0X}, s{sM0X}, {XOFF + 2048}
        v_add_u32 v{self.vDw+3}, s{sT0}, v{self.vDw+2}
        """)

    def setup_reads(self):
        e = self.e; A = self.role == 'A'; T = self.vT; L = self.vLane
        if not A: e(f"s_lshr_b32 s{sT0}, s{sWV}, 1\ns_lshl_b32 s{sT0}, s{sT0}, 13\ns_add_u32 s{sT0}, s{sT0}, {XOFF+2048}")
        e(f"""
        v_and_b32 v{T}, 15, v{L}
        v_lshrrev_b32 v{T+1}, 4, v{L}
        v_lshrrev_b32 v{T+2}, 1, v{T}
        v_xor_b32 v{T+2}, v{T+2}, v{T+1}
        v_lshlrev_b32 v{T+2}, 4, v{T+2}
        v_lshl_add_u32 v{T+2}, v{T}, 7, v{T+2}
        v_add_u32 v{self.vXh}, {XOFF}, v{T+2}
        v_xor_b32 v{T+3}, 64, v{T+2}
        v_add_u32 v{self.vXh+1}, {XOFF}, v{T+3}
        v_add_u32 v{self.vXo}, s{sM0X if A else sT0}, v{T+2}
        v_add_u32 v{self.vXo+1}, s{sM0X if A else sT0}, v{T+3}
        v_lshlrev_b32 v{self.vG}, 4, v{T+1}
        v_add_u32 v{self.vG}, {GOFF}, v{self.vG}
        v_lshrrev_b32 v{T+4}, 2, v{L}
        v_mul_u32_u24 v{T+4}, {WBLK}, v{T+4}
        v_add_u32 v{T+4}, {WOFF}, v{T+4}
        v_and_b32 v{T+5}, 3, v{L}
        v_lshl_add_u32 v{self.vWb+2}, v{T+5}, 3, v{T+4}
        v_add_u32 v{self.vWb+3}, {3*WSLOT}, v{self.vWb+2}
        """)
        if A:
            e(f"""
            v_mul_u32_u24 v{T+5}, 40, v{T+5}
            v_add_u32 v{self.vWb}, v{T+5}, v{T+4}
            v_add_u32 v{self.vWb+1}, {3*WSLOT}, v{self.vWb}
            s_lshl_b32 s{sT0}, s{sWV}, 3
            v_add_u32 v{self.vWb+4}, s{sT0}, v{self.vWb}
            v_add_u32 v{self.vWb+5}, s{sT0}, v{self.vWb+1}
            s_mul_i32 s{sT0}, s{sWV}, 40
            v_add_u32 v{self.vWb+6}, s{sT0}, v{self.vWb+2}
            v_add_u32 v{self.vWb+7}, s{sT0}, v{self.vWb+3}
            """)
        else:
            e(f"""
            s_and_b32 s{sT0}, s{sWV}, 1
            s_lshl_b32 s{sT1}, s{sT0}, 5
            s_add_u32 s{sT1}, s{sT1}, 192
            v_add_u32 v{self.vWb}, s{sT1}, v{self.vWb+2}
            v_add_u32 v{self.vWb+1}, s{sT1}, v{self.vWb+3}
            s_lshl_b32 s{sT1}, s{sT0}, 8
            v_add_u32 v{self.vWb+2}, s{sT1}, v{self.vWb+2}
            v_add_u32 v{self.vWb+3}, s{sT1}, v{self.vWb+3}
            """)

    def dma_w(self, st):
        e = self.e; out = []
        slot = st % NWS
        out.append(lambda: e(f"s_add_u32 m0, s{sM0W}, {slot*WSLOT}"))
        def first():
            wr = [i for i, r in enumerate(self.rots[1:]) if 20 - r == st]
            if st == 0: e(f"s_mul_i32 s{sKW}, s{sROT}, {32*self.pitch}" if len(self.rots) > 1 else f"s_mov_b32 s{sKW}, 0")
            elif wr: e(f"s_add_u32 s{sKW}, s{sKW}, s{sDW+wr[0]}")
            elif self.opt.get('kfix'): e(f"s_mov_b32 s{sKW}, {(st % self.opt['kfix'])*32*self.pitch}")
            else: e(f"s_add_u32 s{sKW}, s{sKW}, {32*self.pitch}")
        out.append(first)
        for p in range(4):
            def f(p=p):
                if self.opt.get('now') and st > 1: self.dma_ids[('w', st)] = -1; return
                self.dma_ids[('w', st)] = e(f"buffer_load_dwordx4 v{self.vDw+p}, s[{SW}:{SW+3}], s{sKW} offen offset:{p*WBLK} lds")
            f.dma = 1; f.cost = ['buffer_x']
            out.append(f)
        return out
    def x_m0(self, a):
        return lambda: self.e(f"s_add_u32 m0, s{sM0X}, {(a % NXS)*XSLOT}")
    def dma_x(self, a):
        e = self.e; out = []
        slot = a % NXS
        out.append(lambda: e(f"s_add_u32 m0, s{sM0X}, {slot*XSLOT}"))
        def first():
            wr = [i for i, r in enumerate(self.rots[1:]) if 20 - r == 2 * a]
            if a == 0: e(f"s_lshl_b32 s{sKX}, s{sROT}, 6" if len(self.rots) > 1 else f"s_mov_b32 s{sKX}, 0")
            elif wr: e(f"s_add_u32 s{sKX}, s{sKX}, s{sDX+wr[0]}")
            elif self.opt.get('kfix'): e(f"s_mov_b32 s{sKX}, {(a % (self.opt['kfix']//2))*128}")
            else: e(f"s_add_u32 s{sKX}, s{sKX}, 128")
        out.append(first)
        for p in range(4):
            def f(p=p):
                if self.opt.get('nox') and a > 0: self.dma_ids[('x', a)] = -1; return
                self.dma_ids[('x', a)] = e(f"buffer_load_dwordx4 v{self.vDx+p}, s[{SX}:{SX+3}], s{sKX} offen offset:{p*1024} lds")
            f.dma = 1; f.cost = ['buffer_x']
            out.append(f)
        if self.role == 'A':
            out.append(lambda: e(f"s_add_u32 m0, s{sM0H}, {slot*XSLOT}"))
            def h():
                e(f"s_mov_b32 exec_hi, 0")
                self.dma_ids[('x', a)] = e(f"buffer_load_dwordx4 v{self.vDh}, s[{SX}:{SX+3}], s{sKX} offen lds")
                e(f"s_mov_b32 exec_hi, -1")
            h.cost = ['s_x', 'buffer_x', 's_x']; h.dma = 1
            out.append(h)
        return out

    def frags(self):
        fr = []
        if self.role == 'A':
            for t in range(5): fr.append((0, 8*t, [('WX', self.accQ(0, t), 0), ('WX', self.accQ(1, t), 1)]))
            for t in range(5):
                m = [('WX', self.accK(0, t), 0), ('WX', self.accK(1, t), 1)]
                if t == 4: m.append(('WX', self.hK4, 2))
                fr.append((0, 160 + 8*t, m))
            for u in range(5):
                m = [('XW', self.accV(0, u), 0), ('XW', self.accV(1, u), 1)]
                if u == 4: m.append(('XW', self.hV4, 2))
                if u < 4: fr.append((2, 320 + 40*u, m))
                else: fr.append((0, 320 + 32, m))
            fr.append((4, 160, [('WX', self.hK, 2), ('GX', self.accG(0), 0)]))
            fr.append((6, 320, [('XW', self.hV, 2), ('GX', self.accG(1), 1)]))
            self.hstride = 480
        else:
            for t in range(7): fr.append((2 if t < 6 else 0, 32*t if t < 6 else 0, [('WX', self.accF(Tt, t), Tt) for Tt in range(4)]))
            self.hstride = 512
        return fr
    def read_frag(self, gf):
        e = self.e
        fr = self.fr; st, f = divmod(gf, len(fr))
        pat, off, _ = fr[f]
        slot = st % NWS
        base = self.vWb + pat + (1 if slot >= 3 else 0)
        o = (slot - (3 if slot >= 3 else 0)) * WSLOT + off
        d = self.vWF + 4 * (gf % self.NF)
        return [f"ds_read_b64_tr_b16 v[{d}:{d+1}], v{base} offset:{o}",
                f"ds_read_b64_tr_b16 v[{d+2}:{d+3}], v{base} offset:{o+self.hstride}"]
    def read_x(self, st):
        a, kk = divmod(st, 2); slot = a % NXS
        b = self.vXF + 16 * (st & 1)
        out = [f"ds_read_b128 v[{b}:{b+3}], v{self.vXo+kk} offset:{slot*XSLOT}",
               f"ds_read_b128 v[{b+4}:{b+7}], v{self.vXo+kk} offset:{slot*XSLOT+2048}"]
        if self.role == 'A':
            out += [f"ds_read_b128 v[{b+8}:{b+11}], v{self.vXh+kk} offset:{slot*XSLOT}",
                    f"ds_read_b128 v[{b+12}:{b+15}], v{self.vG} offset:{st*64}"]
        else:
            out += [f"ds_read_b128 v[{b+8}:{b+11}], v{self.vXo+kk} offset:{slot*XSLOT+4096}",
                    f"ds_read_b128 v[{b+12}:{b+15}], v{self.vXo+kk} offset:{slot*XSLOT+6144}"]
        return out
    def mfma(self, st, gf, spec):
        kind, acc, xi = spec
        w = self.vWF + 4 * (gf % self.NF); x = self.vXF + 16 * (st & 1) + 4 * xi
        if kind == 'GX': w = self.vXF + 16 * (st & 1) + 12
        a, b = (x, w) if kind == 'XW' else (w, x)
        c = f"v[{acc}:{acc+3}]" if st > 0 else "0"
        return f"v_mfma_f32_16x16x32_bf16 v[{acc}:{acc+3}], v[{a}:{a+3}], v[{b}:{b+3}], {c}"

    def barrier_for(self, st):
        e = self.e
        ids = [self.dma_ids[('w', st)]]
        if st % 2 == 0: ids.append(self.dma_ids[('x', st // 2)])
        live = [i for i in ids if i in e.vm]
        if live: e.wait_vm(max(live, key=e.vm.index))
        if not (self.opt.get('nobar') and st > 0): e("s_barrier")

    def prologue_dma(self):
        e = self.e
        if self.role == 'A':
            T = self.vT
            e(f"""
            s_mul_i32 s{sT0}, s{sWV}, 320
            s_add_u32 m0, s{sT0}, {GOFF}
            v_lshl_add_u32 v{T}, v{self.vLane}, 4, s{sT0}
            """)
            if len(self.rots) > 1:
                e(f"""
                s_lshl_b32 s{sT1}, s{sROT}, 6
                v_add_u32 v{T}, s{sT1}, v{T}
                v_subrev_u32 v{T+1}, 1280, v{T}
                v_min_u32 v{T}, v{T}, v{T+1}
                """)
            e(f"""
            s_mov_b64 exec, 0xfffff
            buffer_load_dwordx4 v{T}, s[{SGATE}:{SGATE+3}], 0 offen lds
            s_mov_b64 exec, -1
            """)
            for f in self.dma_x(0)[6:]: f()
        self.halo_id = e.vm[-1]
        self.dma_ids[('w', 0)] = self.dma_ids[('x', 0)] = e.first_id
        self.pre_issued = [('x', 0), ('w', 0), ('w', 1), ('x', 1), ('w', 2), ('w', 3), ('x', 2), ('w', 4)][:self.opt.get('npre', 2)]
    def prologue_dma2(self):
        for item in self.pre_issued[2:]:
            for f in (self.dma_x if item[0] == 'x' else self.dma_w)(item[1]): f()

    def mainloop(self, extra=None):
        e = self.e; opt = self.opt
        self.fr = fr = self.frags(); nf = len(fr); NF = self.NF
        NST = 20
        sch = Sched(e)
        first = {}; last = {}
        for st in range(NST):
            for f in range(nf):
                gf = st * nf + f
                for spec in fr[f][2]:
                    i = sch.main(self.mfma(st, gf, spec) if not opt.get('nomfma') else (lambda: None))
                    first.setdefault(gf, i); last[gf] = i
        step0 = [first[st * nf] for st in range(NST)] + [len(sch.mains)]
        self.step0 = step0
        lead = opt.get('lead', 9) if self.role == 'A' else opt.get('leadF', 12)
        ids = {}
        bars = {}
        self.barrier_for(0); self.tm.stamp()
        bpos = [-2] + [step0[st] - lead - 1 for st in range(1, NST)] + [step0[NST] - lead - 1]
        if self.role == 'A':
            def b0(): e.wait_vm(self.halo_id); e("s_barrier")
            sch.add('bar', b0, early=8, dead=8, cost=['s_x', 's_barrier'])
        for st in range(1, NST):
            def b(st=st): self.barrier_for(st)
            bars[st] = sch.add('bar', b, early=bpos[st], dead=bpos[st], cost=['s_x', 's_barrier'])
        self.bars = bars; self.bpos = bpos
        for st in range(NST):
            xr = self.read_x(st)
            l = []
            for f in range(nf):
                gf = st * nf + f
                rf = [(x, gf) for x in self.read_frag(gf)]
                l += rf if f else [rf[0], (xr[0], None), rf[1], (xr[1], None)]
                fx = (4, 8) if st else (9, 11)
                if self.role == 'A' and f in fx: l.append((xr[2 + (f == fx[1])], 'late' if st == 0 else None))
                if self.role == 'F' and f == 0: l += [(xr[2], None), (xr[3], None)]
            lo = bpos[st] + 1; G = bpos[st + 1] - lo
            if st == 0: lo = -lead; G = bpos[1] - lo
            for k, (x, gf) in enumerate(l):
                g = max(-1, lo + k * G // len(l))
                if gf == 'late': assert g > 8; gf = None
                if gf is not None and gf >= NF: assert g >= last[gf - NF], (st, gf, g, last[gf - NF])
                if gf is not None: assert g < first[gf] - 2 or st == 0, (st, gf, g, first[gf])
                def r(x=x, gf=gf):
                    if not opt.get('nomfma'): ids[gf] = e(x)
                sch.add('rd', r, early=g, dead=g, cost=[x])
        WG = opt.get('wg', 2) if self.role == 'A' else 1
        ng = NST * nf
        for gf in range(0, ng, WG):
            tgt = min(gf + WG - 1, ng - 1)
            def w(tgt=tgt):
                if tgt in ids: e.wait_lg(ids[tgt])
            if gf > 0: sch.add('wait', w, early=first[gf] - 2, dead=first[gf] - 1)
        pre = self.pre_issued
        per = [[] for _ in range(NST)]
        xsplit = {}
        for st in range(NST):
            l = []
            for s2 in range(NST):
                if ('w', s2) not in pre and max(s2 - 3, 0) == st: l.append((s2, self.dma_w(s2)))
            for a in range(10):
                if ('x', a) in pre: continue
                st0 = max(2 * (a - 2), 0)
                if st0 == st:
                    fns = self.dma_x(a)
                    if a >= 3 and opt.get('xsplit', 1):
                        l.append((2 * a - 0.5, fns[:5])); xsplit[st + 1] = (2 * a - 0.5, [self.x_m0(a)] + fns[5:])
                    else: l.append((2 * a - 0.5, fns))
            if st in xsplit: l.append(xsplit[st])
            l.sort(key=lambda t: t[0] + (opt.get('xlate', 0) if t[0] != int(t[0]) else 0))
            for _, fns in l: per[st] += fns
        for st in range(NST):
            fns = per[st]
            nd = sum(1 for f in fns if getattr(f, 'dma', 0))
            b0 = max(bpos[st], -1)
            k = 0; span = int((bpos[st + 1] - b0 - 1) * opt.get('dspan' + self.role, 1.0))
            for fn in fns:
                pos = b0 + 1 + int((k + opt.get('dph', 0.3)) * span / max(nd, 1))
                if getattr(fn, 'dma', 0): k += 1; fn.sep = 1
                else: pos -= 3
                if opt.get('nodma') and getattr(fn, 'dma', 0):
                    for q in range(20): self.dma_ids.setdefault(('w', q), -1); self.dma_ids.setdefault(('x', q), -1)
                    continue
                sch.add('dma', fn, early=pos, dead=min(pos + opt.get('dslack', 2), bpos[st + 1] - 1), after=[bars.get(st)])
        if self.tm.on and not opt.get('ts2') and not opt.get('ts4'):
            for st in opt.get('tsst', (5, 10)): sch.add('ts', self.tm.stamp, early=step0[st], dead=step0[st])
        if extra: extra(sch)
        sch.run()
        self.over = sch.over

    def ffn_consts(self):
        e = self.e
        e(f"""
        s_mul_i32 s{sT0}, s{sC}, {7*A2_STEP}
        s_lshl_b32 s{sT1}, s{sRB}, 13
        s_add_u32 s{sT0}, s{sT0}, s{sT1}
        s_lshr_b32 s{sT1}, s{sWV}, 1
        s_lshl_b32 s{sT1}, s{sT1}, 12
        s_add_u32 s{sT0}, s{sT0}, s{sT1}
        s_and_b32 s{sT1}, s{sWV}, 1
        s_lshl_b32 s{sT2}, s{sT1}, 9
        s_add_u32 s{sT2}, s{sT2}, {3*A2_STEP}
        s_add_u32 s{sE+3}, s{sT0}, s{sT2}
        s_lshl_b32 s{sT1}, s{sT1}, 19
        s_add_u32 s{sE}, s{sT0}, s{sT1}
        s_add_u32 s{sE+1}, s{sE}, {A2_STEP}
        s_add_u32 s{sE+2}, s{sE}, {2*A2_STEP}
        v_lshlrev_b32 v{self.vT+4}, 4, v{self.vLane}
        v_lshlrev_b32 v{self.vT+5}, 3, v{self.vLane}
        """)
    def ffn_groups(self, aux):
        e = self.e; out = []
        def st(x):
            def f(): self.last_store = e(x)
            f.cost = [x]
            return f
        for m in range(4):
            for Tt in range(4):
                a = self.accF(Tt, 2*m); n = 4 if m < 3 else 2
                l = [f"v_cvt_pk_bf16_f32 v{a+i}, v{a+2*i}, v{a+2*i+1}" for i in range(n)]
                l += [f"v_pk_max_i16 v{a+i}, v{a+i}, 0" for i in range(n)]
                if m < 3: l.append(st(f"buffer_store_dwordx4 v[{a}:{a+3}], v{self.vT+4}, s[{SH}:{SH+3}], s{sE+m} offen offset:{Tt*1024} {aux}"))
                else: l.append(st(f"buffer_store_dwordx2 v[{a}:{a+1}], v{self.vT+5}, s[{SH}:{SH+3}], s{sE+3} offen offset:{Tt*1024} {aux}"))
                out.append((4 * min(2*m + 1, 6) + Tt, l))
        return out
    def ffn_lastloop(self, sch, aux):
        g0 = self.step0[19]; n = self.step0[20]
        self.ffn_rest = []
        pos = g0
        for rdy, l in self.ffn_groups(aux):
            pos = max(pos, g0 + rdy + 5)
            if pos + 4 < n and not self.ffn_rest:
                for k, x in enumerate(l): sch.add('cv', x, early=pos + k // 2, dead=pos + k // 2 + 1)
                pos += 4
            else: self.ffn_rest += l
    def epilogue_F(self, side=()):
        weave(self.e, self.ffn_rest, list(side))

    def att_consts(self):
        e = self.e; T = self.vT; L = self.vLane
        sPar, sM0, sM1, sG1, sG2, sG3 = [sMASK + 2 * i for i in range(6)]
        vSel = T + 4
        e(f"""
        v_and_b32 v{T}, 15, v{L}
        v_lshrrev_b32 v{T+1}, 4, v{L}
        v_and_b32 v{T+2}, 1, v{L}
        v_cmp_eq_u32 s[{sPar}:{sPar+1}], 1, v{T+2}
        v_lshl_add_u32 v{T+3}, v{T+1}, 2, v{T+2}
        v_cmp_le_u32 s[{sM0}:{sM0+1}], v{T+3}, v{T}
        v_add_u32 v{T+3}, 2, v{T+3}
        v_cmp_le_u32 s[{sM1}:{sM1+1}], v{T+3}, v{T}
        v_cmp_eq_u32 s[{sG1}:{sG1+1}], 1, v{T+1}
        v_cmp_eq_u32 s[{sG2}:{sG2+1}], 2, v{T+1}
        v_cmp_eq_u32 s[{sG3}:{sG3+1}], 3, v{T+1}
        v_mov_b32 v{T}, 0x0c0c0100
        v_mov_b32 v{T+1}, 0x01000c0c
        v_cndmask_b32 v{T}, v{T}, v{T+1}, s[{sPar}:{sPar+1}]
        v_mov_b32 v{T+1}, 0x0c0c0302
        v_mov_b32 v{T+2}, 0x03020c0c
        v_cndmask_b32 v{T+1}, v{T+1}, v{T+2}, s[{sPar}:{sPar+1}]
        v_mov_b32 v{T+2}, 0x0c0c0c0c
        v_cndmask_b32 v{vSel}, v{T}, v{T+2}, s[{sM0}:{sM0+1}]
        v_cndmask_b32 v{vSel+1}, v{T+1}, v{T+2}, s[{sM1}:{sM1+1}]
        v_cndmask_b32 v{vSel+2}, v{T+2}, v{T}, s[{sM0}:{sM0+1}]
        v_cndmask_b32 v{vSel+3}, v{T+2}, v{T+1}, s[{sM1}:{sM1+1}]
        s_lshr_b32 s{sT0}, s{sC}, 1
        s_lshl_b32 s{sE+3}, s{sT0}, 13
        s_mul_i32 s{sT0}, s{sT0}, 5
        s_add_u32 s{sT0}, s{sT0}, 54
        s_and_b32 s{sT1}, s{sC}, 1
        s_mul_i32 s{sT2}, s{sT1}, 3
        s_add_u32 s{sT2}, s{sT2}, s{sT0}
        s_lshl_b32 s{sT2}, s{sT2}, 17
        s_add_u32 s{sT0}, s{sT0}, 2
        s_lshl_b32 s{sT0}, s{sT0}, 17
        s_lshl_b32 s{sT1}, s{sT1}, 9
        s_add_u32 s{sT0}, s{sT0}, s{sT1}
        s_lshl_b32 s{sT1}, s{sRB}, 13
        s_lshl_b32 s{sT3}, s{sWV}, 11
        s_add_u32 s{sT1}, s{sT1}, s{sT3}
        s_add_u32 s{sE}, s{sT0}, s{sT1}
        s_add_u32 s{sE+1}, s{sT2}, s{sT1}
        s_add_u32 s{sE+2}, s{sE+1}, {A2_STEP}
        s_lshr_b32 s{sT1}, s{sT1}, 4
        s_add_u32 s{sT1}, s{sT1}, {G_OFF}
        s_add_u32 s{sE+3}, s{sE+3}, s{sT1}
        s_bitcmp1_b32 s{sC}, 0
        s_cselect_b32 s{sT1}, {OOB}, 0
        s_add_u32 s{sE+3}, s{sE+3}, s{sT1}
        s_or_b32 s{sT1}, s{sRB}, s{sWV}
        s_cmp_eq_u32 s{sT1}, 0
        s_cselect_b32 s{sE+4}, 0xff800000, 0
        s_mov_b32 s{sE+5}, {f2h(1.4426950408889634 * 20 ** -0.5)}
        """)

    EX = XOFF + XSLOT
    @staticmethod
    def cvt2(d, a): return [f"v_cvt_pk_bf16_f32 v{d}, v{a}, v{a+1}", f"v_cvt_pk_bf16_f32 v{d+1}, v{a+2}, v{a+3}"]

    def att_lastloop(self, sch):
        e = self.e; L = self.vLane
        g0 = self.step0[19]
        pre = [f"s_add_u32 s{sT0}, s{sWV}, 1", f"s_mul_i32 s{sT0}, s{sT0}, 5120", f"s_add_u32 s{sT0}, s{sT0}, {self.EX}",
               f"v_lshlrev_b32 v{self.vDx+1}, 3, v{L}", f"v_add_u32 v{self.vDx}, s{sT0}, v{self.vDx+1}",
               f"s_lshl_b32 s{sT0}, s{sWV}, 9", f"s_add_u32 s{sT0}, s{sT0}, {self.EX}",
               f"v_add_u32 v{self.vDx+2}, s{sT0}, v{self.vDx+1}", f"v_add_u32 v{self.vDx+3}, {self.EX}, v{self.vDx+1}",
               f"v_lshlrev_b32 v{self.vDw}, 4, v{L}", f"v_and_b32 v{self.vDw+1}, 15, v{L}", f"v_lshlrev_b32 v{self.vDw+1}, 2, v{self.vDw+1}"]
        for k, x in enumerate(pre): sch.add('cv', x, early=g0 - 14 + k, dead=g0 + 4)
        lag = 5
        for t in range(5):
            for Tt in (0, 1):
                for x in self.cvt2(self.accQ(Tt, t), self.accQ(Tt, t)): sch.add('cv', x, early=g0 + 2*t + Tt + lag, dead=g0 + 30)
        for t in range(5):
            for Tt in (0, 1):
                for x in self.cvt2(self.accK(Tt, t), self.accK(Tt, t)): sch.add('cv', x, early=g0 + 10 + 2*t + Tt + lag, dead=g0 + 34)
        for x in self.cvt2(self.hK4, self.hK4): sch.add('cv', x, early=g0 + 20 + lag, dead=g0 + 35)

    def epilogue_A(self, aux='', hooks=None):
        e = self.e; T = self.vT; L = self.vLane; hooks = hooks or {}
        sPar, sM0, sM1, sG1, sG2, sG3 = [sMASK + 2 * i for i in range(6)]
        vSel = T + 4; cvt2 = self.cvt2
        H = lambda n: list(hooks.get(n, []))
        Vp = lambda Tt, u: 32 + 6 * u + 2 * (Tt + 1)
        Kp = lambda Tt, t: self.accK(Tt, t) if Tt >= 0 else self.hK + 2 * t
        Qp = self.accQ
        Sc = {1: 62, 0: 176}; Sp = {1: 78, 0: 192}
        vE, vE8, vEh, vE0 = self.vDx, self.vDx + 1, self.vDx + 2, self.vDx + 3
        def qk(Tt):
            l = []
            for t in range(5):
                for (Sr, kt) in ((Sc[Tt], Tt), (Sp[Tt], Tt - 1)):
                    c = f"v[{Sr}:{Sr+15}]" if t else "0"
                    l.append(f"v_mfma_f32_16x16x4_4b_bf16 v[{Sr}:{Sr+15}], v[{Kp(kt,t)}:{Kp(kt,t)+1}], v[{Qp(Tt,t)}:{Qp(Tt,t)+1}], {c}")
            return l
        side = [f"ds_write_b64 v{vE}, v[{Kp(1,t)}:{Kp(1,t)+1}] offset:{512*t}" for t in range(5)]
        side.append(f"ds_write_b64 v{vE0}, v[{self.hK4}:{self.hK4+1}] offset:2048")
        for u in range(5):
            side += cvt2(Vp(1, u), self.accV(1, u)) + [f"ds_write_b64 v{vE}, v[{Vp(1,u)}:{Vp(1,u)+1}] offset:{2560+512*u}"]
        side += cvt2(self.hV4, self.hV4) + [f"ds_write_b64 v{vE0}, v[{self.hV4}:{self.hV4+1}] offset:{2560+2048}"]
        side += cvt2(self.hK, self.hK) + [f"ds_write_b64 v{vEh}, v[{self.hK}:{self.hK+1}]"]
        side += cvt2(self.hV, self.hV) + [f"ds_write_b64 v{vEh}, v[{self.hV}:{self.hV+1}] offset:2560"]
        for u in range(5): side += cvt2(Vp(0, u), self.accV(0, u))
        side.append(f"v_subrev_u32 v{vE}, 5120, v{vE}")
        TS = self.tm.stamp if self.opt.get('ts4') else (lambda: None)
        weave(e, qk(1), side + H('qk1')); TS()
        e.wait_lg_all(); e("s_barrier")
        for t in range(5): e(f"ds_read_b64 v[{Kp(-1,t)}:{Kp(-1,t)+1}], v{vE} offset:{512*t}")
        for u in range(5): e(f"ds_read_b64 v[{Vp(-1,u)}:{Vp(-1,u)+1}], v{vE} offset:{2560+512*u}")
        gate = []
        for op in range(5):
            for Tt in range(2):
                g = self.accG(Tt)
                gate.append([f"v_mul_f32 v{g}, {f2h(-1.4426950408889634)}, v{g}", f"v_exp_f32 v{g}, v{g}", f"v_add_f32 v{g}, 1.0, v{g}",
                             f"v_rcp_f32 v{g}, v{g}", f"v_sub_f32 v{g+1}, 1.0, v{g}"][op])
        for Tt in range(2):
            gate.append(f"buffer_store_dword v{self.accG(Tt)+1}, v{self.vDw+1}, s[{SWS}:{SWS+3}], s{sE+3} offen offset:{64*Tt} {aux}")
        weave(e, gate, H('bar')); TS()
        def softmax(Tt):
            sc, sp = Sc[Tt], Sp[Tt]; l = []
            m0 = [sc + 4*bb for bb in range(4)]; m1 = [sc + 4*bb + 2 for bb in range(4)]
            for bb in range(4):
                c0, p0 = sc + 4*bb, sp + 4*bb
                l += [f"v_cndmask_b32 v{c0}, v{c0}, v{c0+1}, s[{sPar}:{sPar+1}]", f"v_cndmask_b32 v{c0+2}, v{c0+2}, v{c0+3}, s[{sPar}:{sPar+1}]",
                      f"v_cndmask_b32 v{p0}, v{p0}, v{p0+1}, s[{sPar}:{sPar+1}]", f"v_cndmask_b32 v{p0+2}, v{p0+2}, v{p0+3}, s[{sPar}:{sPar+1}]"]
                if Tt == 0: l += [f"v_add_f32 v{p0}, s{sE+4}, v{p0}", f"v_add_f32 v{p0+2}, s{sE+4}, v{p0+2}"]
            for bb in range(4):
                c0, p0 = sc + 4*bb, sp + 4*bb
                l += [f"v_cndmask_b32 v{c0}, v{p0}, v{c0}, s[{sM0}:{sM0+1}]"]
            for bb in range(4):
                c0, p0 = sc + 4*bb, sp + 4*bb
                l += [f"v_cndmask_b32 v{c0+2}, v{p0+2}, v{c0+2}, s[{sM1}:{sM1+1}]"]
            for m in (m0, m1): l += [f"v_permlane32_swap_b32 v{m[0]}, v{m[2]}", f"v_permlane32_swap_b32 v{m[1]}, v{m[3]}"]
            for m in (m0, m1): l += [f"v_permlane16_swap_b32 v{m[0]}, v{m[1]}", f"v_permlane16_swap_b32 v{m[2]}, v{m[3]}"]
            vals = m0 + m1; t0, t1 = sp, sp + 1
            l += [f"v_max3_f32 v{t0}, v{vals[0]}, v{vals[1]}, v{vals[2]}", f"v_max3_f32 v{t1}, v{vals[3]}, v{vals[4]}, v{vals[5]}",
                  f"v_max3_f32 v{t0}, v{t0}, v{vals[6]}, v{vals[7]}", f"v_max_f32 v{t0}, v{t0}, v{t1}", f"v_mul_f32 v{t0}, s{sE+5}, v{t0}"]
            l += [f"v_fma_f32 v{x}, v{x}, s{sE+5}, -v{t0}" for x in vals]
            l += [f"v_exp_f32 v{x}, v{x}" for x in vals]
            l += [f"v_add_f32 v{t0}, v{vals[0]}, v{vals[1]}", f"v_add_f32 v{t1}, v{vals[2]}, v{vals[3]}", f"v_add_f32 v{t0+2}, v{vals[4]}, v{vals[5]}",
                  f"v_add_f32 v{t0}, v{t0}, v{t1}", f"v_add_f32 v{t0+3}, v{vals[6]}, v{vals[7]}", f"v_add_f32 v{t0}, v{t0}, v{t0+2}",
                  f"v_add_f32 v{t0}, v{t0}, v{t0+3}", f"v_rcp_f32 v{t0}, v{t0}", f"v_mul_f32 v{t0}, v{t0}, v{self.accG(Tt)}"]
            l += [f"v_mul_f32 v{x}, v{t0}, v{x}" for x in (vals[0], vals[4], vals[2], vals[6], vals[1], vals[5], vals[3], vals[7])]
            P = [sp + 4 + i for i in range(4)]
            l += [f"v_cvt_pk_bf16_f32 v{P[i]}, v{m0[i]}, v{m1[i]}" for i in (0, 2, 1, 3)]
            l += [f"v_permlane32_swap_b32 v{P[0]}, v{P[2]}", f"v_permlane32_swap_b32 v{P[1]}, v{P[3]}",
                  f"v_permlane16_swap_b32 v{P[0]}, v{P[1]}", f"v_permlane16_swap_b32 v{P[2]}, v{P[3]}"]
            for bb in range(4): l += [f"v_perm_b32 v{sc+4*bb+i}, v{P[bb]}, v{P[bb]}, v{vSel+i}" for i in range(4)]
            return l
        O = [96 + 4*i for i in range(8)]
        def pv(Tt):
            sc = Sc[Tt]; l = []
            for bb in range(4):
                l.append(f"v_mfma_f32_16x16x32_bf16 v[{O[bb]}:{O[bb]+3}], v[{Vp(Tt-1,bb)}:{Vp(Tt-1,bb)+3}], v[{sc+4*bb}:{sc+4*bb+3}], 0")
            for bb in range(4):
                l.append(f"v_mfma_f32_16x16x32_bf16 v[{O[4+bb]}:{O[4+bb]+3}], v[{Vp(Tt-1,4)}:{Vp(Tt-1,4)+3}], v[{sc+4*bb}:{sc+4*bb+3}], 0")
            return l
        def final(Tt):
            sp = Sp[Tt]; o = sp + 8; o4 = sp; l = []
            def st(x):
                def f(): self.last_store = e(x)
                return f
            for bb in range(4): l += cvt2(o + 2*bb, O[bb])
            l.insert(4, st(f"buffer_store_dwordx4 v[{o}:{o+3}], v{self.vDw}, s[{SWS}:{SWS+3}], s{sE+1} offen offset:{1024*Tt} {aux}"))
            l.append(st(f"buffer_store_dwordx4 v[{o+4}:{o+7}], v{self.vDw}, s[{SWS}:{SWS+3}], s{sE+2} offen offset:{1024*Tt} {aux}"))
            for bb in range(4): l += cvt2(o4 + 2*bb, O[4+bb])
            for bb, sg in ((1, sG1), (2, sG2), (3, sG3)):
                l += [f"v_cndmask_b32 v{o4}, v{o4}, v{o4+2*bb}, s[{sg}:{sg+1}]", f"v_cndmask_b32 v{o4+1}, v{o4+1}, v{o4+2*bb+1}, s[{sg}:{sg+1}]"]
            l.append(st(f"buffer_store_dwordx2 v[{o4}:{o4+1}], v{vE8}, s[{SWS}:{SWS+3}], s{sE} offen offset:{1024*Tt} {aux}"))
            return l
        s1 = softmax(1)
        q0 = qk(0); h = H('sm1'); side = []
        for i in range(max(len(q0), 1)):
            side.append(q0[i]); side += h[i * len(h) // len(q0):(i + 1) * len(h) // len(q0)]
        weave(e, s1, side, start=4, end=len(s1) - 12); TS()
        s0 = softmax(0)
        weave(e, s0[:20], pv(1), start=0, end=16)
        weave(e, final(1), H('mid')); TS()
        weave(e, s0[20:], H('sm0')); TS()
        weave(e, pv(0), H('pv0'))
        weave(e, final(0), H('end'))
```

```python
from common import *
from sched import *
NH = 14; NSL = 19
SET1 = WOFF + 3 * WSLOT
RED = 0

class P2:
    def __init__(self, e, role, opt, tm):
        self.e = e; self.role = role; self.opt = opt; self.tm = tm
        self.NT = NT = 4 if role == 'A' else 7
        self.vLane = 1
        self.vGm = 2; self.vA = 11; self.vRw = 15; self.vRr = 17; self.vO = 18; self.vGaddr = 19; self.vTr2 = 20; self.vT = 24
        self.vAcc = 32
        if role == 'A':
            self.vR = 96; self.ring = [128 + 4*i for i in range(12)] + [208 + 4*i for i in range(6)]
        else:
            self.vR = 144; self.ring = [160 + 4*i for i in range(20)]
        self.ring = self.ring[:opt.get('na', 11)]
        self.NA = len(self.ring)
        self.stage_ids = {}; self.base = {}; self.rd_ids = {}; self.a_ids = {}
        self.acc = lambda T, u: self.vAcc + 16 * T + 4 * u
        self.items = ([(i, T) for i in range(NH - 2) for T in range(NT)] + [(i, T) for T in range(NT) for i in (NH - 2, NH - 1)]
                      + [(NH + s, T) for T in range(NT) for s in range(5)])
        self.nload = 0; self.nlab = 0
        self.aux = opt.get('aux', 'sc1')

    def setup_early(self):
        e = self.e; T = self.vT; L = self.vLane; A = self.role == 'A'
        nt, t0, n = (4, 84, 11) if A else (7, 0, 12)
        e(f"""
        s_lshr_b32 s{sT1}, s2, 3
        s_and_b32 s{sT1}, s{sT1}, 15
        s_mul_i32 s{sT2}, s{sT1}, 13
        s_lshr_b32 s{sT2}, s{sT2}, 6
        s_mul_i32 s{sT3}, s{sT2}, 5
        s_sub_u32 s{sCOL}, s{sT1}, s{sT3}
        s_bitcmp1_b32 s2, 0
        s_cselect_b32 s{sT3}, 5, 0
        s_add_u32 s{sCOL}, s{sCOL}, s{sT3}
        s_cmp_ge_u32 s{sT2}, 3
        s_cselect_b32 s{sOFF2}, {OOB}, 0
        s_bfe_u32 s{sT0}, s2, 0x20001
        s_mul_i32 s{sT0}, s{sT0}, 3
        s_add_u32 s{sT0}, s{sT0}, s{sT2}
        s_cmp_ge_u32 s{sT0}, {n}
        s_cselect_b32 s{sOFF2}, {OOB}, s{sOFF2}
        s_min_u32 s{sT0}, s{sT0}, {n-1}
        s_mul_i32 s{sTOK}, s{sT0}, {nt}
        s_add_u32 s{sTOK}, s{sTOK}, {t0}
        s_lshl_b32 s{sT0}, s{sCOL}, 7
        s_add_u32 s{sT0}, s{sT0}, s{sOFF2}
        v_lshrrev_b32 v{T}, 3, v{L}
        v_and_b32 v{T+1}, 7, v{L}
        v_lshrrev_b32 v{T+2}, 4, v{L}
        v_lshlrev_b32 v{T+3}, 1, v{T+2}
        v_xor_b32 v{T+1}, v{T+1}, v{T+3}
        v_lshl_add_u32 v{T+1}, v{T+1}, 4, s{sT0}
        v_mul_u32_u24 v{T+3}, 1280, v{T}
        v_add_u32 v{vH}, v{T+3}, v{T+1}
        v_add_u32 v{vH+1}, {1*(8*1280-1024)}, v{vH}
        v_add_u32 v{vH+2}, {2*(8*1280-1024)}, v{vH}
        v_add_u32 v{vH+3}, {3*(8*1280-1024)}, v{vH}
        v_lshrrev_b32 v{T+3}, 2, v{T}
        v_mul_u32_u24 v{T+3}, {16*1280}, v{T+3}
        v_add_u32 v{vY}, v{T+3}, v{vH}
        v_lshrrev_b32 v{T}, 2, v{L}
        v_lshrrev_b32 v{T+1}, 1, v{T}
        v_and_b32 v{T+1}, 3, v{T+1}
        v_and_b32 v{T+2}, 3, v{L}
        v_lshlrev_b32 v{T+2}, 3, v{T+2}
        v_lshl_add_u32 v{T+2}, v{T}, 7, v{T+2}
        v_add_u32 v{T+2}, s{sM2}, v{T+2}
        """)
        for u in range(4):
            e(f"v_xor_b32 v{T+3}, {u}, v{T+1}\nv_lshl_add_u32 v{vTr+u}, v{T+3}, 5, v{T+2}")
        e(f"""
        s_lshr_b32 s{sT0}, s2, 3
        s_and_b32 s{sT0}, s{sT0}, {1 if self.opt.get('rot2', 1) else 0}
        s_lshl_b32 s{sT1}, s{sWV}, 1
        s_add_u32 s{sT1}, s{sT1}, s{sT0}
        s_mul_i32 s{sK2}, s{sT1}, {7*32*1280}
        s_mul_i32 s{sKA}, s{sT1}, {7*A2_STEP}
        s_mul_i32 s{sD2}, s{sT0}, {-14*32*1280}
        s_add_u32 s{sD2}, s{sD2}, {32*1280}
        s_mul_i32 s{sDA}, s{sT0}, {-14*A2_STEP}
        s_add_u32 s{sDA}, s{sDA}, {A2_STEP}
        s_mul_i32 s{sKO}, s{sWV}, {160*1280}
        s_mul_i32 s{sO0}, s{sWV}, {5*A2_STEP}
        s_add_u32 s{sO0}, s{sO0}, {54*A2_STEP}
        """)
        for s in range(1, 5): e(f"s_add_u32 s{sO0+s}, s{sO0}, {s*A2_STEP}")
        e(f"""
        s_lshr_b32 s{sT0}, s{sTOK}, 3
        s_add_u32 s{sT1}, s{sTOK}, {nt-1}
        s_lshr_b32 s{sT1}, s{sT1}, 3
        s_sub_u32 s{sT1}, s{sT1}, s{sT0}
        v_bfe_u32 v{T}, v{L}, 3, 1
        v_mul_u32_u24 v{T}, s{sT1}, v{T}
        v_add_u32 v{T}, s{sT0}, v{T}
        v_lshlrev_b32 v{T+2}, 4, v{T}
        v_bfe_u32 v{T+1}, v{L}, 2, 1
        v_lshl_add_u32 v{T}, v{T}, 3, v{T+1}
        s_lshl_b32 s{sT0}, s{sWV}, 8
        s_add_u32 s{sT0}, s{sT0}, {FLAG_OFF}
        v_and_b32 v{T+1}, 3, v{L}
        v_lshl_add_u32 v{T+1}, v{T+1}, 2, s{sT0}
        v_lshl_add_u32 v{vPollO}, v{T}, 7, v{T+1}
        v_add_u32 v{vPollH}, {128*128}, v{vPollO}
        """)
        self.vCnt = T + 2

    def setup_late(self):
        T = self.vT; L = self.vLane
        l = f"""
        s_lshl_b32 s{sT0}, s{sTOK}, 10
        s_add_u32 s{sT0}, s{sT0}, s{sOFF2}
        v_lshl_add_u32 v{self.vA}, v{L}, 4, s{sT0}
        v_add_u32 v{self.vA+1}, 4096, v{self.vA}
        v_lshl_add_u32 v{self.vA+2}, v{L}, 3, s{sT0}
        v_add_u32 v{self.vA+3}, 4096, v{self.vA+2}
        v_and_b32 v{T}, 15, v{L}
        v_lshrrev_b32 v{T+1}, 4, v{L}
        v_and_b32 v{T+2}, 7, v{L}
        v_xor_b32 v{T+2}, v{T+2}, v{T+1}
        s_lshl_b32 s{sT0}, s{sWV}, 12
        s_add_u32 s{sT0}, s{sT0}, {RED}
        v_lshl_add_u32 v{T+3}, v{T}, 8, s{sT0}
        v_lshl_add_u32 v{self.vRw}, v{T+2}, 4, v{T+3}
        v_xor_b32 v{T+2}, 4, v{T+2}
        v_lshl_add_u32 v{self.vRw+1}, v{T+2}, 4, v{T+3}
        s_lshl_b32 s{sT0}, s{sWV}, 2
        v_add_u32 v{T+2}, s{sT0}, v{T+1}
        v_and_b32 v{T+3}, 7, v{T+2}
        v_xor_b32 v{T+3}, v{T+3}, v{T}
        v_lshlrev_b32 v{T+3}, 4, v{T+3}
        v_lshl_add_u32 v{self.vRr}, v{T+2}, 8, v{T+3}
        s_lshl_b32 s{sT0}, s{sTOK}, 4
        v_add_u32 v{T+2}, s{sT0}, v{T+2}
        v_mul_u32_u24 v{T+2}, 1280, v{T+2}
        s_lshl_b32 s{sT0}, s{sCOL}, 7
        v_lshl_add_u32 v{T+3}, v{T}, 3, s{sT0}
        v_add_u32 v{self.vO}, v{T+2}, v{T+3}
        s_lshl_b32 s{sT0}, s{sTOK}, 6
        s_lshl_b32 s{sT1}, s{sWV}, 13
        s_add_u32 s{sT0}, s{sT0}, s{sT1}
        s_add_u32 s{sT0}, s{sT0}, {G_OFF}
        v_lshl_add_u32 v{self.vGaddr}, v{T}, 2, s{sT0}
        """.strip().split('\n')
        assert RED == 0
        return [x.strip() for x in l]
    def setup_tr2(self):
        return [f"v_add_u32 v{self.vTr2+u}, {SET1}, v{vTr+u}" for u in range(4)]

    def poll_issue(self, vaddr, srd=SWS):
        def f(): self.poll_id = self.e(f"buffer_load_dword v{vPD}, v{vaddr}, s[{srd}:{srd+3}], 0 offen sc1")
        f.cost = ['buffer_x']
        return f
    def poll_check(self, vaddr, want, srd=SWS):
        def f():
            e = self.e; self.nlab += 1
            lab = f"{self.role}_poll{self.nlab}"
            cmp = 'v_cmp_ne_u32' if want == 1 else 'v_cmp_gt_u32'
            e(f"{cmp} vcc, {want}, v{vPD}")
            e(f"s_cbranch_vccz {lab}_ok")
            e.raw(f"""    s_mov_b32 s3, 0
{lab}_spin:
    s_add_u32 s3, s3, 1
    s_cmp_gt_u32 s3, 0x8000
    s_cbranch_scc1 {lab}_ok
    s_sleep 1
    buffer_load_dword v{vPD}, v{vaddr}, s[{srd}:{srd+3}], 0 offen sc1
    s_waitcnt vmcnt(0)
    {cmp} vcc, {want}, v{vPD}
    s_cbranch_vccnz {lab}_spin
{lab}_ok:""")
        f.cost = ['s_x', 'v_x', 's_x']
        return f
    def set_flag(self, store_id):
        def f():
            e = self.e
            e(f"v_mov_b32 v{self.vT+1}, 1")
            e.wait_vm(store_id() if callable(store_id) else store_id)
            e(f"buffer_store_dword v{self.vT+1}, v{vFlag}, s[{SWS}:{SWS+3}], 0 offen sc1")
        f.cost = ['v_x', 's_x', 'buffer_x']
        return f

    def stage_dma(self, i, base):
        e = self.e; out = []
        prev = [j for j, b in self.base.items() if b == base]
        self.base[i] = base
        def S(x): return (lambda: e(x))
        def Dm(x):
            def f(): self.stage_ids[i] = e(x)
            f.cost = ['buffer_x']; f.dma = 1; f.sep = 1
            return f
        if prev: out.append(lambda j=max(prev): e.wait_lg(self.rd_ids[j]))
        out.append(S(f"s_add_u32 m0, s{sM2}, {base}"))
        if i < NH:
            if i > 0: out.append(S(f"s_add_u32 s{sK2}, s{sK2}, " + (f"s{sD2}" if i == 7 else f"{32*1280}")))
            for p in range(4): out.append(Dm(f"buffer_load_dwordx4 v{vH+p}, s[{SW2}:{SW2+3}], s{sK2} offen offset:{p*1024} lds"))
        else:
            s = i - NH
            if s != 2:
                rb = {0: 0, 1: 40, 3: 80, 4: 120}[s]
                out.append(S(f"s_add_u32 s{sK2}, s{sKO}, {rb*1280}"))
                for p in range(4):
                    if p == 2: out.append(S(f"s_add_u32 s{sK2}, s{sK2}, {4*1280}"))
                    out.append(Dm(f"buffer_load_dwordx4 v{vH+p}, s[{SWO}:{SWO+3}], s{sK2} offen offset:{p*1024} lds"))
            else:
                for p in range(4):
                    out.append(S(f"s_add_u32 s{sK2}, s{sKO}, {(80*(p>>1) + 40*(p&1) + 16)*1280 - 1024*p}"))
                    out.append(Dm(f"buffer_load_dwordx4 v{vY}, s[{SWO}:{SWO+3}], s{sK2} offen offset:{p*1024} lds"))
        return out
    def wreg(self, i, u): return 16 * (i % 16) + 4 * u
    def stage_read(self, i):
        e = self.e
        base = self.base[i]
        rb, off = (vTr, base) if base < SET1 else (self.vTr2, base - SET1)
        assert off + 2048 < 65536
        out = [lambda: e.wait_vm(self.stage_ids[i])]
        for u in range(4):
            for h in range(2):
                d = self.wreg(i, u) + 2 * h
                x = f"ds_read_b64_tr_b16 a[{d}:{d+1}], v{rb+u} offset:{off + 2048*h}"
                def f(x=x): self.rd_ids[i] = e(x)
                f.cost = [x]
                out.append(f)
        return out

    def a_load(self, n):
        e = self.e; aux = self.aux
        i, T = self.items[n]
        d = self.ring[n % self.NA]
        hi = 1 if T >= 4 else 0; off = (T - 4 * hi) * 1024
        out = []
        def Dm(x):
            def f(): self.a_ids[n] = e(x)
            f.cost = ['buffer_x']
            return f
        if i < NH:
            if T == 0 and 0 < i < NH - 1: out.append(lambda: e(f"s_add_u32 s{sKA}, s{sKA}, " + (f"s{sDA}" if i == 7 else f"{A2_STEP}")))
            if T == 0 and i == NH - 1: out.append(lambda: e(f"s_add_u32 s{sKB}, s{sKA}, {A2_STEP}"))
            sk = sKB if i == NH - 1 else sKA
            if i % 7 != 3: out.append(Dm(f"buffer_load_dwordx4 v[{d}:{d+3}], v{self.vA+hi}, s[{SH}:{SH+3}], s{sk} offen offset:{off} {aux}"))
            else:
                out.append(Dm(f"buffer_load_dwordx2 v[{d}:{d+1}], v{self.vA+2+hi}, s[{SH}:{SH+3}], s{sKA} offen offset:{off} {aux}"))
                out.append(Dm(f"buffer_load_dwordx2 v[{d+2}:{d+3}], v{self.vA+2+hi}, s[{SH}:{SH+3}], s{sKA} offen offset:{off+512} {aux}"))
        else:
            s = i - NH; so = sO0 + s
            if s != 2: out.append(Dm(f"buffer_load_dwordx4 v[{d}:{d+3}], v{self.vA+hi}, s[{SWS}:{SWS+3}], s{so} offen offset:{off} {aux}"))
            else:
                out.append(Dm(f"buffer_load_dwordx2 v[{d}:{d+1}], v{self.vA+2+hi}, s[{SWS}:{SWS+3}], s{so} offen offset:{off} {aux}"))
                out.append(Dm(f"buffer_load_dwordx2 v[{d+2}:{d+3}], v{self.vA+2+hi}, s[{SWS}:{SWS+3}], s{so} offen offset:{off+512} {aux}"))
        return out
    def first_loads(self, k=None):
        out = []
        k = self.NA if k is None else k
        while self.nload < k:
            out += self.a_load(self.nload); self.nload += 1
        return out

    def mainloop(self, n_read, n_dma, free_bases, extra=None):
        e = self.e; NT = self.NT; items = self.items; NA = self.NA
        sch = Sched(e)
        first = {}; last = {}
        for n, (i, T) in enumerate(items):
            r = self.ring[n % NA]
            for u in range(4):
                a = self.acc(T, u); w = self.wreg(i, u)
                c = f"v[{a}:{a+3}]" if i > 0 else "0"
                k = sch.main(f"v_mfma_f32_16x16x32_bf16 v[{a}:{a+3}], a[{w}:{w+3}], v[{r}:{r+3}], {c}")
                first.setdefault(n, k); last[n] = k
        nm = len(sch.mains)
        first_o = NH * NT
        step = [first[i * NT] for i in range(NH - 1)] + [first[first_o]]
        otile = [first[first_o + 5 * T] for T in range(NT)] + [nm]
        self.step = step
        for n in range(self.nload, len(items)):
            g = last[n - NA] if n >= NA else -1
            if n == first_o - self.opt.get('gearly', NT + 2):
                sch.add('a', self.poll_check(vPollO, 1), early=g, dead=g + 1)
                for T in range(NT):
                    x = f"buffer_load_dword v{self.vGm+T}, v{self.vGaddr}, s[{SWS}:{SWS+3}], 0 offen offset:{64*T} {self.aux}"
                    sch.add('a', x, early=g, dead=g + 2)
            if n == first_o - self.opt.get('gearly', NT + 2) - self.opt.get('pollead', 8): sch.add('a', self.poll_issue(vPollO), early=g, dead=g + 2)
            for fn in self.a_load(n): sch.add('a', fn, early=g, dead=g + 2)
        for n in range(1, len(items)):
            def w(n=n):
                if n in self.a_ids: e.wait_vm(self.a_ids[n])
            sch.add('aw', w, early=first[n] - 1, dead=first[n] - 1)
        free = list(free_bases); nd = n_dma; nr = n_read
        rem = NSL - n_read
        for i in range(NH - 1):
            want = min(NSL, n_read + -(-(i + 1) * rem // (NH - 2)), i + 16)
            if i == NH - 3: want = max(want, NH)
            l = []
            while nd < NSL and free:
                l += self.stage_dma(nd, free.pop(0)); nd += 1
            while nr < min(want, nd):
                l += self.stage_read(nr); free.append(self.base[nr]); nr += 1
            assert nr >= i + 2, (i, nr)
            span = step[i + 1] - step[i]
            for k, fn in enumerate(l):
                pos = step[i] + k * span // len(l)
                sch.add('stg', fn, early=pos, dead=min(pos + 2, step[i + 1] - 1))
        assert nr == NSL
        for T in range(NT):
            lo = last[(NH - 2) * NT + 2 * T + 1] + 4
            for k in range(16):
                pos = lo + k // 2
                sch.add('sc', f"v_mul_f32 v{self.acc(T,0)+k}, v{self.vGm+T}, v{self.acc(T,0)+k}", early=pos, dead=min(pos + 3, otile[T] - 2))
        R = self.vR
        def writes(T):
            b = (T & 1) * 16384
            return [f"ds_write_b128 v{self.vRw + (u & 1)}, v[{self.acc(T,u)}:{self.acc(T,u)+3}] offset:{b + 128*(u>>1)}" for u in range(4)]
        def bar():
            e.wait_lg_all(); e("s_barrier")
        bar.cost = ['s_x', 's_barrier']
        def reduce_(T):
            b = (T & 1) * 16384
            l = [f"ds_read_b128 v[{R+4*w}:{R+4*w+3}], v{self.vRr} offset:{b + 4096*w}" for w in range(4)]
            add = [f"v_add_f32 v{R+k}, v{R+k}, v{R+4+k}" for k in range(4)] + [f"v_add_f32 v{R+8+k}, v{R+8+k}, v{R+12+k}" for k in range(4)]
            add += [f"v_add_f32 v{R+k}, v{R+k}, v{R+8+k}" for k in range(4)]
            add += [f"v_cvt_pk_bf16_f32 v{R}, v{R}, v{R+1}", f"v_cvt_pk_bf16_f32 v{R+1}, v{R+2}, v{R+3}"]
            if T > 0: add.append(f"v_add_u32 v{self.vO}, {16*1280}, v{self.vO}")
            add.append(f"buffer_store_dwordx2 v[{R}:{R+1}], v{self.vO}, s[{SOUT}:{SOUT+3}], 0 offen {self.opt.get('outaux', '')}")
            return l, add
        wp = self.opt.get('wpos', [5, 9, 13, 17])
        for T in range(1, NT):
            g = otile[T]
            lastT = T == NT - 1
            sch.add('red', bar, early=g + 3, dead=g + 3)
            if T >= 2:
                rd, add = reduce_(T - 2)
                for k, x in enumerate(rd): sch.add('red3', x, early=g + 4 + 2*k, dead=g + 4 + 2*k)
                for k, x in enumerate(add): sch.add('red2', x, early=g + 11 + k * 8 // len(add), dead=min(g + 13 + k * 8 // len(add), g + 19))
            for k, x in enumerate(writes(T - 1)):
                pos = g + (wp[k] if not lastT else 5 + 2*k)
                sch.add('red', x, early=pos, dead=pos)
        if self.tm.on and not self.opt.get('ts3'):
            sch.add('ts', self.tm.stamp, early=step[7], dead=step[7]); sch.add('ts', self.tm.stamp, early=otile[0], dead=otile[0])
        if extra: extra(sch)
        sch.run(); self.over = sch.over
        self.tm.stamp()
        run = lambda l: [x() if callable(x) else e(x) for x in l]
        bar()
        rd, add = reduce_(NT - 2)
        run(rd); run(writes(NT - 1)); run(add); bar()
        rd, add = reduce_(NT - 1)
        run(rd); run(add)
```

```python
import sys, json
from common import *
from p1 import P1
from p2 import P2, NSL

HDR = open('cdna_kernels/' + KN + '.s.ref').read().split('; Override launch')[0]
def srd(e, base, nbytes): e(f"s_mov_b32 s{base+2}, {nbytes}\ns_mov_b32 s{base+3}, 0x20000")
WB = lambda st: WOFF + (st % NWS) * WSLOT
XB = lambda k: XOFF + k * XSLOT

def entry(e, opt, tm):
    e(f"s_cmp_ge_u32 s2, 256\ns_cbranch_scc1 L_done")
    if opt.get('cpf0', 1):
        e(f"s_getpc_b64 s[6:7]\nv_min_u32 v34, 15, v0\nv_lshlrev_b32 v34, 7, v34")
        e.touch(f"global_load_dword v{vDUM}, v34, s[6:7]")
    if opt.get('cpf', 1) == 1:
        assert opt['cpf_lines'] == 16
        e(f"s_lshr_b32 s3, s2, 3\ns_lshl_b32 s3, s3, 11\nv_add_u32 v35, s3, v34")
        e.touch(f"global_load_dword v{vDUM}, v35, s[6:7]")
    for base, off in [(SX, 0), (SPF, 8), (SW, 32), (SWS, 72), (SGATE, 48), (SW2, 40), (SWO, 16), (SOUT, 56), (SDBG, 64)]:
        e(f"s_load_dwordx2 s[{base}:{base+1}], s[0:1], {off}")
    e(f"""
    v_lshrrev_b32 v2, 6, v0
    v_and_b32 v1, 63, v0
    s_lshr_b32 s{sT1}, s2, 3
    v_readfirstlane_b32 s{sWV}, v2
    s_bfe_u32 s{sRB}, s2, 0x10002
    s_lshl_b32 s{sRB}, s{sRB}, 3
    s_and_b32 s{sT2}, s{sT1}, 7
    s_add_u32 s{sRB}, s{sRB}, s{sT2}
    s_and_b32 s{sC}, s2, 3
    s_lshl_b32 s{sC}, s{sC}, 1
    s_bfe_u32 s{sT2}, s2, 0x10006
    s_add_u32 s{sC}, s{sC}, s{sT2}
    s_lshr_b32 s{sROLE}, s2, 7
    """)
    p = P1(e, 'F', opt); p.rots = [0]
    if opt.get('ts3'): e("s_memtime s[88:89]")
    p.setup_first()
    if opt.get('ts3'): e("s_memtime s[90:91]")
    srd(e, SX, S*D*2)
    PF = opt.get('pf', '0D1')
    if PF and PF[0] != 'D': pf_setup(e)
    e(f"""
    s_mov_b32 s{SW+3}, 0x20000
    s_mov_b32 s{SPF+3}, 0x20000
    s_cmp_eq_u32 s{sROLE}, 0
    s_mov_b32 s{SW+2}, {640*1728*2}
    s_cselect_b32 s{SW+2}, {640*1920*2}, s{SW+2}
    s_mov_b32 s{SPF+2}, {640*1920*2}
    s_cselect_b32 s{SPF+2}, {640*1728*2}, s{SPF+2}
    """)
    e.wait_lg_all()
    if opt.get('ts3'):
        e("s_memtime s[92:93]"); e.wait_lg_all()
        for r in (88, 90, 92):
            e(f"v_writelane_b32 v{vTS}, s{r}, {tm.n}\nv_writelane_b32 v{vTS}, s{r}, {16+tm.n}"); tm.n += 1
        e(f"s_cmp_eq_u32 s{sROLE}, 0")
    e(f"""
    s_mov_b32 s4, s{SW}
    s_mov_b32 s5, s{SW+1}
    s_cselect_b32 s{SW}, s{SPF}, s{SW}
    s_cselect_b32 s{SW+1}, s{SPF+1}, s{SW+1}
    s_cselect_b32 s{SPF}, s4, s{SPF}
    s_cselect_b32 s{SPF+1}, s5, s{SPF+1}
    """)
    for c in (PF or 'D'):
        if c in '01':
            for f in pf_site(e, int(c), PF1): f()
        if c == 'D':
            for f in p.dma_x(0) + p.dma_w(0): f()
            if PF and PF[0] == 'D': pf_setup(e)
    if opt.get('ts2'): e("s_mov_b32 s98, s4\ns_mov_b32 s99, s5"); tm.stamp(); e("s_mov_b32 s4, s98\ns_mov_b32 s5, s99")
    if opt.get('cpf', 1) == 2:
        e(f"""
        s_getpc_b64 s[6:7]
        s_lshr_b32 s3, s2, 3
        s_mul_i32 s3, s3, {opt['cpf_lines']*128}
        v_lshl_add_u32 v34, v0, 7, s3
        v_cmp_gt_u32 vcc, {opt['cpf_lines']}, v0
        s_and_saveexec_b64 s[{sT0}:{sT0+1}], vcc
        """)
        e.touch(f"global_load_dword v{vDUM}, v34, s[6:7]")
        e(f"s_mov_b64 exec, s[{sT0}:{sT0+1}]")
    e(f"""
    s_lshl_b32 s{sT0}, s{sROLE}, 4
    s_add_u32 s{sT0}, s{sT0}, s{sRB}
    s_lshl_b32 s{sT0}, s{sT0}, 3
    s_add_u32 s{sT0}, s{sT0}, s{sC}
    s_lshl_b32 s{sT0}, s{sT0}, 5
    s_add_u32 s{sT0}, s{sT0}, s{sWV}
    s_lshl_b32 s{sT0}, s{sT0}, 2
    s_add_u32 s{sT0}, s{sT0}, {FLAG_OFF}
    v_mov_b32 v{vFlag}, {OOB}
    v_mov_b32 v{vPD}, 0
    v_writelane_b32 v{vFlag}, s{sT0}, 0
    """)
    srd(e, SWS, WS_BYTES)
    e.first_id = p.dma_ids[('w', 0)]
    srd(e, SGATE, 1280); srd(e, SW2, 1728*640*2); srd(e, SWO, 640*640*2)
    srd(e, SOUT, S*D*2); srd(e, SDBG, 256); srd(e, SH, 54*A2_STEP)
    e(f"s_mov_b32 s{SH}, s{SWS}\ns_mov_b32 s{SH+1}, s{SWS+1}")

def pf_setup(e):
    e(f"""
    s_lshr_b32 s{sT0}, s2, 3
    s_mul_i32 s{sT1}, s{sT0}, 13
    s_lshr_b32 s{sT1}, s{sT1}, 6
    s_mul_i32 s{sT2}, s{sT1}, 5
    s_sub_u32 s{sT2}, s{sT0}, s{sT2}
    s_cmp_lt_u32 s{sT0}, 30
    s_cselect_b32 s{sPG}, s{sT2}, 7
    s_and_b32 s{sT0}, s2, 7
    s_mul_i32 s{sT0}, s{sT0}, 6
    s_add_u32 s{sT0}, s{sT0}, s{sT1}
    s_lshl_b32 s{sT0}, s{sT0}, 2
    s_add_u32 s{sDP}, s{sT0}, s{sWV}
    s_mul_i32 s{sT0}, s{sDP}, {20*128}
    v_min_u32 v{vP}, 19, v1
    s_mul_i32 s{sT1}, s{sT2}, s{sKP}
    v_lshl_add_u32 v{vP}, v{vP}, 7, s{sT0}
    s_lshl_b32 s{sT1}, s{sT1}, 7
    s_mul_i32 s{sT3}, s{sT2}, {128*(3840+3456)}
    s_sub_u32 s{sT3}, s{sT3}, s{sT1}
    v_add_u32 v{vP+1}, s{sT3}, v{vP}
    v_add_u32 v{vP}, s{sT1}, v{vP}
    v_min_u32 v{vP+2}, 21, v1
    s_mul_i32 s{sT0}, s{sDP}, {11*1280}
    s_lshl_b32 s{sT1}, s{sT2}, 8
    v_and_b32 v34, 1, v{vP+2}
    s_add_u32 s{sT0}, s{sT0}, s{sT1}
    v_lshrrev_b32 v{vP+2}, 1, v{vP+2}
    v_lshl_add_u32 v34, v34, 7, s{sT0}
    v_mad_u32_u24 v{vP+2}, v{vP+2}, s{sE}, v34
    """.replace(f"    v_min_u32 v{vP+2}, 21, v1\n", f"    v_min_u32 v{vP+2}, 21, v1\n    s_movk_i32 s{sE}, 1280\n"))
def pf2_setup(e):
    e(f"""
    s_mul_i32 s{sT0}, s{sPG}, {4736*128}
    s_mul_i32 s{sT1}, s{sDP}, {25*128}
    s_add_u32 s{sT0}, s{sT0}, s{sT1}
    v_min_u32 v{vPF}, 24, v1
    v_lshl_add_u32 v{vPF}, v{vPF}, 7, s{sT0}
    v_subrev_u32 v{vP+3}, {1728*1280}, v{vPF}
    """)
def pf_site(e, g, what):
    def sel(): e(f"s_cmp_eq_u32 s{sPG}, {g}\ns_cselect_b32 s{sPS}, 0, {OOB}")
    sel.cost = ['s_x', 's_x']
    out = [sel]
    for v, srd_ in what:
        def f(v=v, srd_=srd_): e.touch(f"buffer_load_dword v{vDUM}, v{v}, s[{srd_}:{srd_+3}], s{sPS} offen")
        f.cost = ['buffer_x']; f.sep = 1
        out.append(f)
    return out
PF1 = [(vP + 2, SX), (vP, SW), (vP + 1, SPF)]
PF2 = [(vPF, SW2), (vP + 3, SWO)]

def role_code(e, role, opt, tm):
    A = role == 'A'
    run = lambda l: [x() if callable(x) else e(x) for x in l]
    p = P1(e, role, opt); p.tm = tm
    q = P2(e, role, opt, tm)
    aux = opt.get('aux', 'sc1'); PF = opt.get('pf', '0D1')
    p.setup()
    p.prologue_dma()
    e(f"buffer_store_dword v{vPD}, v{vFlag}, s[{SWS}:{SWS+3}], 0 offen sc1")
    p.prologue_dma2()
    if opt.get('ts2'): tm.stamp()
    p.setup_reads()
    T = p.vT
    def late():
        e(f"""
        s_lshl_b32 s{sT0}, s{sRB}, 4
        s_cmp_eq_u32 s{sWV}, 0
        s_cselect_b32 s{sT0}, s{sT0}, {OOB}
        v_mov_b32 v{T}, {OOB}
        v_mov_b32 v{T+1}, 1
        v_writelane_b32 v{T}, s{sT0}, 0
        ATOMIC
        """)
        if PF: pf2_setup(e)
        (p.att_consts if A else p.ffn_consts)()
        q.setup_early()
    late_l = scc_groups(e.capture(late))
    if opt.get('ts2'): tm.stamp()
    def extra(sch):
        lo = p.step0[1]; hi = p.step0[opt.get('late_end', 9)]
        for k, x in enumerate(late_l):
            pos = lo + k * (hi - lo) // len(late_l)
            if x == ['ATOMIC']:
                sch.add('cnt', f"buffer_atomic_add v{T+1}, v{T}, s[{SDBG}:{SDBG+3}], 0 offen sc1", early=p.bpos[2] + 1, dead=p.bpos[2] + 6, after=[p.bars[2]])
            else: sch.add('cnt', (lambda x=x: e('\n'.join(x))), early=pos, dead=max(pos, p.bpos[2] + 7) + 3, cost=x)
        if PF:
            sites = [(st, 2 + k, PF1) for k, st in enumerate(opt.get('pfs', [1, 4, 7]))] + [(st, k, PF2) for k, st in enumerate(opt.get('pfs2', [6, 8, 9, 10, 11]))]
            for st, g_, what in sorted(sites, key=lambda t: t[0]):
                for fn in pf_site(e, g_, what): sch.add('pf', fn, early=p.step0[st] + 1, dead=p.step0[st] + 14)
        g = p.step0[14]
        sch.add('cnt', q.poll_issue(q.vCnt, SDBG), early=g, dead=g + 6)
        g = p.step0[17]
        sch.add('cnt', q.poll_check(q.vCnt, 16, SDBG), early=g, dead=g + 6)
        for k, (st, base) in enumerate([(17, E0), (17, WB(15)), (18, WB(16)), (19, WB(17))]):
            fns = q.stage_dma(k, base)
            lo = p.bpos[st] + 1; span = p.bpos[st + 1] - lo
            if st == 17: span //= 2; lo += span * k
            for j, fn in enumerate(fns):
                pos = lo + j * span // len(fns)
                sch.add('dma', fn, early=pos, dead=pos + 2, after=[p.bars[st]])
        if A:
            p.att_lastloop(sch)
        else: p.ffn_lastloop(sch, aux)
    p.mainloop(extra); tm.stamp()
    if A:
        hooks = {}
        hooks['qk1'] = q.setup_tr2()
        hooks['bar'] = q.stage_dma(4, WB(18)) + q.stage_dma(5, WB(19)) + q.stage_dma(6, XB(0))
        h = []
        for i in range(4): h += q.stage_read(i)
        hooks['sm1'] = q.setup_late() + h
        h = []
        for i in range(4): h += q.stage_dma(7 + i, q.base[i])[1:]
        hooks['sm1'].append(lambda: e.wait_lg(q.rd_ids[3]))
        k = opt.get('apoll', 1) * 6
        hooks['mid'] = h[:k] + [q.poll_issue(vPollH)]
        hooks['sm0'] = h[k:]
        hooks['pv0'] = [q.poll_check(vPollH, 1)] + q.first_loads(4)
        hooks['end'] = q.first_loads()
        if opt.get('nohook'): pre = [x for k in ('qk1', 'bar', 'sm1', 'mid', 'sm0', 'pv0', 'end') for x in hooks[k]]; hooks = {}
        p.epilogue_A(aux, hooks); tm.stamp()
        if opt.get('nohook'): run(pre); tm.stamp()
        e(f"s_cmp_lg_u32 s{sOFF2}, 0\ns_cbranch_scc1 A_pub")
        snap = e.snapshot()
        def ex2(sch):
            g = opt.get('aflag', 24)
            sch.add('flag', q.set_flag(p.last_store), early=g, dead=g + 4)
        q.mainloop(4, 11, [], ex2)
    else:
        p.epilogue_F(); tm.stamp()
        e("s_barrier")
        run(q.setup_tr2())
        free = [WB(18), WB(19), XB(0), XB(1)]; nd = 4
        for k in range(opt.get('nflag', 2)):
            run(q.stage_dma(nd, free.pop(0))); nd += 1
        run(q.setup_late())
        for i in range(4): run(q.stage_read(i))
        q.set_flag(p.last_store)(); tm.stamp()
        e(f"s_cmp_lg_u32 s{sOFF2}, 0\ns_cbranch_scc1 F_pub")
        snap = e.snapshot()
        free += [q.base[i] for i in range(4)]
        nr = 4
        npoll = opt.get('npoll', 17)
        while nd < NSL:
            if nd == npoll: q.poll_issue(vPollH)()
            if not free:
                run(q.stage_read(nr)); free.append(q.base[nr]); nr += 1
            run(q.stage_dma(nd, free.pop(0))); nd += 1
        while nr < 12: run(q.stage_read(nr)); nr += 1
        q.poll_check(vPollH, 1)(); tm.stamp()
        weave(e, q.first_loads(), [x for i in range(12, 16) for x in q.stage_read(i)], start=8)
        q.mainloop(16, NSL, [])
    tm.stamp()
    if tm.on: e.wait_vm_all(); tm.stamp(); tm.flush()
    e("s_endpgm")
    e.restore(snap)
    e.raw(f"{role}_pub:")
    if A: q.set_flag(p.last_store)()
    tm.flush()
    e("s_endpgm")
    print(role, "over p1", p.over, "p2", q.over, file=sys.stderr)

def fused(opt):
    opt.setdefault('cpf_lines', 16)
    e = Emit(); k = KN + '_kernel'
    e.raw(kstart(k))
    tm = Stamps(e, opt.get('ts', 0)); tm.stamp()
    entry(e, opt, tm)
    e(f"s_cmp_eq_u32 s{sROLE}, 0\ns_cbranch_scc0 L_F")
    snap = e.snapshot(); n0 = tm.n
    role_code(e, 'A', opt, tm)
    e.restore(snap); tm.n = n0
    e.raw("L_F:")
    role_code(e, 'F', opt, tm)
    e.raw("L_done:")
    e("s_endpgm")
    print(e.stats, "nops", e.nops, file=sys.stderr)
    txt = HDR + f"; @launch grid=(256,1,1) block=(256,1,1) lds={LDS_END}\n"
    txt += '.amdgcn_target "amdgcn-amd-amdhsa--gfx950"\n.text\n' + e.text()
    txt += f"; padding: the code prefetch above reads {32*opt['cpf_lines']*128} bytes from the entry\n.fill (({32*opt['cpf_lines']*128} + 512 - (. - {k})) / 4), 4, 0xbf810000\n" + kdesc(k)
    return txt

if __name__ == '__main__':
    opt = json.loads(sys.argv[2]) if len(sys.argv) > 2 else {}
    open(sys.argv[1], 'w').write(fused(opt))
```

```python
from common import *
from sched import *

class P1:
    def __init__(self, e, role, opt):
        self.e = e; self.role = role; self.opt = opt
        A = role == 'A'
        self.pitch = 3840 if A else 3456
        v = 1
        self.vLane = v; v += 1
        self.vDw = v; v += 4
        self.vDx = v; v += 4
        self.vDh = v; v += 1
        self.vXo = v; v += 2
        self.vXh = v; v += 2
        self.vG = v; v += 1
        self.vWb = v; v += 8
        self.vT = v; v += 8
        assert v <= 32
        self.vXF = 32
        self.vWF = 64
        self.NF = opt.get('nf', 7) if A else opt.get('nfF', 5)
        self.vAcc = self.vWF + 4 * 8
        if A:
            b = self.vAcc
            self.accQ = lambda T, t: b + 20 * T + 4 * t
            self.accK = lambda T, t: b + 40 + 20 * T + 4 * t
            self.accV = lambda T, u: b + 80 + 20 * T + 4 * u
            self.hK, self.hV, self.hK4, self.hV4 = b + 120, b + 124, b + 128, b + 132
            self.accG = lambda T: b + 136 + 4 * T
            self.nacc = 144
        else:
            self.accF = lambda T, t: self.vAcc + 28 * T + 4 * t
            self.nacc = 112
        self.dma_ids = {}

    def setup(self):
        e = self.e; A = self.role == 'A'; T = self.vT; L = self.vLane
        self.rots = rots = self.opt.get('rots', [0])
        n = len(rots)
        if n > 1:
            e(f"s_and_b32 s{sT0}, s{sC}, 1")
            if n == 4: e(f"s_lshl_b32 s{sT0}, s{sT0}, 1\ns_add_u32 s{sT0}, s{sT0}, s{sROLE}")
            e(f"s_add_u32 s{sT0}, s{sT0}, s{sRB}\ns_and_b32 s{sT0}, s{sT0}, {n-1}\ns_mov_b32 s{sROT}, 0")
            for i, r in enumerate(rots[1:]):
                e(f"""
                s_cmp_eq_u32 s{sT0}, {i+1}
                s_cselect_b32 s{sROT}, {r}, s{sROT}
                s_cselect_b32 s{sDW+i}, {-19*32*self.pitch}, {32*self.pitch}
                s_cselect_b32 s{sDX+i}, {-9*128}, 128
                """.replace(f"s_cselect_b32 s{sDW+i}, {-19*32*self.pitch}, {32*self.pitch}", f"s_mov_b32 s{sT1}, {32*self.pitch}\ns_cselect_b32 s{sDW+i}, {-19*32*self.pitch}, s{sT1}").replace(f"s_cselect_b32 s{sDX+i}, {-9*128}, 128", f"s_movk_i32 s{sT1}, 128\ns_cselect_b32 s{sDX+i}, {-9*128}, s{sT1}"))
        if A:
            e(f"""
            s_lshl_b32 s{sM0H}, s{sWV}, 9
            s_add_u32 s{sM0H}, s{sM0H}, {XOFF}
            s_lshl_b32 s{sT1}, s{sWV}, 2
            v_lshrrev_b32 v{T}, 3, v{L}
            v_and_b32 v{T+2}, 7, v{L}
            v_add_u32 v{T+4}, s{sT1}, v{T}
            v_bfe_u32 v{T+5}, v{T+4}, 1, 3
            v_xor_b32 v{T+5}, v{T+5}, v{T+2}
            s_lshl_b32 s{sT0}, s{sRB}, 7
            s_sub_u32 s{sT0}, s{sT0}, 16
            v_add_u32 v{T+4}, s{sT0}, v{T+4}
            v_max_i32 v{T+4}, 0, v{T+4}
            v_mul_u32_u24 v{T+4}, 1280, v{T+4}
            v_lshl_add_u32 v{self.vDh}, v{T+5}, 4, v{T+4}
            """)

    def setup_x(self):
        e = self.e; T = self.vT; L = self.vLane
        e(f"""
        v_lshrrev_b32 v{T}, 3, v{L}
        s_lshl_b32 s{sT0}, s{sRB}, 2
        v_and_b32 v{T+2}, 7, v{L}
        s_add_u32 s{sT0}, s{sT0}, s{sWV}
        v_lshrrev_b32 v{T+3}, 4, v{L}
        s_mul_i32 s{sT0}, s{sT0}, {32*1280}
        v_mul_u32_u24 v{T+1}, 1280, v{T}
        s_lshl_b32 s{sM0X}, s{sWV}, 12
        v_xor_b32 v{T+4}, v{T+2}, v{T+3}
        s_add_u32 s{sM0X}, s{sM0X}, {XOFF + 2048}
        v_add_u32 v{T+1}, s{sT0}, v{T+1}
        v_xor_b32 v{T+5}, 4, v{T+4}
        v_lshl_add_u32 v{self.vDx}, v{T+4}, 4, v{T+1}
        v_lshl_add_u32 v{self.vDx+1}, v{T+5}, 4, v{T+1}
        v_add_u32 v{self.vDx+2}, {16*1280-2048}, v{self.vDx}
        v_add_u32 v{self.vDx+1}, {8*1280-1024}, v{self.vDx+1}
        v_add_u32 v{self.vDx+3}, {16*1280-2048}, v{self.vDx+1}
        """)
    def setup_w(self):
        e = self.e; T = self.vT; L = self.vLane
        e(f"""
        s_cmp_eq_u32 s{sROLE}, 0
        s_cselect_b32 s{sT0}, 69, 64
        s_cselect_b32 s{sT1}, 30, 32
        v_mul_u32_u24 v{T}, s{sT0}, v{L}
        s_cselect_b32 s{sT2}, 205, 0
        s_movk_i32 s{sT3}, 3456
        v_lshrrev_b32 v{T}, 11, v{T}
        s_cselect_b32 s{sKP}, 3840, s{sT3}
        s_movk_i32 s{sT3}, 448
        v_mul_u32_u24 v{T+1}, s{sT1}, v{T}
        s_cselect_b32 s{sT3}, 160, s{sT3}
        v_sub_u32 v{T+1}, v{L}, v{T+1}
        s_mul_i32 s{sT3}, s{sT3}, s{sC}
        v_mul_u32_u24 v{T+2}, s{sT2}, v{T+1}
        s_mul_i32 s{sT0}, s{sKP}, s{sWV}
        v_lshrrev_b32 v{T+2}, 11, v{T+2}
        s_lshl_b32 s{sT0}, s{sT0}, 3
        v_mad_i32_i24 v{T+1}, v{T+2}, -10, v{T+1}
        s_add_u32 s{sT0}, s{sT0}, s{sT3}
        v_mul_u32_u24 v{T+2}, 1280, v{T+2}
        s_lshl_b32 s{sT1}, s{sKP}, 2
        v_lshl_add_u32 v{T+2}, v{T+1}, 4, v{T+2}
        v_mul_u32_u24 v{T+3}, s{sT1}, v{T}
        v_lshrrev_b32 v{T}, 1, v{T}
        v_add3_u32 v{T+2}, v{T+2}, v{T+3}, s{sT0}
        v_lshl_add_u32 v{T}, v{T}, 5, v{T+1}
        v_mov_b32 v{T+3}, {OOB}
        v_cmp_gt_u32 vcc, 28, v{T}
        s_sub_u32 s{sT0}, s{sKP}, {WBLK}
        s_mul_i32 s{sM2}, s{sWV}, {4*WBLK}
        v_cndmask_b32 v{self.vDw}, v{T+3}, v{T+2}, vcc
        s_add_u32 s{sM0W}, s{sM2}, {WOFF}
        v_add_u32 v{self.vDw+1}, s{sT0}, v{self.vDw}
        v_add_u32 v{self.vDw+2}, s{sT0}, v{self.vDw+1}
        v_add_u32 v{self.vDw+3}, s{sT0}, v{self.vDw+2}
        """)

    def setup_reads(self):
        e = self.e; A = self.role == 'A'; T = self.vT; L = self.vLane
        if not A: e(f"s_lshr_b32 s{sT0}, s{sWV}, 1\ns_lshl_b32 s{sT0}, s{sT0}, 13\ns_add_u32 s{sT0}, s{sT0}, {XOFF+2048}")
        e(f"""
        v_and_b32 v{T}, 15, v{L}
        v_lshrrev_b32 v{T+1}, 4, v{L}
        v_lshrrev_b32 v{T+2}, 1, v{T}
        v_xor_b32 v{T+2}, v{T+2}, v{T+1}
        v_lshlrev_b32 v{T+2}, 4, v{T+2}
        v_lshl_add_u32 v{T+2}, v{T}, 7, v{T+2}
        v_add_u32 v{self.vXh}, {XOFF}, v{T+2}
        v_xor_b32 v{T+3}, 64, v{T+2}
        v_add_u32 v{self.vXh+1}, {XOFF}, v{T+3}
        v_add_u32 v{self.vXo}, s{sM0X if A else sT0}, v{T+2}
        v_add_u32 v{self.vXo+1}, s{sM0X if A else sT0}, v{T+3}
        v_lshlrev_b32 v{self.vG}, 4, v{T+1}
        v_add_u32 v{self.vG}, {GOFF}, v{self.vG}
        v_lshrrev_b32 v{T+4}, 2, v{L}
        v_mul_u32_u24 v{T+4}, {WBLK}, v{T+4}
        v_add_u32 v{T+4}, {WOFF}, v{T+4}
        v_and_b32 v{T+5}, 3, v{L}
        v_lshl_add_u32 v{self.vWb+2}, v{T+5}, 3, v{T+4}
        v_add_u32 v{self.vWb+3}, {3*WSLOT}, v{self.vWb+2}
        """)
        if A:
            e(f"""
            v_mul_u32_u24 v{T+5}, 40, v{T+5}
            v_add_u32 v{self.vWb}, v{T+5}, v{T+4}
            v_add_u32 v{self.vWb+1}, {3*WSLOT}, v{self.vWb}
            s_lshl_b32 s{sT0}, s{sWV}, 3
            v_add_u32 v{self.vWb+4}, s{sT0}, v{self.vWb}
            v_add_u32 v{self.vWb+5}, s{sT0}, v{self.vWb+1}
            s_mul_i32 s{sT0}, s{sWV}, 40
            v_add_u32 v{self.vWb+6}, s{sT0}, v{self.vWb+2}
            v_add_u32 v{self.vWb+7}, s{sT0}, v{self.vWb+3}
            """)
        else:
            e(f"""
            s_and_b32 s{sT0}, s{sWV}, 1
            s_lshl_b32 s{sT1}, s{sT0}, 5
            s_add_u32 s{sT1}, s{sT1}, 192
            v_add_u32 v{self.vWb}, s{sT1}, v{self.vWb+2}
            v_add_u32 v{self.vWb+1}, s{sT1}, v{self.vWb+3}
            s_lshl_b32 s{sT1}, s{sT0}, 8
            v_add_u32 v{self.vWb+2}, s{sT1}, v{self.vWb+2}
            v_add_u32 v{self.vWb+3}, s{sT1}, v{self.vWb+3}
            """)

    def dma_w(self, st):
        e = self.e; out = []
        slot = st % NWS
        out.append(lambda: e(f"s_add_u32 m0, s{sM0W}, {slot*WSLOT}"))
        def first():
            wr = [i for i, r in enumerate(self.rots[1:]) if 20 - r == st]
            if st == 0: e(f"s_mul_i32 s{sKW}, s{sROT}, {32*self.pitch}" if len(self.rots) > 1 else f"s_mov_b32 s{sKW}, 0")
            elif wr: e(f"s_add_u32 s{sKW}, s{sKW}, s{sDW+wr[0]}")
            elif self.opt.get('kfix'): e(f"s_mov_b32 s{sKW}, {(st % self.opt['kfix'])*32*self.pitch}")
            else: e(f"s_add_u32 s{sKW}, s{sKW}, {32*self.pitch}")
        out.append(first)
        for p in range(4):
            def f(p=p):
                if self.opt.get('now') and st > 1: self.dma_ids[('w', st)] = -1; return
                self.dma_ids[('w', st)] = e(f"buffer_load_dwordx4 v{self.vDw+p}, s[{SW}:{SW+3}], s{sKW} offen offset:{p*WBLK} lds")
            f.dma = 1; f.cost = ['buffer_x']
            out.append(f)
        return out
    def x_m0(self, a):
        return lambda: self.e(f"s_add_u32 m0, s{sM0X}, {(a % NXS)*XSLOT}")
    def dma_x(self, a):
        e = self.e; out = []
        slot = a % NXS
        out.append(lambda: e(f"s_add_u32 m0, s{sM0X}, {slot*XSLOT}"))
        def first():
            wr = [i for i, r in enumerate(self.rots[1:]) if 20 - r == 2 * a]
            if a == 0: e(f"s_lshl_b32 s{sKX}, s{sROT}, 6" if len(self.rots) > 1 else f"s_mov_b32 s{sKX}, 0")
            elif wr: e(f"s_add_u32 s{sKX}, s{sKX}, s{sDX+wr[0]}")
            elif self.opt.get('kfix'): e(f"s_mov_b32 s{sKX}, {(a % (self.opt['kfix']//2))*128}")
            else: e(f"s_add_u32 s{sKX}, s{sKX}, 128")
        out.append(first)
        for p in range(4):
            def f(p=p):
                if self.opt.get('nox') and a > 0: self.dma_ids[('x', a)] = -1; return
                self.dma_ids[('x', a)] = e(f"buffer_load_dwordx4 v{self.vDx+p}, s[{SX}:{SX+3}], s{sKX} offen offset:{p*1024} lds")
            f.dma = 1; f.cost = ['buffer_x']
            out.append(f)
        if self.role == 'A':
            out.append(lambda: e(f"s_add_u32 m0, s{sM0H}, {slot*XSLOT}"))
            def h():
                e(f"s_mov_b32 exec_hi, 0")
                self.dma_ids[('x', a)] = e(f"buffer_load_dwordx4 v{self.vDh}, s[{SX}:{SX+3}], s{sKX} offen lds")
                e(f"s_mov_b32 exec_hi, -1")
            h.cost = ['s_x', 'buffer_x', 's_x']; h.dma = 1
            out.append(h)
        return out

    def frags(self):
        fr = []
        if self.role == 'A':
            for t in range(5): fr.append((0, 8*t, [('WX', self.accQ(0, t), 0), ('WX', self.accQ(1, t), 1)]))
            for t in range(5):
                m = [('WX', self.accK(0, t), 0), ('WX', self.accK(1, t), 1)]
                if t == 4: m.append(('WX', self.hK4, 2))
                fr.append((0, 160 + 8*t, m))
            for u in range(5):
                m = [('XW', self.accV(0, u), 0), ('XW', self.accV(1, u), 1)]
                if u == 4: m.append(('XW', self.hV4, 2))
                if u < 4: fr.append((2, 320 + 40*u, m))
                else: fr.append((0, 320 + 32, m))
            fr.append((4, 160, [('WX', self.hK, 2), ('GX', self.accG(0), 0)]))
            fr.append((6, 320, [('XW', self.hV, 2), ('GX', self.accG(1), 1)]))
            self.hstride = 480
        else:
            for t in range(7): fr.append((2 if t < 6 else 0, 32*t if t < 6 else 0, [('WX', self.accF(Tt, t), Tt) for Tt in range(4)]))
            self.hstride = 512
        return fr
    def read_frag(self, gf):
        e = self.e
        fr = self.fr; st, f = divmod(gf, len(fr))
        pat, off, _ = fr[f]
        slot = st % NWS
        base = self.vWb + pat + (1 if slot >= 3 else 0)
        o = (slot - (3 if slot >= 3 else 0)) * WSLOT + off
        d = self.vWF + 4 * (gf % self.NF)
        return [f"ds_read_b64_tr_b16 v[{d}:{d+1}], v{base} offset:{o}",
                f"ds_read_b64_tr_b16 v[{d+2}:{d+3}], v{base} offset:{o+self.hstride}"]
    def read_x(self, st):
        a, kk = divmod(st, 2); slot = a % NXS
        b = self.vXF + 16 * (st & 1)
        out = [f"ds_read_b128 v[{b}:{b+3}], v{self.vXo+kk} offset:{slot*XSLOT}",
               f"ds_read_b128 v[{b+4}:{b+7}], v{self.vXo+kk} offset:{slot*XSLOT+2048}"]
        if self.role == 'A':
            out += [f"ds_read_b128 v[{b+8}:{b+11}], v{self.vXh+kk} offset:{slot*XSLOT}",
                    f"ds_read_b128 v[{b+12}:{b+15}], v{self.vG} offset:{st*64}"]
        else:
            out += [f"ds_read_b128 v[{b+8}:{b+11}], v{self.vXo+kk} offset:{slot*XSLOT+4096}",
                    f"ds_read_b128 v[{b+12}:{b+15}], v{self.vXo+kk} offset:{slot*XSLOT+6144}"]
        return out
    def mfma(self, st, gf, spec):
        kind, acc, xi = spec
        w = self.vWF + 4 * (gf % self.NF); x = self.vXF + 16 * (st & 1) + 4 * xi
        if kind == 'GX': w = self.vXF + 16 * (st & 1) + 12
        a, b = (x, w) if kind == 'XW' else (w, x)
        c = f"v[{acc}:{acc+3}]" if st > 0 else "0"
        return f"v_mfma_f32_16x16x32_bf16 v[{acc}:{acc+3}], v[{a}:{a+3}], v[{b}:{b+3}], {c}"

    def barrier_for(self, st):
        e = self.e
        ids = [self.dma_ids[('w', st)]]
        if st % 2 == 0: ids.append(self.dma_ids[('x', st // 2)])
        live = [i for i in ids if i in e.vm]
        if live: e.wait_vm(max(live, key=e.vm.index))
        if not (self.opt.get('nobar') and st > 0): e("s_barrier")

    def prologue_dma(self):
        e = self.e
        if self.role == 'A':
            T = self.vT
            e(f"""
            s_mul_i32 s{sT0}, s{sWV}, 320
            s_add_u32 m0, s{sT0}, {GOFF}
            v_lshl_add_u32 v{T}, v{self.vLane}, 4, s{sT0}
            """)
            if len(self.rots) > 1:
                e(f"""
                s_lshl_b32 s{sT1}, s{sROT}, 6
                v_add_u32 v{T}, s{sT1}, v{T}
                v_subrev_u32 v{T+1}, 1280, v{T}
                v_min_u32 v{T}, v{T}, v{T+1}
                """)
            e(f"""
            s_mov_b64 exec, 0xfffff
            buffer_load_dwordx4 v{T}, s[{SGATE}:{SGATE+3}], 0 offen lds
            s_mov_b64 exec, -1
            """)
            for f in self.dma_x(0)[6:]: f()
        self.halo_id = e.vm[-1]
        self.dma_ids[('w', 0)] = self.dma_ids[('x', 0)] = e.first_id
        self.pre_issued = [('x', 0), ('w', 0), ('w', 1), ('x', 1), ('w', 2), ('w', 3), ('x', 2), ('w', 4)][:self.opt.get('npre', 2)]
    def prologue_dma2(self):
        for item in self.pre_issued[2:]:
            for f in (self.dma_x if item[0] == 'x' else self.dma_w)(item[1]): f()

    def mainloop(self, extra=None):
        e = self.e; opt = self.opt
        self.fr = fr = self.frags(); nf = len(fr); NF = self.NF
        NST = 20
        sch = Sched(e)
        first = {}; last = {}
        for st in range(NST):
            for f in range(nf):
                gf = st * nf + f
                for spec in fr[f][2]:
                    i = sch.main(self.mfma(st, gf, spec) if not opt.get('nomfma') else (lambda: None))
                    first.setdefault(gf, i); last[gf] = i
        step0 = [first[st * nf] for st in range(NST)] + [len(sch.mains)]
        self.step0 = step0
        lead = opt.get('lead', 9) if self.role == 'A' else opt.get('leadF', 12)
        ids = {}
        bars = {}
        self.barrier_for(0); self.tm.stamp()
        bpos = [-2] + [step0[st] - lead - 1 for st in range(1, NST)] + [step0[NST] - lead - 1]
        if self.role == 'A':
            def b0(): e.wait_vm(self.halo_id); e("s_barrier")
            sch.add('bar', b0, early=8, dead=8, cost=['s_x', 's_barrier'])
        for st in range(1, NST):
            def b(st=st): self.barrier_for(st)
            bars[st] = sch.add('bar', b, early=bpos[st], dead=bpos[st], cost=['s_x', 's_barrier'])
        self.bars = bars; self.bpos = bpos
        for st in range(NST):
            xr = self.read_x(st)
            l = []
            for f in range(nf):
                gf = st * nf + f
                rf = [(x, gf) for x in self.read_frag(gf)]
                l += rf if f else [rf[0], (xr[0], None), rf[1], (xr[1], None)]
                fx = (4, 8) if st else (9, 11)
                if self.role == 'A' and f in fx: l.append((xr[2 + (f == fx[1])], 'late' if st == 0 else None))
                if self.role == 'F' and f == 0: l += [(xr[2], None), (xr[3], None)]
            lo = bpos[st] + 1; G = bpos[st + 1] - lo
            if st == 0: lo = -lead; G = bpos[1] - lo
            for k, (x, gf) in enumerate(l):
                g = max(-1, lo + k * G // len(l))
                if gf == 'late': assert g > 8; gf = None
                if gf is not None and gf >= NF: assert g >= last[gf - NF], (st, gf, g, last[gf - NF])
                if gf is not None: assert g < first[gf] - 2 or st == 0, (st, gf, g, first[gf])
                def r(x=x, gf=gf):
                    if not opt.get('nomfma'): ids[gf] = e(x)
                sch.add('rd', r, early=g, dead=g, cost=[x])
        WG = opt.get('wg', 2) if self.role == 'A' else 1
        ng = NST * nf
        for gf in range(0, ng, WG):
            tgt = min(gf + WG - 1, ng - 1)
            def w(tgt=tgt):
                if tgt in ids: e.wait_lg(ids[tgt])
            if gf > 0: sch.add('wait', w, early=first[gf] - 2, dead=first[gf] - 1)
        pre = self.pre_issued
        per = [[] for _ in range(NST)]
        xsplit = {}
        for st in range(NST):
            l = []
            for s2 in range(NST):
                if ('w', s2) not in pre and max(s2 - 3, 0) == st: l.append((s2, self.dma_w(s2)))
            for a in range(10):
                if ('x', a) in pre: continue
                st0 = max(2 * (a - 2), 0)
                if st0 == st:
                    fns = self.dma_x(a)
                    if a >= 3 and opt.get('xsplit', 1):
                        l.append((2 * a - 0.5, fns[:5])); xsplit[st + 1] = (2 * a - 0.5, [self.x_m0(a)] + fns[5:])
                    else: l.append((2 * a - 0.5, fns))
            if st in xsplit: l.append(xsplit[st])
            l.sort(key=lambda t: t[0] + (opt.get('xlate', 0) if t[0] != int(t[0]) else 0))
            for _, fns in l: per[st] += fns
        for st in range(NST):
            fns = per[st]
            nd = sum(1 for f in fns if getattr(f, 'dma', 0))
            b0 = max(bpos[st], -1)
            k = 0; span = int((bpos[st + 1] - b0 - 1) * opt.get('dspan' + self.role, 1.0))
            for fn in fns:
                pos = b0 + 1 + int((k + opt.get('dph', 0.3)) * span / max(nd, 1))
                if getattr(fn, 'dma', 0): k += 1; fn.sep = 1
                else: pos -= 3
                if opt.get('nodma') and getattr(fn, 'dma', 0):
                    for q in range(20): self.dma_ids.setdefault(('w', q), -1); self.dma_ids.setdefault(('x', q), -1)
                    continue
                sch.add('dma', fn, early=pos, dead=min(pos + opt.get('dslack', 2), bpos[st + 1] - 1), after=[bars.get(st)])
        if self.tm.on and not opt.get('ts2') and not opt.get('ts4'):
            for st in opt.get('tsst', (5, 10)): sch.add('ts', self.tm.stamp, early=step0[st], dead=step0[st])
        if extra: extra(sch)
        sch.run()
        self.over = sch.over

    def ffn_consts(self):
        e = self.e
        e(f"""
        s_mul_i32 s{sT0}, s{sC}, {7*A2_STEP}
        s_lshl_b32 s{sT1}, s{sRB}, 13
        s_add_u32 s{sT0}, s{sT0}, s{sT1}
        s_lshr_b32 s{sT1}, s{sWV}, 1
        s_lshl_b32 s{sT1}, s{sT1}, 12
        s_add_u32 s{sT0}, s{sT0}, s{sT1}
        s_and_b32 s{sT1}, s{sWV}, 1
        s_lshl_b32 s{sT2}, s{sT1}, 9
        s_add_u32 s{sT2}, s{sT2}, {3*A2_STEP}
        s_add_u32 s{sE+3}, s{sT0}, s{sT2}
        s_lshl_b32 s{sT1}, s{sT1}, 19
        s_add_u32 s{sE}, s{sT0}, s{sT1}
        s_add_u32 s{sE+1}, s{sE}, {A2_STEP}
        s_add_u32 s{sE+2}, s{sE}, {2*A2_STEP}
        v_lshlrev_b32 v{self.vT+4}, 4, v{self.vLane}
        v_lshlrev_b32 v{self.vT+5}, 3, v{self.vLane}
        """)
    def ffn_groups(self, aux):
        e = self.e; out = []
        def st(x):
            def f(): self.last_store = e(x)
            f.cost = [x]
            return f
        for m in range(4):
            for Tt in range(4):
                a = self.accF(Tt, 2*m); n = 4 if m < 3 else 2
                l = [f"v_cvt_pk_bf16_f32 v{a+i}, v{a+2*i}, v{a+2*i+1}" for i in range(n)]
                l += [f"v_pk_max_i16 v{a+i}, v{a+i}, 0" for i in range(n)]
                if m < 3: l.append(st(f"buffer_store_dwordx4 v[{a}:{a+3}], v{self.vT+4}, s[{SH}:{SH+3}], s{sE+m} offen offset:{Tt*1024} {aux}"))
                else: l.append(st(f"buffer_store_dwordx2 v[{a}:{a+1}], v{self.vT+5}, s[{SH}:{SH+3}], s{sE+3} offen offset:{Tt*1024} {aux}"))
                out.append((4 * min(2*m + 1, 6) + Tt, l))
        return out
    def ffn_lastloop(self, sch, aux):
        g0 = self.step0[19]; n = self.step0[20]
        self.ffn_rest = []
        pos = g0
        for rdy, l in self.ffn_groups(aux):
            pos = max(pos, g0 + rdy + 5)
            if pos + 4 < n and not self.ffn_rest:
                for k, x in enumerate(l): sch.add('cv', x, early=pos + k // 2, dead=pos + k // 2 + 1)
                pos += 4
            else: self.ffn_rest += l
    def epilogue_F(self, side=()):
        weave(self.e, self.ffn_rest, list(side))

    def att_consts(self):
        e = self.e; T = self.vT; L = self.vLane
        sPar, sM0, sM1, sG1, sG2, sG3 = [sMASK + 2 * i for i in range(6)]
        vSel = T + 4
        e(f"""
        v_and_b32 v{T}, 15, v{L}
        v_lshrrev_b32 v{T+1}, 4, v{L}
        v_and_b32 v{T+2}, 1, v{L}
        v_cmp_eq_u32 s[{sPar}:{sPar+1}], 1, v{T+2}
        v_lshl_add_u32 v{T+3}, v{T+1}, 2, v{T+2}
        v_cmp_le_u32 s[{sM0}:{sM0+1}], v{T+3}, v{T}
        v_add_u32 v{T+3}, 2, v{T+3}
        v_cmp_le_u32 s[{sM1}:{sM1+1}], v{T+3}, v{T}
        v_cmp_eq_u32 s[{sG1}:{sG1+1}], 1, v{T+1}
        v_cmp_eq_u32 s[{sG2}:{sG2+1}], 2, v{T+1}
        v_cmp_eq_u32 s[{sG3}:{sG3+1}], 3, v{T+1}
        v_mov_b32 v{T}, 0x0c0c0100
        v_mov_b32 v{T+1}, 0x01000c0c
        v_cndmask_b32 v{T}, v{T}, v{T+1}, s[{sPar}:{sPar+1}]
        v_mov_b32 v{T+1}, 0x0c0c0302
        v_mov_b32 v{T+2}, 0x03020c0c
        v_cndmask_b32 v{T+1}, v{T+1}, v{T+2}, s[{sPar}:{sPar+1}]
        v_mov_b32 v{T+2}, 0x0c0c0c0c
        v_cndmask_b32 v{vSel}, v{T}, v{T+2}, s[{sM0}:{sM0+1}]
        v_cndmask_b32 v{vSel+1}, v{T+1}, v{T+2}, s[{sM1}:{sM1+1}]
        v_cndmask_b32 v{vSel+2}, v{T+2}, v{T}, s[{sM0}:{sM0+1}]
        v_cndmask_b32 v{vSel+3}, v{T+2}, v{T+1}, s[{sM1}:{sM1+1}]
        s_lshr_b32 s{sT0}, s{sC}, 1
        s_lshl_b32 s{sE+3}, s{sT0}, 13
        s_mul_i32 s{sT0}, s{sT0}, 5
        s_add_u32 s{sT0}, s{sT0}, 54
        s_and_b32 s{sT1}, s{sC}, 1
        s_mul_i32 s{sT2}, s{sT1}, 3
        s_add_u32 s{sT2}, s{sT2}, s{sT0}
        s_lshl_b32 s{sT2}, s{sT2}, 17
        s_add_u32 s{sT0}, s{sT0}, 2
        s_lshl_b32 s{sT0}, s{sT0}, 17
        s_lshl_b32 s{sT1}, s{sT1}, 9
        s_add_u32 s{sT0}, s{sT0}, s{sT1}
        s_lshl_b32 s{sT1}, s{sRB}, 13
        s_lshl_b32 s{sT3}, s{sWV}, 11
        s_add_u32 s{sT1}, s{sT1}, s{sT3}
        s_add_u32 s{sE}, s{sT0}, s{sT1}
        s_add_u32 s{sE+1}, s{sT2}, s{sT1}
        s_add_u32 s{sE+2}, s{sE+1}, {A2_STEP}
        s_lshr_b32 s{sT1}, s{sT1}, 4
        s_add_u32 s{sT1}, s{sT1}, {G_OFF}
        s_add_u32 s{sE+3}, s{sE+3}, s{sT1}
        s_bitcmp1_b32 s{sC}, 0
        s_cselect_b32 s{sT1}, {OOB}, 0
        s_add_u32 s{sE+3}, s{sE+3}, s{sT1}
        s_or_b32 s{sT1}, s{sRB}, s{sWV}
        s_cmp_eq_u32 s{sT1}, 0
        s_cselect_b32 s{sE+4}, 0xff800000, 0
        s_mov_b32 s{sE+5}, {f2h(1.4426950408889634 * 20 ** -0.5)}
        """)

    EX = XOFF + XSLOT
    @staticmethod
    def cvt2(d, a): return [f"v_cvt_pk_bf16_f32 v{d}, v{a}, v{a+1}", f"v_cvt_pk_bf16_f32 v{d+1}, v{a+2}, v{a+3}"]

    def att_lastloop(self, sch):
        e = self.e; L = self.vLane
        g0 = self.step0[19]
        pre = [f"s_add_u32 s{sT0}, s{sWV}, 1", f"s_mul_i32 s{sT0}, s{sT0}, 5120", f"s_add_u32 s{sT0}, s{sT0}, {self.EX}",
               f"v_lshlrev_b32 v{self.vDx+1}, 3, v{L}", f"v_add_u32 v{self.vDx}, s{sT0}, v{self.vDx+1}",
               f"s_lshl_b32 s{sT0}, s{sWV}, 9", f"s_add_u32 s{sT0}, s{sT0}, {self.EX}",
               f"v_add_u32 v{self.vDx+2}, s{sT0}, v{self.vDx+1}", f"v_add_u32 v{self.vDx+3}, {self.EX}, v{self.vDx+1}",
               f"v_lshlrev_b32 v{self.vDw}, 4, v{L}", f"v_and_b32 v{self.vDw+1}, 15, v{L}", f"v_lshlrev_b32 v{self.vDw+1}, 2, v{self.vDw+1}"]
        for k, x in enumerate(pre): sch.add('cv', x, early=g0 - 14 + k, dead=g0 + 4)
        lag = 5
        for t in range(5):
            for Tt in (0, 1):
                for x in self.cvt2(self.accQ(Tt, t), self.accQ(Tt, t)): sch.add('cv', x, early=g0 + 2*t + Tt + lag, dead=g0 + 30)
        for t in range(5):
            for Tt in (0, 1):
                for x in self.cvt2(self.accK(Tt, t), self.accK(Tt, t)): sch.add('cv', x, early=g0 + 10 + 2*t + Tt + lag, dead=g0 + 34)
        for x in self.cvt2(self.hK4, self.hK4): sch.add('cv', x, early=g0 + 20 + lag, dead=g0 + 35)

    def epilogue_A(self, aux='', hooks=None):
        e = self.e; T = self.vT; L = self.vLane; hooks = hooks or {}
        sPar, sM0, sM1, sG1, sG2, sG3 = [sMASK + 2 * i for i in range(6)]
        vSel = T + 4; cvt2 = self.cvt2
        H = lambda n: list(hooks.get(n, []))
        Vp = lambda Tt, u: 32 + 6 * u + 2 * (Tt + 1)
        Kp = lambda Tt, t: self.accK(Tt, t) if Tt >= 0 else self.hK + 2 * t
        Qp = self.accQ
        Sc = {1: 62, 0: 176}; Sp = {1: 78, 0: 192}
        vE, vE8, vEh, vE0 = self.vDx, self.vDx + 1, self.vDx + 2, self.vDx + 3
        def qk(Tt):
            l = []
            for t in range(5):
                for (Sr, kt) in ((Sc[Tt], Tt), (Sp[Tt], Tt - 1)):
                    c = f"v[{Sr}:{Sr+15}]" if t else "0"
                    l.append(f"v_mfma_f32_16x16x4_4b_bf16 v[{Sr}:{Sr+15}], v[{Kp(kt,t)}:{Kp(kt,t)+1}], v[{Qp(Tt,t)}:{Qp(Tt,t)+1}], {c}")
            return l
        side = [f"ds_write_b64 v{vE}, v[{Kp(1,t)}:{Kp(1,t)+1}] offset:{512*t}" for t in range(5)]
        side.append(f"ds_write_b64 v{vE0}, v[{self.hK4}:{self.hK4+1}] offset:2048")
        for u in range(5):
            side += cvt2(Vp(1, u), self.accV(1, u)) + [f"ds_write_b64 v{vE}, v[{Vp(1,u)}:{Vp(1,u)+1}] offset:{2560+512*u}"]
        side += cvt2(self.hV4, self.hV4) + [f"ds_write_b64 v{vE0}, v[{self.hV4}:{self.hV4+1}] offset:{2560+2048}"]
        side += cvt2(self.hK, self.hK) + [f"ds_write_b64 v{vEh}, v[{self.hK}:{self.hK+1}]"]
        side += cvt2(self.hV, self.hV) + [f"ds_write_b64 v{vEh}, v[{self.hV}:{self.hV+1}] offset:2560"]
        for u in range(5): side += cvt2(Vp(0, u), self.accV(0, u))
        side.append(f"v_subrev_u32 v{vE}, 5120, v{vE}")
        TS = self.tm.stamp if self.opt.get('ts4') else (lambda: None)
        weave(e, qk(1), side + H('qk1')); TS()
        e.wait_lg_all(); e("s_barrier")
        for t in range(5): e(f"ds_read_b64 v[{Kp(-1,t)}:{Kp(-1,t)+1}], v{vE} offset:{512*t}")
        for u in range(5): e(f"ds_read_b64 v[{Vp(-1,u)}:{Vp(-1,u)+1}], v{vE} offset:{2560+512*u}")
        gate = []
        for op in range(5):
            for Tt in range(2):
                g = self.accG(Tt)
                gate.append([f"v_mul_f32 v{g}, {f2h(-1.4426950408889634)}, v{g}", f"v_exp_f32 v{g}, v{g}", f"v_add_f32 v{g}, 1.0, v{g}",
                             f"v_rcp_f32 v{g}, v{g}", f"v_sub_f32 v{g+1}, 1.0, v{g}"][op])
        for Tt in range(2):
            gate.append(f"buffer_store_dword v{self.accG(Tt)+1}, v{self.vDw+1}, s[{SWS}:{SWS+3}], s{sE+3} offen offset:{64*Tt} {aux}")
        weave(e, gate, H('bar')); TS()
        def softmax(Tt):
            sc, sp = Sc[Tt], Sp[Tt]; l = []
            m0 = [sc + 4*bb for bb in range(4)]; m1 = [sc + 4*bb + 2 for bb in range(4)]
            for bb in range(4):
                c0, p0 = sc + 4*bb, sp + 4*bb
                l += [f"v_cndmask_b32 v{c0}, v{c0}, v{c0+1}, s[{sPar}:{sPar+1}]", f"v_cndmask_b32 v{c0+2}, v{c0+2}, v{c0+3}, s[{sPar}:{sPar+1}]",
                      f"v_cndmask_b32 v{p0}, v{p0}, v{p0+1}, s[{sPar}:{sPar+1}]", f"v_cndmask_b32 v{p0+2}, v{p0+2}, v{p0+3}, s[{sPar}:{sPar+1}]"]
                if Tt == 0: l += [f"v_add_f32 v{p0}, s{sE+4}, v{p0}", f"v_add_f32 v{p0+2}, s{sE+4}, v{p0+2}"]
            for bb in range(4):
                c0, p0 = sc + 4*bb, sp + 4*bb
                l += [f"v_cndmask_b32 v{c0}, v{p0}, v{c0}, s[{sM0}:{sM0+1}]"]
            for bb in range(4):
                c0, p0 = sc + 4*bb, sp + 4*bb
                l += [f"v_cndmask_b32 v{c0+2}, v{p0+2}, v{c0+2}, s[{sM1}:{sM1+1}]"]
            for m in (m0, m1): l += [f"v_permlane32_swap_b32 v{m[0]}, v{m[2]}", f"v_permlane32_swap_b32 v{m[1]}, v{m[3]}"]
            for m in (m0, m1): l += [f"v_permlane16_swap_b32 v{m[0]}, v{m[1]}", f"v_permlane16_swap_b32 v{m[2]}, v{m[3]}"]
            vals = m0 + m1; t0, t1 = sp, sp + 1
            l += [f"v_max3_f32 v{t0}, v{vals[0]}, v{vals[1]}, v{vals[2]}", f"v_max3_f32 v{t1}, v{vals[3]}, v{vals[4]}, v{vals[5]}",
                  f"v_max3_f32 v{t0}, v{t0}, v{vals[6]}, v{vals[7]}", f"v_max_f32 v{t0}, v{t0}, v{t1}", f"v_mul_f32 v{t0}, s{sE+5}, v{t0}"]
            l += [f"v_fma_f32 v{x}, v{x}, s{sE+5}, -v{t0}" for x in vals]
            l += [f"v_exp_f32 v{x}, v{x}" for x in vals]
            l += [f"v_add_f32 v{t0}, v{vals[0]}, v{vals[1]}", f"v_add_f32 v{t1}, v{vals[2]}, v{vals[3]}", f"v_add_f32 v{t0+2}, v{vals[4]}, v{vals[5]}",
                  f"v_add_f32 v{t0}, v{t0}, v{t1}", f"v_add_f32 v{t0+3}, v{vals[6]}, v{vals[7]}", f"v_add_f32 v{t0}, v{t0}, v{t0+2}",
                  f"v_add_f32 v{t0}, v{t0}, v{t0+3}", f"v_rcp_f32 v{t0}, v{t0}", f"v_mul_f32 v{t0}, v{t0}, v{self.accG(Tt)}"]
            l += [f"v_mul_f32 v{x}, v{t0}, v{x}" for x in (vals[0], vals[4], vals[2], vals[6], vals[1], vals[5], vals[3], vals[7])]
            P = [sp + 4 + i for i in range(4)]
            l += [f"v_cvt_pk_bf16_f32 v{P[i]}, v{m0[i]}, v{m1[i]}" for i in (0, 2, 1, 3)]
            l += [f"v_permlane32_swap_b32 v{P[0]}, v{P[2]}", f"v_permlane32_swap_b32 v{P[1]}, v{P[3]}",
                  f"v_permlane16_swap_b32 v{P[0]}, v{P[1]}", f"v_permlane16_swap_b32 v{P[2]}, v{P[3]}"]
            for bb in range(4): l += [f"v_perm_b32 v{sc+4*bb+i}, v{P[bb]}, v{P[bb]}, v{vSel+i}" for i in range(4)]
            return l
        O = [96 + 4*i for i in range(8)]
        def pv(Tt):
            sc = Sc[Tt]; l = []
            for bb in range(4):
                l.append(f"v_mfma_f32_16x16x32_bf16 v[{O[bb]}:{O[bb]+3}], v[{Vp(Tt-1,bb)}:{Vp(Tt-1,bb)+3}], v[{sc+4*bb}:{sc+4*bb+3}], 0")
            for bb in range(4):
                l.append(f"v_mfma_f32_16x16x32_bf16 v[{O[4+bb]}:{O[4+bb]+3}], v[{Vp(Tt-1,4)}:{Vp(Tt-1,4)+3}], v[{sc+4*bb}:{sc+4*bb+3}], 0")
            return l
        def final(Tt):
            sp = Sp[Tt]; o = sp + 8; o4 = sp; l = []
            def st(x):
                def f(): self.last_store = e(x)
                return f
            for bb in range(4): l += cvt2(o + 2*bb, O[bb])
            l.insert(4, st(f"buffer_store_dwordx4 v[{o}:{o+3}], v{self.vDw}, s[{SWS}:{SWS+3}], s{sE+1} offen offset:{1024*Tt} {aux}"))
            l.append(st(f"buffer_store_dwordx4 v[{o+4}:{o+7}], v{self.vDw}, s[{SWS}:{SWS+3}], s{sE+2} offen offset:{1024*Tt} {aux}"))
            for bb in range(4): l += cvt2(o4 + 2*bb, O[4+bb])
            for bb, sg in ((1, sG1), (2, sG2), (3, sG3)):
                l += [f"v_cndmask_b32 v{o4}, v{o4}, v{o4+2*bb}, s[{sg}:{sg+1}]", f"v_cndmask_b32 v{o4+1}, v{o4+1}, v{o4+2*bb+1}, s[{sg}:{sg+1}]"]
            l.append(st(f"buffer_store_dwordx2 v[{o4}:{o4+1}], v{vE8}, s[{SWS}:{SWS+3}], s{sE} offen offset:{1024*Tt} {aux}"))
            return l
        s1 = softmax(1)
        q0 = qk(0); h = H('sm1'); side = []
        for i in range(max(len(q0), 1)):
            side.append(q0[i]); side += h[i * len(h) // len(q0):(i + 1) * len(h) // len(q0)]
        weave(e, s1, side, start=4, end=len(s1) - 12); TS()
        s0 = softmax(0)
        weave(e, s0[:20], pv(1), start=0, end=16)
        weave(e, final(1), H('mid')); TS()
        weave(e, s0[20:], H('sm0')); TS()
        weave(e, pv(0), H('pv0'))
        weave(e, final(0), H('end'))
```

```python
from common import *
from sched import *
NH = 14; NSL = 19
SET1 = WOFF + 3 * WSLOT
RED = 0

class P2:
    def __init__(self, e, role, opt, tm):
        self.e = e; self.role = role; self.opt = opt; self.tm = tm
        self.NT = NT = 4 if role == 'A' else 7
        self.vLane = 1
        self.vGm = 2; self.vA = 11; self.vRw = 15; self.vRr = 17; self.vO = 18; self.vGaddr = 19; self.vTr2 = 20; self.vT = 24
        self.vAcc = 32
        if role == 'A':
            self.vR = 96; self.vR2 = 112; self.ring = [128 + 4*i for i in range(12)] + [208 + 4*i for i in range(6)]
        else:
            self.vR = 144; self.vR2 = 224; self.ring = [160 + 4*i for i in range(16)]
        self.ring = self.ring[:opt.get('na', 11)]
        self.NA = len(self.ring)
        self.stage_ids = {}; self.base = {}; self.rd_ids = {}; self.a_ids = {}
        self.acc = lambda T, u: self.vAcc + 16 * T + 4 * u
        self.items = ([(i, T) for i in range(NH - 2) for T in range(NT)] + [(i, T) for T in range(NT) for i in (NH - 2, NH - 1)]
                      + [(NH + s, T) for T in range(NT) for s in range(5)])
        self.nload = 0; self.nlab = 0
        self.aux = opt.get('aux', 'sc1')

    def setup_early(self):
        e = self.e; T = self.vT; L = self.vLane; A = self.role == 'A'
        nt, t0, n = (4, 84, 11) if A else (7, 0, 12)
        e(f"""
        s_lshr_b32 s{sT1}, s2, 3
        s_and_b32 s{sT1}, s{sT1}, 15
        s_mul_i32 s{sT2}, s{sT1}, 13
        s_lshr_b32 s{sT2}, s{sT2}, 6
        s_mul_i32 s{sT3}, s{sT2}, 5
        s_sub_u32 s{sCOL}, s{sT1}, s{sT3}
        s_bitcmp1_b32 s2, 0
        s_cselect_b32 s{sT3}, 5, 0
        s_add_u32 s{sCOL}, s{sCOL}, s{sT3}
        s_cmp_ge_u32 s{sT2}, 3
        s_cselect_b32 s{sOFF2}, {OOB}, 0
        s_bfe_u32 s{sT0}, s2, 0x20001
        s_mul_i32 s{sT0}, s{sT0}, 3
        s_add_u32 s{sT0}, s{sT0}, s{sT2}
        s_cmp_ge_u32 s{sT0}, {n}
        s_cselect_b32 s{sOFF2}, {OOB}, s{sOFF2}
        s_min_u32 s{sT0}, s{sT0}, {n-1}
        s_mul_i32 s{sTOK}, s{sT0}, {nt}
        s_add_u32 s{sTOK}, s{sTOK}, {t0}
        s_lshl_b32 s{sT0}, s{sCOL}, 7
        s_add_u32 s{sT0}, s{sT0}, s{sOFF2}
        v_lshrrev_b32 v{T}, 3, v{L}
        v_and_b32 v{T+1}, 7, v{L}
        v_lshrrev_b32 v{T+2}, 4, v{L}
        v_lshlrev_b32 v{T+3}, 1, v{T+2}
        v_xor_b32 v{T+1}, v{T+1}, v{T+3}
        v_lshl_add_u32 v{T+1}, v{T+1}, 4, s{sT0}
        v_mul_u32_u24 v{T+3}, 1280, v{T}
        v_add_u32 v{vH}, v{T+3}, v{T+1}
        v_add_u32 v{vH+1}, {1*(8*1280-1024)}, v{vH}
        v_add_u32 v{vH+2}, {2*(8*1280-1024)}, v{vH}
        v_add_u32 v{vH+3}, {3*(8*1280-1024)}, v{vH}
        v_lshrrev_b32 v{T+3}, 2, v{T}
        v_mul_u32_u24 v{T+3}, {16*1280}, v{T+3}
        v_add_u32 v{vY}, v{T+3}, v{vH}
        v_lshrrev_b32 v{T}, 2, v{L}
        v_lshrrev_b32 v{T+1}, 1, v{T}
        v_and_b32 v{T+1}, 3, v{T+1}
        v_and_b32 v{T+2}, 3, v{L}
        v_lshlrev_b32 v{T+2}, 3, v{T+2}
        v_lshl_add_u32 v{T+2}, v{T}, 7, v{T+2}
        v_add_u32 v{T+2}, s{sM2}, v{T+2}
        """)
        for u in range(4):
            e(f"v_xor_b32 v{T+3}, {u}, v{T+1}\nv_lshl_add_u32 v{vTr+u}, v{T+3}, 5, v{T+2}")
        e(f"""
        s_lshr_b32 s{sT0}, s2, 3
        s_and_b32 s{sT0}, s{sT0}, {1 if self.opt.get('rot2', 1) else 0}
        s_lshl_b32 s{sT1}, s{sWV}, 1
        s_add_u32 s{sT1}, s{sT1}, s{sT0}
        s_mul_i32 s{sK2}, s{sT1}, {7*32*1280}
        s_mul_i32 s{sKA}, s{sT1}, {7*A2_STEP}
        s_mul_i32 s{sD2}, s{sT0}, {-14*32*1280}
        s_add_u32 s{sD2}, s{sD2}, {32*1280}
        s_mul_i32 s{sDA}, s{sT0}, {-14*A2_STEP}
        s_add_u32 s{sDA}, s{sDA}, {A2_STEP}
        s_mul_i32 s{sKO}, s{sWV}, {160*1280}
        s_mul_i32 s{sO0}, s{sWV}, {5*A2_STEP}
        s_add_u32 s{sO0}, s{sO0}, {54*A2_STEP}
        """)
        for s in range(1, 5): e(f"s_add_u32 s{sO0+s}, s{sO0}, {s*A2_STEP}")
        e(f"""
        s_lshr_b32 s{sT0}, s{sTOK}, 3
        s_add_u32 s{sT1}, s{sTOK}, {nt-1}
        s_lshr_b32 s{sT1}, s{sT1}, 3
        s_sub_u32 s{sT1}, s{sT1}, s{sT0}
        v_bfe_u32 v{T}, v{L}, 3, 1
        v_mul_u32_u24 v{T}, s{sT1}, v{T}
        v_add_u32 v{T}, s{sT0}, v{T}
        v_lshlrev_b32 v{T+2}, 4, v{T}
        v_bfe_u32 v{T+1}, v{L}, 2, 1
        v_lshl_add_u32 v{T}, v{T}, 3, v{T+1}
        s_lshl_b32 s{sT0}, s{sWV}, 8
        s_add_u32 s{sT0}, s{sT0}, {FLAG_OFF}
        v_and_b32 v{T+1}, 3, v{L}
        v_lshl_add_u32 v{T+1}, v{T+1}, 2, s{sT0}
        v_lshl_add_u32 v{vPollO}, v{T}, 7, v{T+1}
        v_add_u32 v{vPollH}, {128*128}, v{vPollO}
        """)
        self.vCnt = T + 2

    def setup_late(self):
        T = self.vT; L = self.vLane
        l = f"""
        s_lshl_b32 s{sT0}, s{sTOK}, 10
        s_add_u32 s{sT0}, s{sT0}, s{sOFF2}
        v_lshl_add_u32 v{self.vA}, v{L}, 4, s{sT0}
        v_add_u32 v{self.vA+1}, 4096, v{self.vA}
        v_lshl_add_u32 v{self.vA+2}, v{L}, 3, s{sT0}
        v_add_u32 v{self.vA+3}, 4096, v{self.vA+2}
        v_and_b32 v{T}, 15, v{L}
        v_lshrrev_b32 v{T+1}, 4, v{L}
        v_and_b32 v{T+2}, 7, v{L}
        v_xor_b32 v{T+2}, v{T+2}, v{T+1}
        s_lshl_b32 s{sT0}, s{sWV}, 12
        s_add_u32 s{sT0}, s{sT0}, {RED}
        v_lshl_add_u32 v{T+3}, v{T}, 8, s{sT0}
        v_lshl_add_u32 v{self.vRw}, v{T+2}, 4, v{T+3}
        v_xor_b32 v{T+2}, 4, v{T+2}
        v_lshl_add_u32 v{self.vRw+1}, v{T+2}, 4, v{T+3}
        s_lshl_b32 s{sT0}, s{sWV}, 2
        v_add_u32 v{T+2}, s{sT0}, v{T+1}
        v_and_b32 v{T+3}, 7, v{T+2}
        v_xor_b32 v{T+3}, v{T+3}, v{T}
        v_lshlrev_b32 v{T+3}, 4, v{T+3}
        v_lshl_add_u32 v{self.vRr}, v{T+2}, 8, v{T+3}
        s_lshl_b32 s{sT0}, s{sTOK}, 4
        v_add_u32 v{T+2}, s{sT0}, v{T+2}
        v_mul_u32_u24 v{T+2}, 1280, v{T+2}
        s_lshl_b32 s{sT0}, s{sCOL}, 7
        v_lshl_add_u32 v{T+3}, v{T}, 3, s{sT0}
        v_add_u32 v{self.vO}, v{T+2}, v{T+3}
        s_lshl_b32 s{sT0}, s{sTOK}, 6
        s_lshl_b32 s{sT1}, s{sWV}, 13
        s_add_u32 s{sT0}, s{sT0}, s{sT1}
        s_add_u32 s{sT0}, s{sT0}, {G_OFF}
        v_lshl_add_u32 v{self.vGaddr}, v{T}, 2, s{sT0}
        """.strip().split('\n')
        assert RED == 0
        return [x.strip() for x in l]
    def setup_tr2(self):
        return [f"v_add_u32 v{self.vTr2+u}, {SET1}, v{vTr+u}" for u in range(4)]

    def poll_issue(self, vaddr, srd=SWS):
        def f(): self.poll_id = self.e(f"buffer_load_dword v{vPD}, v{vaddr}, s[{srd}:{srd+3}], 0 offen sc1")
        f.cost = ['buffer_x']
        return f
    def poll_check(self, vaddr, want, srd=SWS):
        def f():
            e = self.e; self.nlab += 1
            lab = f"{self.role}_poll{self.nlab}"
            cmp = 'v_cmp_ne_u32' if want == 1 else 'v_cmp_gt_u32'
            e(f"{cmp} vcc, {want}, v{vPD}")
            e(f"s_cbranch_vccz {lab}_ok")
            e.raw(f"""    s_mov_b32 s3, 0
{lab}_spin:
    s_add_u32 s3, s3, 1
    s_cmp_gt_u32 s3, 0x8000
    s_cbranch_scc1 {lab}_ok
    s_sleep 1
    buffer_load_dword v{vPD}, v{vaddr}, s[{srd}:{srd+3}], 0 offen sc1
    s_waitcnt vmcnt(0)
    {cmp} vcc, {want}, v{vPD}
    s_cbranch_vccnz {lab}_spin
{lab}_ok:""")
        f.cost = ['s_x', 'v_x', 's_x']
        return f
    def set_flag(self, store_id):
        def f():
            e = self.e
            e(f"v_mov_b32 v{self.vT+1}, 1")
            e.wait_vm(store_id() if callable(store_id) else store_id)
            e(f"buffer_store_dword v{self.vT+1}, v{vFlag}, s[{SWS}:{SWS+3}], 0 offen sc1")
        f.cost = ['v_x', 's_x', 'buffer_x']
        return f

    def stage_dma(self, i, base):
        e = self.e; out = []
        prev = [j for j, b in self.base.items() if b == base]
        self.base[i] = base
        def S(x): return (lambda: e(x))
        def Dm(x):
            def f(): self.stage_ids[i] = e(x)
            f.cost = ['buffer_x']; f.dma = 1; f.sep = 1
            return f
        if prev: out.append(lambda j=max(prev): e.wait_lg(self.rd_ids[j]))
        out.append(S(f"s_add_u32 m0, s{sM2}, {base}"))
        if i < NH:
            if i > 0: out.append(S(f"s_add_u32 s{sK2}, s{sK2}, " + (f"s{sD2}" if i == 7 else f"{32*1280}")))
            for p in range(4): out.append(Dm(f"buffer_load_dwordx4 v{vH+p}, s[{SW2}:{SW2+3}], s{sK2} offen offset:{p*1024} lds"))
        else:
            s = i - NH
            if s != 2:
                rb = {0: 0, 1: 40, 3: 80, 4: 120}[s]
                out.append(S(f"s_add_u32 s{sK2}, s{sKO}, {rb*1280}"))
                for p in range(4):
                    if p == 2: out.append(S(f"s_add_u32 s{sK2}, s{sK2}, {4*1280}"))
                    out.append(Dm(f"buffer_load_dwordx4 v{vH+p}, s[{SWO}:{SWO+3}], s{sK2} offen offset:{p*1024} lds"))
            else:
                for p in range(4):
                    out.append(S(f"s_add_u32 s{sK2}, s{sKO}, {(80*(p>>1) + 40*(p&1) + 16)*1280 - 1024*p}"))
                    out.append(Dm(f"buffer_load_dwordx4 v{vY}, s[{SWO}:{SWO+3}], s{sK2} offen offset:{p*1024} lds"))
        return out
    def wreg(self, i, u): return 16 * (i % 16) + 4 * u
    def stage_read(self, i):
        e = self.e
        base = self.base[i]
        rb, off = (vTr, base) if base < SET1 else (self.vTr2, base - SET1)
        assert off + 2048 < 65536
        out = [lambda: e.wait_vm(self.stage_ids[i])]
        for u in range(4):
            for h in range(2):
                d = self.wreg(i, u) + 2 * h
                x = f"ds_read_b64_tr_b16 a[{d}:{d+1}], v{rb+u} offset:{off + 2048*h}"
                def f(x=x): self.rd_ids[i] = e(x)
                f.cost = [x]
                out.append(f)
        return out

    def a_load(self, n):
        e = self.e; aux = self.aux
        i, T = self.items[n]
        d = self.ring[n % self.NA]
        hi = 1 if T >= 4 else 0; off = (T - 4 * hi) * 1024
        out = []
        def Dm(x):
            def f(): self.a_ids[n] = e(x)
            f.cost = ['buffer_x']
            return f
        if i < NH:
            if T == 0 and 0 < i < NH - 1: out.append(lambda: e(f"s_add_u32 s{sKA}, s{sKA}, " + (f"s{sDA}" if i == 7 else f"{A2_STEP}")))
            if T == 0 and i == NH - 1: out.append(lambda: e(f"s_add_u32 s{sKB}, s{sKA}, {A2_STEP}"))
            sk = sKB if i == NH - 1 else sKA
            if i % 7 != 3: out.append(Dm(f"buffer_load_dwordx4 v[{d}:{d+3}], v{self.vA+hi}, s[{SH}:{SH+3}], s{sk} offen offset:{off} {aux}"))
            else:
                out.append(Dm(f"buffer_load_dwordx2 v[{d}:{d+1}], v{self.vA+2+hi}, s[{SH}:{SH+3}], s{sKA} offen offset:{off} {aux}"))
                out.append(Dm(f"buffer_load_dwordx2 v[{d+2}:{d+3}], v{self.vA+2+hi}, s[{SH}:{SH+3}], s{sKA} offen offset:{off+512} {aux}"))
        else:
            s = i - NH; so = sO0 + s
            if s != 2: out.append(Dm(f"buffer_load_dwordx4 v[{d}:{d+3}], v{self.vA+hi}, s[{SWS}:{SWS+3}], s{so} offen offset:{off} {aux}"))
            else:
                out.append(Dm(f"buffer_load_dwordx2 v[{d}:{d+1}], v{self.vA+2+hi}, s[{SWS}:{SWS+3}], s{so} offen offset:{off} {aux}"))
                out.append(Dm(f"buffer_load_dwordx2 v[{d+2}:{d+3}], v{self.vA+2+hi}, s[{SWS}:{SWS+3}], s{so} offen offset:{off+512} {aux}"))
        return out
    def first_loads(self, k=None):
        out = []
        k = self.NA if k is None else k
        while self.nload < k:
            out += self.a_load(self.nload); self.nload += 1
        return out

    def mainloop(self, n_read, n_dma, free_bases, extra=None):
        e = self.e; NT = self.NT; items = self.items; NA = self.NA
        sch = Sched(e)
        first = {}; last = {}
        for n, (i, T) in enumerate(items):
            r = self.ring[n % NA]
            for u in range(4):
                a = self.acc(T, u); w = self.wreg(i, u)
                c = f"v[{a}:{a+3}]" if i > 0 else "0"
                k = sch.main(f"v_mfma_f32_16x16x32_bf16 v[{a}:{a+3}], a[{w}:{w+3}], v[{r}:{r+3}], {c}")
                first.setdefault(n, k); last[n] = k
        nm = len(sch.mains)
        first_o = NH * NT
        step = [first[i * NT] for i in range(NH - 1)] + [first[first_o]]
        otile = [first[first_o + 5 * T] for T in range(NT)] + [nm]
        self.step = step
        for n in range(self.nload, len(items)):
            g = last[n - NA] if n >= NA else -1
            if n == first_o - self.opt.get('gearly', NT + 2):
                sch.add('a', self.poll_check(vPollO, 1), early=g, dead=g + 1)
                for T in range(NT):
                    x = f"buffer_load_dword v{self.vGm+T}, v{self.vGaddr}, s[{SWS}:{SWS+3}], 0 offen offset:{64*T} {self.aux}"
                    sch.add('a', x, early=g, dead=g + 2)
            if n == first_o - self.opt.get('gearly', NT + 2) - self.opt.get('pollead', 8): sch.add('a', self.poll_issue(vPollO), early=g, dead=g + 2)
            for fn in self.a_load(n): sch.add('a', fn, early=g, dead=g + 2)
        for n in range(1, len(items)):
            def w(n=n):
                if n in self.a_ids: e.wait_vm(self.a_ids[n])
            sch.add('aw', w, early=first[n] - 1, dead=first[n] - 1)
        free = list(free_bases); nd = n_dma; nr = n_read
        rem = NSL - n_read
        for i in range(NH - 1):
            want = min(NSL, n_read + -(-(i + 1) * rem // (NH - 2)), i + 16)
            if i == NH - 3: want = max(want, NH)
            l = []
            while nd < NSL and free:
                l += self.stage_dma(nd, free.pop(0)); nd += 1
            while nr < min(want, nd):
                l += self.stage_read(nr); free.append(self.base[nr]); nr += 1
            assert nr >= i + 2, (i, nr)
            span = step[i + 1] - step[i]
            for k, fn in enumerate(l):
                pos = step[i] + k * span // len(l)
                sch.add('stg', fn, early=pos, dead=min(pos + 2, step[i + 1] - 1))
        assert nr == NSL
        for T in range(NT):
            lo = last[(NH - 2) * NT + 2 * T + 1] + 4
            for k in range(16):
                pos = lo + k // 2
                sch.add('sc', f"v_mul_f32 v{self.acc(T,0)+k}, v{self.vGm+T}, v{self.acc(T,0)+k}", early=pos, dead=min(pos + 3, otile[T] - 2))
        R = self.vR
        def writes(T):
            b = (T & 1) * 16384
            return [f"ds_write_b128 v{self.vRw + (u & 1)}, v[{self.acc(T,u)}:{self.acc(T,u)+3}] offset:{b + 128*(u>>1)}" for u in range(4)]
        def bar():
            e.wait_lg_all(); e("s_barrier")
        bar.cost = ['s_x', 's_barrier']
        def reduce_(T, R=R):
            b = (T & 1) * 16384
            l = [f"ds_read_b128 v[{R+4*w}:{R+4*w+3}], v{self.vRr} offset:{b + 4096*w}" for w in range(4)]
            add = [f"v_add_f32 v{R+k}, v{R+k}, v{R+4+k}" for k in range(4)] + [f"v_add_f32 v{R+8+k}, v{R+8+k}, v{R+12+k}" for k in range(4)]
            add += [f"v_add_f32 v{R+k}, v{R+k}, v{R+8+k}" for k in range(4)]
            add += [f"v_cvt_pk_bf16_f32 v{R}, v{R}, v{R+1}", f"v_cvt_pk_bf16_f32 v{R+1}, v{R+2}, v{R+3}"]
            if T > 0: add.append(f"v_add_u32 v{self.vO}, {16*1280}, v{self.vO}")
            add.append(f"buffer_store_dwordx2 v[{R}:{R+1}], v{self.vO}, s[{SOUT}:{SOUT+3}], 0 offen {self.opt.get('outaux', 'sc1') if T < NT - self.opt.get('nplain', 0) else self.opt.get('lastaux', '')}")
            return l, add
        wp = self.opt.get('wpos', [5, 9, 13, 17])
        for T in range(1, NT):
            g = otile[T]
            lastT = T == NT - 1
            sch.add('red', bar, early=g + 3, dead=g + 3)
            if T >= 2:
                rd, add = reduce_(T - 2)
                for k, x in enumerate(rd): sch.add('red3', x, early=g + 4 + 2*k, dead=g + 4 + 2*k)
                for k, x in enumerate(add): sch.add('red2', x, early=g + 11 + k * 8 // len(add), dead=min(g + 13 + k * 8 // len(add), g + 19))
            for k, x in enumerate(writes(T - 1)):
                pos = g + (wp[k] if not lastT else 5 + 2*k)
                sch.add('red', x, early=pos, dead=pos)
            if lastT:
                sch.add('red', bar, early=g + 14, dead=g + 14)
                rd2, add2 = reduce_(T - 1, self.vR2)
                for k, x in enumerate(rd2): sch.add('red', x, early=g + 15 + k, dead=g + 15 + k)
        if self.tm.on and not self.opt.get('ts3'):
            sch.add('ts', self.tm.stamp, early=step[7], dead=step[7]); sch.add('ts', self.tm.stamp, early=otile[0], dead=otile[0])
        if extra: extra(sch)
        sch.run(); self.over = sch.over
        self.tm.stamp()
        run = lambda l: [x() if callable(x) else e(x) for x in l]
        run(add2[:8]); weave(e, writes(NT - 1), add2[8:]); bar()
        rd, add = reduce_(NT - 1)
        run(rd); run(add)
```

```python
import sys, json
from common import *
from p1 import P1
from p2 import P2, NSL

HDR = open('cdna_kernels/' + KN + '.s.ref').read().split('; Override launch')[0]
def srd(e, base, nbytes): e(f"s_mov_b32 s{base+2}, {nbytes}\ns_mov_b32 s{base+3}, 0x20000")
WB = lambda st: WOFF + (st % NWS) * WSLOT
XB = lambda k: XOFF + k * XSLOT

def entry(e, opt, tm):
    e(f"s_cmp_ge_u32 s2, 256\ns_cbranch_scc1 L_done")
    if opt.get('cpf0', 1):
        e(f"s_getpc_b64 s[6:7]\nv_min_u32 v34, 15, v0\nv_lshlrev_b32 v34, 7, v34")
        e.touch(f"global_load_dword v{vDUM}, v34, s[6:7]")
    if opt.get('cpf', 1) == 1:
        assert opt['cpf_lines'] == 16
        e(f"s_lshr_b32 s3, s2, 3\ns_lshl_b32 s3, s3, 11\nv_add_u32 v35, s3, v34")
        e.touch(f"global_load_dword v{vDUM}, v35, s[6:7]")
    for base, off in [(SX, 0), (SPF, 8), (SW, 32), (SWS, 72), (SGATE, 48), (SW2, 40), (SWO, 16), (SOUT, 56), (SDBG, 64)]:
        e(f"s_load_dwordx2 s[{base}:{base+1}], s[0:1], {off}")
    e(f"""
    v_lshrrev_b32 v2, 6, v0
    v_and_b32 v1, 63, v0
    s_lshr_b32 s{sT1}, s2, 3
    v_readfirstlane_b32 s{sWV}, v2
    s_bfe_u32 s{sRB}, s2, 0x10002
    s_lshl_b32 s{sRB}, s{sRB}, 3
    s_and_b32 s{sT2}, s{sT1}, 7
    s_add_u32 s{sRB}, s{sRB}, s{sT2}
    s_and_b32 s{sC}, s2, 3
    s_lshl_b32 s{sC}, s{sC}, 1
    s_bfe_u32 s{sT2}, s2, 0x10006
    s_add_u32 s{sC}, s{sC}, s{sT2}
    s_lshr_b32 s{sROLE}, s2, 7
    """)
    p = P1(e, 'F', opt); p.rots = [0]
    PF = opt.get('pf', 'xwp01')
    def wsel():
        e(f"""
        s_mov_b32 s{SW+3}, 0x20000
        s_mov_b32 s{SPF+3}, 0x20000
        s_cmp_eq_u32 s{sROLE}, 0
        s_mov_b32 s{SW+2}, {640*1728*2}
        s_cselect_b32 s{SW+2}, {640*1920*2}, s{SW+2}
        s_mov_b32 s{SPF+2}, {640*1920*2}
        s_cselect_b32 s{SPF+2}, {640*1728*2}, s{SPF+2}
        s_mov_b32 s4, s{SW}
        s_mov_b32 s5, s{SW+1}
        s_cselect_b32 s{SW}, s{SPF}, s{SW}
        s_cselect_b32 s{SW+1}, s{SPF+1}, s{SW+1}
        s_cselect_b32 s{SPF}, s4, s{SPF}
        s_cselect_b32 s{SPF+1}, s5, s{SPF+1}
        """)
    srd(e, SX, S*D*2)
    done = set()
    for c in PF:
        if c in 'xX' and 'x' not in done: p.setup_x(); done.add('x')
        if c in 'wW' and 'w' not in done: p.setup_w(); wsel(); done.add('w')
        if c == 'p': pf_setup(e)
        if c == 'x':
            for f in p.dma_x(0): f()
        if c == 'w':
            for f in p.dma_w(0): f()
        if c in '01':
            for f in pf_site(e, int(c), PF1): f()
    e.first_id = max(p.dma_ids.values())
    if opt.get('ts2'): e("s_mov_b32 s98, s4\ns_mov_b32 s99, s5"); tm.stamp(); e("s_mov_b32 s4, s98\ns_mov_b32 s5, s99")
    if opt.get('cpf', 1) == 2:
        e(f"""
        s_getpc_b64 s[6:7]
        s_lshr_b32 s3, s2, 3
        s_mul_i32 s3, s3, {opt['cpf_lines']*128}
        v_lshl_add_u32 v34, v0, 7, s3
        v_cmp_gt_u32 vcc, {opt['cpf_lines']}, v0
        s_and_saveexec_b64 s[{sT0}:{sT0+1}], vcc
        """)
        e.touch(f"global_load_dword v{vDUM}, v34, s[6:7]")
        e(f"s_mov_b64 exec, s[{sT0}:{sT0+1}]")
    e(f"""
    s_lshl_b32 s{sT0}, s{sROLE}, 4
    s_add_u32 s{sT0}, s{sT0}, s{sRB}
    s_lshl_b32 s{sT0}, s{sT0}, 3
    s_add_u32 s{sT0}, s{sT0}, s{sC}
    s_lshl_b32 s{sT0}, s{sT0}, 5
    s_add_u32 s{sT0}, s{sT0}, s{sWV}
    s_lshl_b32 s{sT0}, s{sT0}, 2
    s_add_u32 s{sT0}, s{sT0}, {FLAG_OFF}
    v_mov_b32 v{vFlag}, {OOB}
    v_mov_b32 v{vPD}, 0
    v_writelane_b32 v{vFlag}, s{sT0}, 0
    """)
    srd(e, SWS, WS_BYTES)
    srd(e, SGATE, 1280); srd(e, SW2, 1728*640*2); srd(e, SWO, 640*640*2)
    srd(e, SOUT, S*D*2); srd(e, SDBG, 256); srd(e, SH, 54*A2_STEP)
    e(f"s_mov_b32 s{SH}, s{SWS}\ns_mov_b32 s{SH+1}, s{SWS+1}")

def pf_setup(e):
    e(f"""
    s_lshr_b32 s{sT0}, s2, 3
    s_mul_i32 s{sT1}, s{sT0}, 13
    s_lshr_b32 s{sT1}, s{sT1}, 6
    s_mul_i32 s{sT2}, s{sT1}, 5
    s_sub_u32 s{sT2}, s{sT0}, s{sT2}
    s_cmp_lt_u32 s{sT0}, 30
    s_cselect_b32 s{sPG}, s{sT2}, 7
    s_and_b32 s{sT0}, s2, 7
    s_mul_i32 s{sT0}, s{sT0}, 6
    s_add_u32 s{sT0}, s{sT0}, s{sT1}
    s_lshl_b32 s{sT0}, s{sT0}, 2
    s_add_u32 s{sDP}, s{sT0}, s{sWV}
    s_mul_i32 s{sT0}, s{sDP}, {20*128}
    v_min_u32 v{vP}, 19, v1
    s_mul_i32 s{sT1}, s{sT2}, s{sKP}
    v_lshl_add_u32 v{vP}, v{vP}, 7, s{sT0}
    s_lshl_b32 s{sT1}, s{sT1}, 7
    s_mul_i32 s{sT3}, s{sT2}, {128*(3840+3456)}
    s_sub_u32 s{sT3}, s{sT3}, s{sT1}
    v_add_u32 v{vP+1}, s{sT3}, v{vP}
    v_add_u32 v{vP}, s{sT1}, v{vP}
    v_min_u32 v{vP+2}, 21, v1
    s_mul_i32 s{sT0}, s{sDP}, {11*1280}
    s_lshl_b32 s{sT1}, s{sT2}, 8
    v_and_b32 v34, 1, v{vP+2}
    s_add_u32 s{sT0}, s{sT0}, s{sT1}
    v_lshrrev_b32 v{vP+2}, 1, v{vP+2}
    v_lshl_add_u32 v34, v34, 7, s{sT0}
    v_mad_u32_u24 v{vP+2}, v{vP+2}, s{sE}, v34
    """.replace(f"    v_min_u32 v{vP+2}, 21, v1\n", f"    v_min_u32 v{vP+2}, 21, v1\n    s_movk_i32 s{sE}, 1280\n"))
def pf2_setup(e):
    e(f"""
    s_mul_i32 s{sT0}, s{sPG}, {4736*128}
    s_mul_i32 s{sT1}, s{sDP}, {25*128}
    s_add_u32 s{sT0}, s{sT0}, s{sT1}
    v_min_u32 v{vPF}, 24, v1
    v_lshl_add_u32 v{vPF}, v{vPF}, 7, s{sT0}
    v_subrev_u32 v{vP+3}, {1728*1280}, v{vPF}
    """)
def pf_site(e, g, what):
    def sel(): e(f"s_cmp_eq_u32 s{sPG}, {g}\ns_cselect_b32 s{sPS}, 0, {OOB}")
    sel.cost = ['s_x', 's_x']
    out = [sel]
    for v, srd_ in what:
        def f(v=v, srd_=srd_): e.touch(f"buffer_load_dword v{vDUM}, v{v}, s[{srd_}:{srd_+3}], s{sPS} offen")
        f.cost = ['buffer_x']; f.sep = 1
        out.append(f)
    return out
PF1 = [(vP + 2, SX), (vP, SW), (vP + 1, SPF)]
PF2 = [(vPF, SW2), (vP + 3, SWO)]

def role_code(e, role, opt, tm):
    A = role == 'A'
    run = lambda l: [x() if callable(x) else e(x) for x in l]
    p = P1(e, role, opt); p.tm = tm
    q = P2(e, role, opt, tm)
    aux = opt.get('aux', 'sc1'); PF = 'p' in opt.get('pf', 'p')
    p.setup()
    p.prologue_dma()
    e(f"buffer_store_dword v{vPD}, v{vFlag}, s[{SWS}:{SWS+3}], 0 offen sc1")
    p.prologue_dma2()
    if opt.get('ts2'): tm.stamp()
    p.setup_reads()
    T = p.vT
    def late():
        e(f"""
        s_lshl_b32 s{sT0}, s{sRB}, 4
        s_cmp_eq_u32 s{sWV}, 0
        s_cselect_b32 s{sT0}, s{sT0}, {OOB}
        v_mov_b32 v{T}, {OOB}
        v_mov_b32 v{T+1}, 1
        v_writelane_b32 v{T}, s{sT0}, 0
        ATOMIC
        """)
        if PF: pf2_setup(e)
        (p.att_consts if A else p.ffn_consts)()
        q.setup_early()
    late_l = scc_groups(e.capture(late))
    if opt.get('ts2'): tm.stamp()
    def extra(sch):
        lo = p.step0[1]; hi = p.step0[opt.get('late_end', 9)]
        for k, x in enumerate(late_l):
            pos = lo + k * (hi - lo) // len(late_l)
            if x == ['ATOMIC']:
                sch.add('cnt', f"buffer_atomic_add v{T+1}, v{T}, s[{SDBG}:{SDBG+3}], 0 offen sc1", early=p.bpos[2] + 1, dead=p.bpos[2] + 6, after=[p.bars[2]])
            else: sch.add('cnt', (lambda x=x: e('\n'.join(x))), early=pos, dead=max(pos, p.bpos[2] + 7) + 3, cost=x)
        if PF:
            sites = [(st, 2 + k, PF1) for k, st in enumerate(opt.get('pfs', [1, 4, 7]))] + [(st, k, PF2) for k, st in enumerate(opt.get('pfs2', [6, 8, 9, 10, 11]))]
            for st, g_, what in sorted(sites, key=lambda t: t[0]):
                for fn in pf_site(e, g_, what): sch.add('pf', fn, early=p.step0[st] + 1, dead=p.step0[st] + 14)
        g = p.step0[14]
        sch.add('cnt', q.poll_issue(q.vCnt, SDBG), early=g, dead=g + 6)
        g = p.step0[17]
        sch.add('cnt', q.poll_check(q.vCnt, 16, SDBG), early=g, dead=g + 6)
        for k, (st, base) in enumerate([(17, E0), (17, WB(15)), (18, WB(16)), (19, WB(17))]):
            fns = q.stage_dma(k, base)
            lo = p.bpos[st] + 1; span = p.bpos[st + 1] - lo
            if st == 17: span //= 2; lo += span * k
            for j, fn in enumerate(fns):
                pos = lo + j * span // len(fns)
                sch.add('dma', fn, early=pos, dead=pos + 2, after=[p.bars[st]])
        if A:
            p.att_lastloop(sch)
        else: p.ffn_lastloop(sch, aux)
    p.mainloop(extra); tm.stamp()
    if A:
        hooks = {}
        hooks['qk1'] = q.setup_tr2()
        hooks['bar'] = q.stage_dma(4, WB(18)) + q.stage_dma(5, WB(19)) + q.stage_dma(6, XB(0))
        h = []
        for i in range(4): h += q.stage_read(i)
        hooks['sm1'] = q.setup_late() + h
        h = []
        for i in range(4): h += q.stage_dma(7 + i, q.base[i])[1:]
        hooks['sm1'].append(lambda: e.wait_lg(q.rd_ids[3]))
        k = opt.get('apoll', 1) * 6
        hooks['mid'] = h[:k] + [q.poll_issue(vPollH)]
        hooks['sm0'] = h[k:]
        hooks['pv0'] = [q.poll_check(vPollH, 1)] + q.first_loads(4)
        hooks['end'] = q.first_loads()
        if opt.get('nohook'): pre = [x for k in ('qk1', 'bar', 'sm1', 'mid', 'sm0', 'pv0', 'end') for x in hooks[k]]; hooks = {}
        p.epilogue_A(aux, hooks); tm.stamp()
        if opt.get('nohook'): run(pre); tm.stamp()
        e(f"s_cmp_lg_u32 s{sOFF2}, 0\ns_cbranch_scc1 A_pub")
        snap = e.snapshot()
        def ex2(sch):
            g = opt.get('aflag', 24)
            sch.add('flag', q.set_flag(p.last_store), early=g, dead=g + 4)
        q.mainloop(4, 11, [], ex2)
    else:
        p.epilogue_F(); tm.stamp()
        e("s_barrier")
        run(q.setup_tr2())
        free = [WB(18), WB(19), XB(0), XB(1)]; nd = 4
        for k in range(opt.get('nflag', 2)):
            run(q.stage_dma(nd, free.pop(0))); nd += 1
        run(q.setup_late())
        for i in range(4): run(q.stage_read(i))
        q.set_flag(p.last_store)(); tm.stamp()
        e(f"s_cmp_lg_u32 s{sOFF2}, 0\ns_cbranch_scc1 F_pub")
        snap = e.snapshot()
        free += [q.base[i] for i in range(4)]
        nr = 4
        npoll = opt.get('npoll', 17)
        while nd < NSL:
            if nd == npoll: q.poll_issue(vPollH)()
            if not free:
                run(q.stage_read(nr)); free.append(q.base[nr]); nr += 1
            run(q.stage_dma(nd, free.pop(0))); nd += 1
        while nr < 12: run(q.stage_read(nr)); nr += 1
        q.poll_check(vPollH, 1)(); tm.stamp()
        weave(e, q.first_loads(), [x for i in range(12, 16) for x in q.stage_read(i)], start=8)
        q.mainloop(16, NSL, [])
    tm.stamp()
    if tm.on: e.wait_vm_all(); tm.stamp(); tm.flush()
    e("s_endpgm")
    e.restore(snap)
    e.raw(f"{role}_pub:")
    if A: q.set_flag(p.last_store)()
    tm.flush()
    e("s_endpgm")
    print(role, "over p1", p.over, "p2", q.over, file=sys.stderr)

def fused(opt):
    opt.setdefault('cpf_lines', 16)
    e = Emit(); k = KN + '_kernel'
    e.raw(kstart(k))
    tm = Stamps(e, opt.get('ts', 0)); tm.stamp()
    entry(e, opt, tm)
    e(f"s_cmp_eq_u32 s{sROLE}, 0\ns_cbranch_scc0 L_F")
    snap = e.snapshot(); n0 = tm.n
    role_code(e, 'A', opt, tm)
    e.restore(snap); tm.n = n0
    e.raw("L_F:")
    role_code(e, 'F', opt, tm)
    e.raw("L_done:")
    e("s_endpgm")
    print(e.stats, "nops", e.nops, file=sys.stderr)
    txt = HDR + f"; @launch grid=(256,1,1) block=(256,1,1) lds={LDS_END}\n"
    txt += '.amdgcn_target "amdgcn-amd-amdhsa--gfx950"\n.text\n' + e.text()
    txt += f"; padding: the code prefetch above reads {32*opt['cpf_lines']*128} bytes from the entry\n.fill (({32*opt['cpf_lines']*128} + 512 - (. - {k})) / 4), 4, 0xbf810000\n" + kdesc(k)
    return txt

if __name__ == '__main__':
    opt = json.loads(sys.argv[2]) if len(sys.argv) > 2 else {}
    open(sys.argv[1], 'w').write(fused(opt))
```

```python
from common import *
from sched import *

class P1:
    def __init__(self, e, role, opt):
        self.e = e; self.role = role; self.opt = opt
        A = role == 'A'
        self.pitch = 3840 if A else 3456
        v = 1
        self.vLane = v; v += 1
        self.vDw = v; v += 4
        self.vDx = v; v += 4
        self.vDh = v; v += 1
        self.vXo = v; v += 2
        self.vXh = v; v += 2
        self.vG = v; v += 1
        self.vWb = v; v += 8
        self.vT = v; v += 8
        assert v <= 32
        self.vXF = 32
        self.vWF = 64
        self.NF = opt.get('nf', 7) if A else opt.get('nfF', 5)
        self.vAcc = self.vWF + 4 * 8
        if A:
            b = self.vAcc
            self.accQ = lambda T, t: b + 20 * T + 4 * t
            self.accK = lambda T, t: b + 40 + 20 * T + 4 * t
            self.accV = lambda T, u: b + 80 + 20 * T + 4 * u
            self.hK, self.hV, self.hK4, self.hV4 = b + 120, b + 124, b + 128, b + 132
            self.accG = lambda T: b + 136 + 4 * T
            self.nacc = 144
        else:
            self.accF = lambda T, t: self.vAcc + 28 * T + 4 * t
            self.nacc = 112
        self.dma_ids = {}

    def setup(self):
        e = self.e; A = self.role == 'A'; T = self.vT; L = self.vLane
        self.rots = rots = self.opt.get('rots', [0])
        n = len(rots)
        if n > 1:
            e(f"s_and_b32 s{sT0}, s{sC}, 1")
            if n == 4: e(f"s_lshl_b32 s{sT0}, s{sT0}, 1\ns_add_u32 s{sT0}, s{sT0}, s{sROLE}")
            e(f"s_add_u32 s{sT0}, s{sT0}, s{sRB}\ns_and_b32 s{sT0}, s{sT0}, {n-1}\ns_mov_b32 s{sROT}, 0")
            for i, r in enumerate(rots[1:]):
                e(f"""
                s_cmp_eq_u32 s{sT0}, {i+1}
                s_cselect_b32 s{sROT}, {r}, s{sROT}
                s_cselect_b32 s{sDW+i}, {-19*32*self.pitch}, {32*self.pitch}
                s_cselect_b32 s{sDX+i}, {-9*128}, 128
                """.replace(f"s_cselect_b32 s{sDW+i}, {-19*32*self.pitch}, {32*self.pitch}", f"s_mov_b32 s{sT1}, {32*self.pitch}\ns_cselect_b32 s{sDW+i}, {-19*32*self.pitch}, s{sT1}").replace(f"s_cselect_b32 s{sDX+i}, {-9*128}, 128", f"s_movk_i32 s{sT1}, 128\ns_cselect_b32 s{sDX+i}, {-9*128}, s{sT1}"))
        if A:
            e(f"""
            s_lshl_b32 s{sM0H}, s{sWV}, 9
            s_add_u32 s{sM0H}, s{sM0H}, {XOFF}
            s_lshl_b32 s{sT1}, s{sWV}, 2
            v_lshrrev_b32 v{T}, 3, v{L}
            v_and_b32 v{T+2}, 7, v{L}
            v_add_u32 v{T+4}, s{sT1}, v{T}
            v_bfe_u32 v{T+5}, v{T+4}, 1, 3
            v_xor_b32 v{T+5}, v{T+5}, v{T+2}
            s_lshl_b32 s{sT0}, s{sRB}, 7
            s_sub_u32 s{sT0}, s{sT0}, 16
            v_add_u32 v{T+4}, s{sT0}, v{T+4}
            v_max_i32 v{T+4}, 0, v{T+4}
            v_mul_u32_u24 v{T+4}, 1280, v{T+4}
            v_lshl_add_u32 v{self.vDh}, v{T+5}, 4, v{T+4}
            """)

    def setup_x(self):
        e = self.e; T = self.vT; L = self.vLane
        e(f"""
        v_lshrrev_b32 v{T}, 3, v{L}
        s_lshl_b32 s{sT0}, s{sRB}, 2
        v_and_b32 v{T+2}, 7, v{L}
        s_add_u32 s{sT0}, s{sT0}, s{sWV}
        v_lshrrev_b32 v{T+3}, 4, v{L}
        s_mul_i32 s{sT0}, s{sT0}, {32*1280}
        v_mul_u32_u24 v{T+1}, 1280, v{T}
        s_lshl_b32 s{sM0X}, s{sWV}, 12
        v_xor_b32 v{T+4}, v{T+2}, v{T+3}
        s_add_u32 s{sM0X}, s{sM0X}, {XOFF + 2048}
        v_add_u32 v{T+1}, s{sT0}, v{T+1}
        v_xor_b32 v{T+5}, 4, v{T+4}
        v_lshl_add_u32 v{self.vDx}, v{T+4}, 4, v{T+1}
        v_lshl_add_u32 v{self.vDx+1}, v{T+5}, 4, v{T+1}
        v_add_u32 v{self.vDx+2}, {16*1280-2048}, v{self.vDx}
        v_add_u32 v{self.vDx+1}, {8*1280-1024}, v{self.vDx+1}
        v_add_u32 v{self.vDx+3}, {16*1280-2048}, v{self.vDx+1}
        """)
    def setup_w(self):
        e = self.e; T = self.vT; L = self.vLane
        e(f"""
        s_cmp_eq_u32 s{sROLE}, 0
        s_cselect_b32 s{sT0}, 69, 64
        s_cselect_b32 s{sT1}, 30, 32
        v_mul_u32_u24 v{T}, s{sT0}, v{L}
        s_cselect_b32 s{sT2}, 205, 0
        s_movk_i32 s{sT3}, 3456
        v_lshrrev_b32 v{T}, 11, v{T}
        s_cselect_b32 s{sKP}, 3840, s{sT3}
        s_movk_i32 s{sT3}, 448
        v_mul_u32_u24 v{T+1}, s{sT1}, v{T}
        s_cselect_b32 s{sT3}, 160, s{sT3}
        v_sub_u32 v{T+1}, v{L}, v{T+1}
        s_mul_i32 s{sT3}, s{sT3}, s{sC}
        v_mul_u32_u24 v{T+2}, s{sT2}, v{T+1}
        s_mul_i32 s{sT0}, s{sKP}, s{sWV}
        v_lshrrev_b32 v{T+2}, 11, v{T+2}
        s_lshl_b32 s{sT0}, s{sT0}, 3
        v_mad_i32_i24 v{T+1}, v{T+2}, -10, v{T+1}
        s_add_u32 s{sT0}, s{sT0}, s{sT3}
        v_mul_u32_u24 v{T+2}, 1280, v{T+2}
        s_lshl_b32 s{sT1}, s{sKP}, 2
        v_lshl_add_u32 v{T+2}, v{T+1}, 4, v{T+2}
        v_mul_u32_u24 v{T+3}, s{sT1}, v{T}
        v_lshrrev_b32 v{T}, 1, v{T}
        v_add3_u32 v{T+2}, v{T+2}, v{T+3}, s{sT0}
        v_lshl_add_u32 v{T}, v{T}, 5, v{T+1}
        v_mov_b32 v{T+3}, {OOB}
        s_lshl_b32 s{sT1}, s{sROLE}, 3
        s_add_u32 s{sT1}, s{sT1}, s{sC}
        s_cmp_eq_u32 s{sT1}, 15
        s_cselect_b32 s{sT1}, 20, 28
        v_cmp_gt_u32 vcc, s{sT1}, v{T}
        s_sub_u32 s{sT0}, s{sKP}, {WBLK}
        s_mul_i32 s{sM2}, s{sWV}, {4*WBLK}
        v_cndmask_b32 v{self.vDw}, v{T+3}, v{T+2}, vcc
        s_add_u32 s{sM0W}, s{sM2}, {WOFF}
        v_add_u32 v{self.vDw+1}, s{sT0}, v{self.vDw}
        v_add_u32 v{self.vDw+2}, s{sT0}, v{self.vDw+1}
        v_add_u32 v{self.vDw+3}, s{sT0}, v{self.vDw+2}
        """)

    def setup_reads(self):
        e = self.e; A = self.role == 'A'; T = self.vT; L = self.vLane
        if not A: e(f"s_lshr_b32 s{sT0}, s{sWV}, 1\ns_lshl_b32 s{sT0}, s{sT0}, 13\ns_add_u32 s{sT0}, s{sT0}, {XOFF+2048}")
        e(f"""
        v_and_b32 v{T}, 15, v{L}
        v_lshrrev_b32 v{T+1}, 4, v{L}
        v_lshrrev_b32 v{T+2}, 1, v{T}
        v_xor_b32 v{T+2}, v{T+2}, v{T+1}
        v_lshlrev_b32 v{T+2}, 4, v{T+2}
        v_lshl_add_u32 v{T+2}, v{T}, 7, v{T+2}
        v_add_u32 v{self.vXh}, {XOFF}, v{T+2}
        v_xor_b32 v{T+3}, 64, v{T+2}
        v_add_u32 v{self.vXh+1}, {XOFF}, v{T+3}
        v_add_u32 v{self.vXo}, s{sM0X if A else sT0}, v{T+2}
        v_add_u32 v{self.vXo+1}, s{sM0X if A else sT0}, v{T+3}
        v_lshlrev_b32 v{self.vG}, 4, v{T+1}
        v_add_u32 v{self.vG}, {GOFF}, v{self.vG}
        v_lshrrev_b32 v{T+4}, 2, v{L}
        v_mul_u32_u24 v{T+4}, {WBLK}, v{T+4}
        v_add_u32 v{T+4}, {WOFF}, v{T+4}
        v_and_b32 v{T+5}, 3, v{L}
        v_lshl_add_u32 v{self.vWb+2}, v{T+5}, 3, v{T+4}
        v_add_u32 v{self.vWb+3}, {3*WSLOT}, v{self.vWb+2}
        """)
        if A:
            e(f"""
            v_mul_u32_u24 v{T+5}, 40, v{T+5}
            v_add_u32 v{self.vWb}, v{T+5}, v{T+4}
            v_add_u32 v{self.vWb+1}, {3*WSLOT}, v{self.vWb}
            s_lshl_b32 s{sT0}, s{sWV}, 3
            v_add_u32 v{self.vWb+4}, s{sT0}, v{self.vWb}
            v_add_u32 v{self.vWb+5}, s{sT0}, v{self.vWb+1}
            s_mul_i32 s{sT0}, s{sWV}, 40
            v_add_u32 v{self.vWb+6}, s{sT0}, v{self.vWb+2}
            v_add_u32 v{self.vWb+7}, s{sT0}, v{self.vWb+3}
            """)
        else:
            e(f"""
            s_and_b32 s{sT0}, s{sWV}, 1
            s_lshl_b32 s{sT1}, s{sT0}, 5
            s_add_u32 s{sT1}, s{sT1}, 192
            v_add_u32 v{self.vWb}, s{sT1}, v{self.vWb+2}
            v_add_u32 v{self.vWb+1}, s{sT1}, v{self.vWb+3}
            s_lshl_b32 s{sT1}, s{sT0}, 8
            v_add_u32 v{self.vWb+2}, s{sT1}, v{self.vWb+2}
            v_add_u32 v{self.vWb+3}, s{sT1}, v{self.vWb+3}
            """)

    def dma_w(self, st):
        e = self.e; out = []
        slot = st % NWS
        out.append(lambda: e(f"s_add_u32 m0, s{sM0W}, {slot*WSLOT}"))
        def first():
            wr = [i for i, r in enumerate(self.rots[1:]) if 20 - r == st]
            if st == 0: e(f"s_mul_i32 s{sKW}, s{sROT}, {32*self.pitch}" if len(self.rots) > 1 else f"s_mov_b32 s{sKW}, 0")
            elif wr: e(f"s_add_u32 s{sKW}, s{sKW}, s{sDW+wr[0]}")
            elif self.opt.get('kfix'): e(f"s_mov_b32 s{sKW}, {(st % self.opt['kfix'])*32*self.pitch}")
            else: e(f"s_add_u32 s{sKW}, s{sKW}, {32*self.pitch}")
        out.append(first)
        for p in range(4):
            def f(p=p):
                if self.opt.get('now') and st > 1: self.dma_ids[('w', st)] = -1; return
                self.dma_ids[('w', st)] = e(f"buffer_load_dwordx4 v{self.vDw+p}, s[{SW}:{SW+3}], s{sKW} offen offset:{p*WBLK} lds")
            f.dma = 1; f.cost = ['buffer_x']
            out.append(f)
        return out
    def x_m0(self, a):
        return lambda: self.e(f"s_add_u32 m0, s{sM0X}, {(a % NXS)*XSLOT}")
    def dma_x(self, a):
        e = self.e; out = []
        slot = a % NXS
        out.append(lambda: e(f"s_add_u32 m0, s{sM0X}, {slot*XSLOT}"))
        def first():
            wr = [i for i, r in enumerate(self.rots[1:]) if 20 - r == 2 * a]
            if a == 0: e(f"s_lshl_b32 s{sKX}, s{sROT}, 6" if len(self.rots) > 1 else f"s_mov_b32 s{sKX}, 0")
            elif wr: e(f"s_add_u32 s{sKX}, s{sKX}, s{sDX+wr[0]}")
            elif self.opt.get('kfix'): e(f"s_mov_b32 s{sKX}, {(a % (self.opt['kfix']//2))*128}")
            else: e(f"s_add_u32 s{sKX}, s{sKX}, 128")
        out.append(first)
        for p in range(4):
            def f(p=p):
                if self.opt.get('nox') and a > 0: self.dma_ids[('x', a)] = -1; return
                self.dma_ids[('x', a)] = e(f"buffer_load_dwordx4 v{self.vDx+p}, s[{SX}:{SX+3}], s{sKX} offen offset:{p*1024} lds")
            f.dma = 1; f.cost = ['buffer_x']
            out.append(f)
        if self.role == 'A':
            out.append(lambda: e(f"s_add_u32 m0, s{sM0H}, {slot*XSLOT}"))
            def h():
                e(f"s_mov_b32 exec_hi, 0")
                self.dma_ids[('x', a)] = e(f"buffer_load_dwordx4 v{self.vDh}, s[{SX}:{SX+3}], s{sKX} offen lds")
                e(f"s_mov_b32 exec_hi, -1")
            h.cost = ['s_x', 'buffer_x', 's_x']; h.dma = 1
            out.append(h)
        return out

    def frags(self):
        fr = []
        if self.role == 'A':
            for t in range(5): fr.append((0, 8*t, [('WX', self.accQ(0, t), 0), ('WX', self.accQ(1, t), 1)]))
            for t in range(5):
                m = [('WX', self.accK(0, t), 0), ('WX', self.accK(1, t), 1)]
                if t == 4: m.append(('WX', self.hK4, 2))
                fr.append((0, 160 + 8*t, m))
            for u in range(5):
                m = [('XW', self.accV(0, u), 0), ('XW', self.accV(1, u), 1)]
                if u == 4: m.append(('XW', self.hV4, 2))
                if u < 4: fr.append((2, 320 + 40*u, m))
                else: fr.append((0, 320 + 32, m))
            fr.append((4, 160, [('WX', self.hK, 2), ('GX', self.accG(0), 0)]))
            fr.append((6, 320, [('XW', self.hV, 2), ('GX', self.accG(1), 1)]))
            self.hstride = 480
        else:
            for t in range(7): fr.append((2 if t < 6 else 0, 32*t if t < 6 else 0, [('WX', self.accF(Tt, t), Tt) for Tt in range(4)]))
            self.hstride = 512
        return fr
    def read_frag(self, gf):
        e = self.e
        fr = self.fr; st, f = divmod(gf, len(fr))
        pat, off, _ = fr[f]
        slot = st % NWS
        base = self.vWb + pat + (1 if slot >= 3 else 0)
        o = (slot - (3 if slot >= 3 else 0)) * WSLOT + off
        d = self.vWF + 4 * (gf % self.NF)
        return [f"ds_read_b64_tr_b16 v[{d}:{d+1}], v{base} offset:{o}",
                f"ds_read_b64_tr_b16 v[{d+2}:{d+3}], v{base} offset:{o+self.hstride}"]
    def read_x(self, st):
        a, kk = divmod(st, 2); slot = a % NXS
        b = self.vXF + 16 * (st & 1)
        out = [f"ds_read_b128 v[{b}:{b+3}], v{self.vXo+kk} offset:{slot*XSLOT}",
               f"ds_read_b128 v[{b+4}:{b+7}], v{self.vXo+kk} offset:{slot*XSLOT+2048}"]
        if self.role == 'A':
            out += [f"ds_read_b128 v[{b+8}:{b+11}], v{self.vXh+kk} offset:{slot*XSLOT}",
                    f"ds_read_b128 v[{b+12}:{b+15}], v{self.vG} offset:{st*64}"]
        else:
            out += [f"ds_read_b128 v[{b+8}:{b+11}], v{self.vXo+kk} offset:{slot*XSLOT+4096}",
                    f"ds_read_b128 v[{b+12}:{b+15}], v{self.vXo+kk} offset:{slot*XSLOT+6144}"]
        return out
    def mfma(self, st, gf, spec):
        kind, acc, xi = spec
        w = self.vWF + 4 * (gf % self.NF); x = self.vXF + 16 * (st & 1) + 4 * xi
        if kind == 'GX': w = self.vXF + 16 * (st & 1) + 12
        a, b = (x, w) if kind == 'XW' else (w, x)
        c = f"v[{acc}:{acc+3}]" if st > 0 else "0"
        return f"v_mfma_f32_16x16x32_bf16 v[{acc}:{acc+3}], v[{a}:{a+3}], v[{b}:{b+3}], {c}"

    def barrier_for(self, st):
        e = self.e
        ids = [self.dma_ids[('w', st)]]
        if st % 2 == 0: ids.append(self.dma_ids[('x', st // 2)])
        live = [i for i in ids if i in e.vm]
        if live: e.wait_vm(max(live, key=e.vm.index))
        if not (self.opt.get('nobar') and st > 0): e("s_barrier")

    def prologue_dma(self):
        e = self.e
        if self.role == 'A':
            T = self.vT
            e(f"""
            s_mul_i32 s{sT0}, s{sWV}, 320
            s_add_u32 m0, s{sT0}, {GOFF}
            v_lshl_add_u32 v{T}, v{self.vLane}, 4, s{sT0}
            """)
            if len(self.rots) > 1:
                e(f"""
                s_lshl_b32 s{sT1}, s{sROT}, 6
                v_add_u32 v{T}, s{sT1}, v{T}
                v_subrev_u32 v{T+1}, 1280, v{T}
                v_min_u32 v{T}, v{T}, v{T+1}
                """)
            e(f"""
            s_mov_b64 exec, 0xfffff
            buffer_load_dwordx4 v{T}, s[{SGATE}:{SGATE+3}], 0 offen lds
            s_mov_b64 exec, -1
            """)
            for f in self.dma_x(0)[6:]: f()
        self.halo_id = e.vm[-1]
        self.dma_ids[('w', 0)] = self.dma_ids[('x', 0)] = e.first_id
        self.pre_issued = [('x', 0), ('w', 0), ('w', 1), ('x', 1), ('w', 2), ('w', 3), ('x', 2), ('w', 4)][:self.opt.get('npre', 2)]
    def prologue_dma2(self):
        for item in self.pre_issued[2:]:
            for f in (self.dma_x if item[0] == 'x' else self.dma_w)(item[1]): f()

    def mainloop(self, extra=None):
        e = self.e; opt = self.opt
        self.fr = fr = self.frags(); nf = len(fr); NF = self.NF
        NST = 20
        sch = Sched(e)
        first = {}; last = {}
        for st in range(NST):
            for f in range(nf):
                gf = st * nf + f
                for spec in fr[f][2]:
                    i = sch.main(self.mfma(st, gf, spec) if not opt.get('nomfma') else (lambda: None))
                    first.setdefault(gf, i); last[gf] = i
        step0 = [first[st * nf] for st in range(NST)] + [len(sch.mains)]
        self.step0 = step0
        lead = opt.get('lead', 9) if self.role == 'A' else opt.get('leadF', 12)
        ids = {}
        bars = {}
        self.barrier_for(0); self.tm.stamp()
        bpos = [-2] + [step0[st] - lead - 1 for st in range(1, NST)] + [step0[NST] - lead - 1]
        if self.role == 'A':
            def b0(): e.wait_vm(self.halo_id); e("s_barrier")
            sch.add('bar', b0, early=8, dead=8, cost=['s_x', 's_barrier'])
        for st in range(1, NST):
            def b(st=st): self.barrier_for(st)
            bars[st] = sch.add('bar', b, early=bpos[st], dead=bpos[st], cost=['s_x', 's_barrier'])
        self.bars = bars; self.bpos = bpos
        for st in range(NST):
            xr = self.read_x(st)
            l = []
            for f in range(nf):
                gf = st * nf + f
                rf = [(x, gf) for x in self.read_frag(gf)]
                l += rf if f else [rf[0], (xr[0], None), rf[1], (xr[1], None)]
                fx = (4, 8) if st else (9, 11)
                if self.role == 'A' and f in fx: l.append((xr[2 + (f == fx[1])], 'late' if st == 0 else None))
                if self.role == 'F' and f == 0: l += [(xr[2], None), (xr[3], None)]
            lo = bpos[st] + 1; G = bpos[st + 1] - lo
            if st == 0: lo = -lead; G = bpos[1] - lo
            for k, (x, gf) in enumerate(l):
                g = max(-1, lo + k * G // len(l))
                if gf == 'late': assert g > 8; gf = None
                if gf is not None and gf >= NF: assert g >= last[gf - NF], (st, gf, g, last[gf - NF])
                if gf is not None: assert g < first[gf] - 2 or st == 0, (st, gf, g, first[gf])
                def r(x=x, gf=gf):
                    if not opt.get('nomfma'): ids[gf] = e(x)
                sch.add('rd', r, early=g, dead=g, cost=[x])
        WG = opt.get('wg', 2) if self.role == 'A' else 1
        ng = NST * nf
        for gf in range(0, ng, WG):
            tgt = min(gf + WG - 1, ng - 1)
            def w(tgt=tgt):
                if tgt in ids: e.wait_lg(ids[tgt])
            if gf > 0: sch.add('wait', w, early=first[gf] - 2, dead=first[gf] - 1)
        pre = self.pre_issued
        per = [[] for _ in range(NST)]
        xsplit = {}
        for st in range(NST):
            l = []
            for s2 in range(NST):
                if ('w', s2) not in pre and max(s2 - 3, 0) == st: l.append((s2, self.dma_w(s2)))
            for a in range(10):
                if ('x', a) in pre: continue
                st0 = max(2 * (a - 2), 0)
                if st0 == st:
                    fns = self.dma_x(a)
                    if a >= 3 and opt.get('xsplit', 1):
                        l.append((2 * a - 0.5, fns[:5])); xsplit[st + 1] = (2 * a - 0.5, [self.x_m0(a)] + fns[5:])
                    else: l.append((2 * a - 0.5, fns))
            if st in xsplit: l.append(xsplit[st])
            l.sort(key=lambda t: t[0] + (opt.get('xlate', 0) if t[0] != int(t[0]) else 0))
            for _, fns in l: per[st] += fns
        for st in range(NST):
            fns = per[st]
            nd = sum(1 for f in fns if getattr(f, 'dma', 0))
            b0 = max(bpos[st], -1)
            k = 0; span = int((bpos[st + 1] - b0 - 1) * opt.get('dspan' + self.role, 1.0))
            for fn in fns:
                pos = b0 + 1 + int((k + opt.get('dph', 0.3)) * span / max(nd, 1))
                if getattr(fn, 'dma', 0): k += 1; fn.sep = 1
                else: pos -= 3
                if opt.get('nodma') and getattr(fn, 'dma', 0):
                    for q in range(20): self.dma_ids.setdefault(('w', q), -1); self.dma_ids.setdefault(('x', q), -1)
                    continue
                sch.add('dma', fn, early=pos, dead=min(pos + opt.get('dslack', 2), bpos[st + 1] - 1), after=[bars.get(st)])
        if self.tm.on and not opt.get('ts2') and not opt.get('ts4'):
            for st in opt.get('tsst', (5, 10)): sch.add('ts', self.tm.stamp, early=step0[st], dead=step0[st])
        if extra: extra(sch)
        sch.run()
        self.over = sch.over

    def ffn_consts(self):
        e = self.e
        e(f"""
        s_mul_i32 s{sT0}, s{sC}, {7*A2_STEP}
        s_lshl_b32 s{sT1}, s{sRB}, 13
        s_add_u32 s{sT0}, s{sT0}, s{sT1}
        s_lshr_b32 s{sT1}, s{sWV}, 1
        s_lshl_b32 s{sT1}, s{sT1}, 12
        s_add_u32 s{sT0}, s{sT0}, s{sT1}
        s_and_b32 s{sT1}, s{sWV}, 1
        s_lshl_b32 s{sT2}, s{sT1}, {3 if self.opt.get('pair', 0) else 9}
        s_add_u32 s{sT2}, s{sT2}, {3*A2_STEP}
        s_add_u32 s{sE+3}, s{sT0}, s{sT2}
        s_lshl_b32 s{sT1}, s{sT1}, 19
        s_add_u32 s{sE}, s{sT0}, s{sT1}
        s_add_u32 s{sE+1}, s{sE}, {A2_STEP}
        s_add_u32 s{sE+2}, s{sE}, {2*A2_STEP}
        v_lshlrev_b32 v{self.vT+4}, 4, v{self.vLane}
        v_lshlrev_b32 v{self.vT+5}, 3, v{self.vLane}
        """)
    def ffn_groups(self, aux):
        e = self.e; out = []
        def st(x):
            def f(): self.last_store = e(x)
            f.cost = [x]
            return f
        for m in range(4):
            for Tt in range(4):
                a = self.accF(Tt, 2*m); n = 4 if m < 3 else 2
                l = [f"v_cvt_pk_bf16_f32 v{a+i}, v{a+2*i}, v{a+2*i+1}" for i in range(n)]
                l += [f"v_pk_max_i16 v{a+i}, v{a+i}, 0" for i in range(n)]
                if m < 3: l.append(st(f"buffer_store_dwordx4 v[{a}:{a+3}], v{self.vT+4}, s[{SH}:{SH+3}], s{sE+m} offen offset:{Tt*1024} {aux}"))
                else: l.append(st(f"buffer_store_dwordx2 v[{a}:{a+1}], v{self.vT+(4 if self.opt.get('pair', 0) else 5)}, s[{SH}:{SH+3}], s{sE+3} offen offset:{Tt*1024} {aux}"))
                out.append((4 * min(2*m + 1, 6) + Tt, l))
        return out
    def ffn_lastloop(self, sch, aux):
        g0 = self.step0[19]; n = self.step0[20]
        self.ffn_rest = []
        pos = g0
        for rdy, l in self.ffn_groups(aux):
            pos = max(pos, g0 + rdy + 5)
            if pos + 4 < n and not self.ffn_rest:
                for k, x in enumerate(l): sch.add('cv', x, early=pos + k // 2, dead=pos + k // 2 + 1)
                pos += 4
            else: self.ffn_rest += l
    def epilogue_F(self, side=()):
        weave(self.e, self.ffn_rest, list(side))

    def att_consts(self):
        e = self.e; T = self.vT; L = self.vLane
        sPar, sM0, sM1, sG1, sG2, sG3 = [sMASK + 2 * i for i in range(6)]
        vSel = T + 4
        e(f"""
        v_and_b32 v{T}, 15, v{L}
        v_lshrrev_b32 v{T+1}, 4, v{L}
        v_and_b32 v{T+2}, 1, v{L}
        v_cmp_eq_u32 s[{sPar}:{sPar+1}], 1, v{T+2}
        v_lshl_add_u32 v{T+3}, v{T+1}, 2, v{T+2}
        v_cmp_le_u32 s[{sM0}:{sM0+1}], v{T+3}, v{T}
        v_add_u32 v{T+3}, 2, v{T+3}
        v_cmp_le_u32 s[{sM1}:{sM1+1}], v{T+3}, v{T}
        v_cmp_eq_u32 s[{sG1}:{sG1+1}], 1, v{T+1}
        v_cmp_eq_u32 s[{sG2}:{sG2+1}], 2, v{T+1}
        v_cmp_eq_u32 s[{sG3}:{sG3+1}], 3, v{T+1}
        v_mov_b32 v{T}, 0x0c0c0100
        v_mov_b32 v{T+1}, 0x01000c0c
        v_cndmask_b32 v{T}, v{T}, v{T+1}, s[{sPar}:{sPar+1}]
        v_mov_b32 v{T+1}, 0x0c0c0302
        v_mov_b32 v{T+2}, 0x03020c0c
        v_cndmask_b32 v{T+1}, v{T+1}, v{T+2}, s[{sPar}:{sPar+1}]
        v_mov_b32 v{T+2}, 0x0c0c0c0c
        v_cndmask_b32 v{vSel}, v{T}, v{T+2}, s[{sM0}:{sM0+1}]
        v_cndmask_b32 v{vSel+1}, v{T+1}, v{T+2}, s[{sM1}:{sM1+1}]
        v_cndmask_b32 v{vSel+2}, v{T+2}, v{T}, s[{sM0}:{sM0+1}]
        v_cndmask_b32 v{vSel+3}, v{T+2}, v{T+1}, s[{sM1}:{sM1+1}]
        s_lshr_b32 s{sT0}, s{sC}, 1
        s_lshl_b32 s{sE+3}, s{sT0}, 13
        s_mul_i32 s{sT0}, s{sT0}, 5
        s_add_u32 s{sT0}, s{sT0}, 54
        s_and_b32 s{sT1}, s{sC}, 1
        s_mul_i32 s{sT2}, s{sT1}, 3
        s_add_u32 s{sT2}, s{sT2}, s{sT0}
        s_lshl_b32 s{sT2}, s{sT2}, 17
        s_add_u32 s{sT0}, s{sT0}, 2
        s_lshl_b32 s{sT0}, s{sT0}, 17
        s_lshl_b32 s{sT1}, s{sT1}, 9
        s_add_u32 s{sT0}, s{sT0}, s{sT1}
        s_lshl_b32 s{sT1}, s{sRB}, 13
        s_lshl_b32 s{sT3}, s{sWV}, 11
        s_add_u32 s{sT1}, s{sT1}, s{sT3}
        s_add_u32 s{sE}, s{sT0}, s{sT1}
        s_add_u32 s{sE+1}, s{sT2}, s{sT1}
        s_add_u32 s{sE+2}, s{sE+1}, {A2_STEP}
        s_lshr_b32 s{sT1}, s{sT1}, 4
        s_add_u32 s{sT1}, s{sT1}, {G_OFF}
        s_add_u32 s{sE+3}, s{sE+3}, s{sT1}
        s_bitcmp1_b32 s{sC}, 0
        s_cselect_b32 s{sT1}, {OOB}, 0
        s_add_u32 s{sE+3}, s{sE+3}, s{sT1}
        s_or_b32 s{sT1}, s{sRB}, s{sWV}
        s_cmp_eq_u32 s{sT1}, 0
        s_cselect_b32 s{sE+4}, 0xff800000, 0
        s_mov_b32 s{sE+5}, {f2h(1.4426950408889634 * 20 ** -0.5)}
        """)

    EX = XOFF + XSLOT
    @staticmethod
    def cvt2(d, a): return [f"v_cvt_pk_bf16_f32 v{d}, v{a}, v{a+1}", f"v_cvt_pk_bf16_f32 v{d+1}, v{a+2}, v{a+3}"]

    def att_lastloop(self, sch):
        e = self.e; L = self.vLane
        g0 = self.step0[19]
        pre = [f"s_add_u32 s{sT0}, s{sWV}, 1", f"s_mul_i32 s{sT0}, s{sT0}, 5120", f"s_add_u32 s{sT0}, s{sT0}, {self.EX}",
               f"v_lshlrev_b32 v{self.vDx+1}, 3, v{L}", f"v_add_u32 v{self.vDx}, s{sT0}, v{self.vDx+1}",
               f"s_lshl_b32 s{sT0}, s{sWV}, 9", f"s_add_u32 s{sT0}, s{sT0}, {self.EX}",
               f"v_add_u32 v{self.vDx+2}, s{sT0}, v{self.vDx+1}", f"v_add_u32 v{self.vDx+3}, {self.EX}, v{self.vDx+1}",
               f"v_lshlrev_b32 v{self.vDw}, 4, v{L}", f"v_and_b32 v{self.vDw+1}, 15, v{L}", f"v_lshlrev_b32 v{self.vDw+1}, 2, v{self.vDw+1}"]
        for k, x in enumerate(pre): sch.add('cv', x, early=g0 - 14 + k, dead=g0 + 4)
        lag = 5
        for t in range(5):
            for Tt in (0, 1):
                for x in self.cvt2(self.accQ(Tt, t), self.accQ(Tt, t)): sch.add('cv', x, early=g0 + 2*t + Tt + lag, dead=g0 + 30)
        for t in range(5):
            for Tt in (0, 1):
                for x in self.cvt2(self.accK(Tt, t), self.accK(Tt, t)): sch.add('cv', x, early=g0 + 10 + 2*t + Tt + lag, dead=g0 + 34)
        for x in self.cvt2(self.hK4, self.hK4): sch.add('cv', x, early=g0 + 20 + lag, dead=g0 + 35)

    def epilogue_A(self, aux='', hooks=None):
        e = self.e; T = self.vT; L = self.vLane; hooks = hooks or {}
        sPar, sM0, sM1, sG1, sG2, sG3 = [sMASK + 2 * i for i in range(6)]
        vSel = T + 4; cvt2 = self.cvt2
        H = lambda n: list(hooks.get(n, []))
        Vp = lambda Tt, u: 32 + 6 * u + 2 * (Tt + 1)
        Kp = lambda Tt, t: self.accK(Tt, t) if Tt >= 0 else self.hK + 2 * t
        Qp = self.accQ
        Sc = {1: 62, 0: 176}; Sp = {1: 78, 0: 192}
        vE, vE8, vEh, vE0 = self.vDx, self.vDx + 1, self.vDx + 2, self.vDx + 3
        def qk(Tt):
            l = []
            for t in range(5):
                for (Sr, kt) in ((Sc[Tt], Tt), (Sp[Tt], Tt - 1)):
                    c = f"v[{Sr}:{Sr+15}]" if t else "0"
                    l.append(f"v_mfma_f32_16x16x4_4b_bf16 v[{Sr}:{Sr+15}], v[{Kp(kt,t)}:{Kp(kt,t)+1}], v[{Qp(Tt,t)}:{Qp(Tt,t)+1}], {c}")
            return l
        side = [f"ds_write_b64 v{vE}, v[{Kp(1,t)}:{Kp(1,t)+1}] offset:{512*t}" for t in range(5)]
        side.append(f"ds_write_b64 v{vE0}, v[{self.hK4}:{self.hK4+1}] offset:2048")
        for u in range(5):
            side += cvt2(Vp(1, u), self.accV(1, u)) + [f"ds_write_b64 v{vE}, v[{Vp(1,u)}:{Vp(1,u)+1}] offset:{2560+512*u}"]
        side += cvt2(self.hV4, self.hV4) + [f"ds_write_b64 v{vE0}, v[{self.hV4}:{self.hV4+1}] offset:{2560+2048}"]
        side += cvt2(self.hK, self.hK) + [f"ds_write_b64 v{vEh}, v[{self.hK}:{self.hK+1}]"]
        side += cvt2(self.hV, self.hV) + [f"ds_write_b64 v{vEh}, v[{self.hV}:{self.hV+1}] offset:2560"]
        for u in range(5): side += cvt2(Vp(0, u), self.accV(0, u))
        side.append(f"v_subrev_u32 v{vE}, 5120, v{vE}")
        TS = self.tm.stamp if self.opt.get('ts4') else (lambda: None)
        weave(e, qk(1), side + H('qk1')); TS()
        e.wait_lg_all(); e("s_barrier")
        for t in range(5): e(f"ds_read_b64 v[{Kp(-1,t)}:{Kp(-1,t)+1}], v{vE} offset:{512*t}")
        for u in range(5): e(f"ds_read_b64 v[{Vp(-1,u)}:{Vp(-1,u)+1}], v{vE} offset:{2560+512*u}")
        gate = []
        for op in range(5):
            for Tt in range(2):
                g = self.accG(Tt)
                gate.append([f"v_mul_f32 v{g}, {f2h(-1.4426950408889634)}, v{g}", f"v_exp_f32 v{g}, v{g}", f"v_add_f32 v{g}, 1.0, v{g}",
                             f"v_rcp_f32 v{g}, v{g}", f"v_sub_f32 v{g+1}, 1.0, v{g}"][op])
        for Tt in range(2):
            gate.append(f"buffer_store_dword v{self.accG(Tt)+1}, v{self.vDw+1}, s[{SWS}:{SWS+3}], s{sE+3} offen offset:{64*Tt} {aux}")
        weave(e, gate, H('bar')); TS()
        def softmax(Tt):
            sc, sp = Sc[Tt], Sp[Tt]; l = []
            m0 = [sc + 4*bb for bb in range(4)]; m1 = [sc + 4*bb + 2 for bb in range(4)]
            for bb in range(4):
                c0, p0 = sc + 4*bb, sp + 4*bb
                l += [f"v_cndmask_b32 v{c0}, v{c0}, v{c0+1}, s[{sPar}:{sPar+1}]", f"v_cndmask_b32 v{c0+2}, v{c0+2}, v{c0+3}, s[{sPar}:{sPar+1}]",
                      f"v_cndmask_b32 v{p0}, v{p0}, v{p0+1}, s[{sPar}:{sPar+1}]", f"v_cndmask_b32 v{p0+2}, v{p0+2}, v{p0+3}, s[{sPar}:{sPar+1}]"]
                if Tt == 0: l += [f"v_add_f32 v{p0}, s{sE+4}, v{p0}", f"v_add_f32 v{p0+2}, s{sE+4}, v{p0+2}"]
            for bb in range(4):
                c0, p0 = sc + 4*bb, sp + 4*bb
                l += [f"v_cndmask_b32 v{c0}, v{p0}, v{c0}, s[{sM0}:{sM0+1}]"]
            for bb in range(4):
                c0, p0 = sc + 4*bb, sp + 4*bb
                l += [f"v_cndmask_b32 v{c0+2}, v{p0+2}, v{c0+2}, s[{sM1}:{sM1+1}]"]
            for m in (m0, m1): l += [f"v_permlane32_swap_b32 v{m[0]}, v{m[2]}", f"v_permlane32_swap_b32 v{m[1]}, v{m[3]}"]
            for m in (m0, m1): l += [f"v_permlane16_swap_b32 v{m[0]}, v{m[1]}", f"v_permlane16_swap_b32 v{m[2]}, v{m[3]}"]
            vals = m0 + m1; t0, t1 = sp, sp + 1
            l += [f"v_max3_f32 v{t0}, v{vals[0]}, v{vals[1]}, v{vals[2]}", f"v_max3_f32 v{t1}, v{vals[3]}, v{vals[4]}, v{vals[5]}",
                  f"v_max3_f32 v{t0}, v{t0}, v{vals[6]}, v{vals[7]}", f"v_max_f32 v{t0}, v{t0}, v{t1}", f"v_mul_f32 v{t0}, s{sE+5}, v{t0}"]
            l += [f"v_fma_f32 v{x}, v{x}, s{sE+5}, -v{t0}" for x in vals]
            l += [f"v_exp_f32 v{x}, v{x}" for x in vals]
            l += [f"v_add_f32 v{t0}, v{vals[0]}, v{vals[1]}", f"v_add_f32 v{t1}, v{vals[2]}, v{vals[3]}", f"v_add_f32 v{t0+2}, v{vals[4]}, v{vals[5]}",
                  f"v_add_f32 v{t0}, v{t0}, v{t1}", f"v_add_f32 v{t0+3}, v{vals[6]}, v{vals[7]}", f"v_add_f32 v{t0}, v{t0}, v{t0+2}",
                  f"v_add_f32 v{t0}, v{t0}, v{t0+3}", f"v_rcp_f32 v{t0}, v{t0}", f"v_mul_f32 v{t0}, v{t0}, v{self.accG(Tt)}"]
            l += [f"v_mul_f32 v{x}, v{t0}, v{x}" for x in (vals[0], vals[4], vals[2], vals[6], vals[1], vals[5], vals[3], vals[7])]
            P = [sp + 4 + i for i in range(4)]
            l += [f"v_cvt_pk_bf16_f32 v{P[i]}, v{m0[i]}, v{m1[i]}" for i in (0, 2, 1, 3)]
            l += [f"v_permlane32_swap_b32 v{P[0]}, v{P[2]}", f"v_permlane32_swap_b32 v{P[1]}, v{P[3]}",
                  f"v_permlane16_swap_b32 v{P[0]}, v{P[1]}", f"v_permlane16_swap_b32 v{P[2]}, v{P[3]}"]
            for bb in range(4): l += [f"v_perm_b32 v{sc+4*bb+i}, v{P[bb]}, v{P[bb]}, v{vSel+i}" for i in range(4)]
            return l
        O = [96 + 4*i for i in range(8)]
        def pv(Tt):
            sc = Sc[Tt]; l = []
            for bb in range(4):
                l.append(f"v_mfma_f32_16x16x32_bf16 v[{O[bb]}:{O[bb]+3}], v[{Vp(Tt-1,bb)}:{Vp(Tt-1,bb)+3}], v[{sc+4*bb}:{sc+4*bb+3}], 0")
            for bb in range(4):
                l.append(f"v_mfma_f32_16x16x32_bf16 v[{O[4+bb]}:{O[4+bb]+3}], v[{Vp(Tt-1,4)}:{Vp(Tt-1,4)+3}], v[{sc+4*bb}:{sc+4*bb+3}], 0")
            return l
        def final(Tt):
            sp = Sp[Tt]; o = sp + 8; o4 = sp; l = []
            def st(x):
                def f(): self.last_store = e(x)
                return f
            for bb in range(4): l += cvt2(o + 2*bb, O[bb])
            l.insert(4, st(f"buffer_store_dwordx4 v[{o}:{o+3}], v{self.vDw}, s[{SWS}:{SWS+3}], s{sE+1} offen offset:{1024*Tt} {aux}"))
            l.append(st(f"buffer_store_dwordx4 v[{o+4}:{o+7}], v{self.vDw}, s[{SWS}:{SWS+3}], s{sE+2} offen offset:{1024*Tt} {aux}"))
            for bb in range(4): l += cvt2(o4 + 2*bb, O[4+bb])
            for bb, sg in ((1, sG1), (2, sG2), (3, sG3)):
                l += [f"v_cndmask_b32 v{o4}, v{o4}, v{o4+2*bb}, s[{sg}:{sg+1}]", f"v_cndmask_b32 v{o4+1}, v{o4+1}, v{o4+2*bb+1}, s[{sg}:{sg+1}]"]
            l.append(st(f"buffer_store_dwordx2 v[{o4}:{o4+1}], v{vE8}, s[{SWS}:{SWS+3}], s{sE} offen offset:{1024*Tt} {aux}"))
            return l
        s1 = softmax(1)
        q0 = qk(0); h = H('sm1'); side = []
        for i in range(max(len(q0), 1)):
            side.append(q0[i]); side += h[i * len(h) // len(q0):(i + 1) * len(h) // len(q0)]
        weave(e, s1, side, start=4, end=len(s1) - 12); TS()
        s0 = softmax(0)
        weave(e, s0[:20], pv(1), start=0, end=16)
        weave(e, final(1), H('mid')); TS()
        weave(e, s0[20:], H('sm0')); TS()
        weave(e, pv(0), H('pv0'))
        weave(e, final(0), H('end'))
```

```python
from common import *
from sched import *
NH = 14; NSL = 19
SET1 = WOFF + 3 * WSLOT
RED = 0

class P2:
    def __init__(self, e, role, opt, tm):
        self.e = e; self.role = role; self.opt = opt; self.tm = tm
        self.NT = NT = 4 if role == 'A' else 7
        self.vLane = 1
        self.vGm = 2; self.vA = 11; self.vRw = 15; self.vRr = 17; self.vO = 18; self.vGaddr = 19; self.vTr2 = 20; self.vT = 24
        self.vAcc = 32
        if role == 'A':
            self.vR = 96; self.vR2 = 112; self.ring = [128 + 4*i for i in range(12)] + [208 + 4*i for i in range(6)]
        else:
            self.vR = 144; self.vR2 = 224; self.ring = [160 + 4*i for i in range(16)]
        self.ring = self.ring[:opt.get('na', 11)]
        self.NA = len(self.ring)
        self.stage_ids = {}; self.base = {}; self.rd_ids = {}; self.a_ids = {}
        self.acc = lambda T, u: self.vAcc + 16 * T + 4 * u
        self.items = ([(i, T) for i in range(NH - 2) for T in range(NT)] + [(i, T) for T in range(NT) for i in (NH - 2, NH - 1)]
                      + [(NH + s, T) for T in range(NT) for s in range(5)])
        self.nload = 0; self.nlab = 0
        self.aux = opt.get('aux', 'sc1')

    def setup_early(self):
        e = self.e; T = self.vT; L = self.vLane; A = self.role == 'A'
        nt, t0, n = (4, 84, 11) if A else (7, 0, 12)
        e(f"""
        s_lshr_b32 s{sT1}, s2, 3
        s_and_b32 s{sT1}, s{sT1}, 15
        s_mul_i32 s{sT2}, s{sT1}, 13
        s_lshr_b32 s{sT2}, s{sT2}, 6
        s_mul_i32 s{sT3}, s{sT2}, 5
        s_sub_u32 s{sCOL}, s{sT1}, s{sT3}
        s_bitcmp1_b32 s2, 0
        s_cselect_b32 s{sT3}, 5, 0
        s_add_u32 s{sCOL}, s{sCOL}, s{sT3}
        s_cmp_ge_u32 s{sT2}, 3
        s_cselect_b32 s{sOFF2}, {OOB}, 0
        s_bfe_u32 s{sT0}, s2, 0x20001
        s_mul_i32 s{sT0}, s{sT0}, 3
        s_add_u32 s{sT0}, s{sT0}, s{sT2}
        s_cmp_ge_u32 s{sT0}, {n}
        s_cselect_b32 s{sOFF2}, {OOB}, s{sOFF2}
        s_min_u32 s{sT0}, s{sT0}, {n-1}
        s_mul_i32 s{sTOK}, s{sT0}, {nt}
        s_add_u32 s{sTOK}, s{sTOK}, {t0}
        s_lshl_b32 s{sT0}, s{sCOL}, 7
        s_add_u32 s{sT0}, s{sT0}, s{sOFF2}
        v_lshrrev_b32 v{T}, 3, v{L}
        v_and_b32 v{T+1}, 7, v{L}
        v_lshrrev_b32 v{T+2}, 4, v{L}
        v_lshlrev_b32 v{T+3}, 1, v{T+2}
        v_xor_b32 v{T+1}, v{T+1}, v{T+3}
        v_lshl_add_u32 v{T+1}, v{T+1}, 4, s{sT0}
        v_mul_u32_u24 v{T+3}, 1280, v{T}
        v_add_u32 v{vH}, v{T+3}, v{T+1}
        v_add_u32 v{vH+1}, {1*(8*1280-1024)}, v{vH}
        v_add_u32 v{vH+2}, {2*(8*1280-1024)}, v{vH}
        v_add_u32 v{vH+3}, {3*(8*1280-1024)}, v{vH}
        v_lshrrev_b32 v{T+3}, 2, v{T}
        v_mul_u32_u24 v{T+3}, {16*1280}, v{T+3}
        v_add_u32 v{vY}, v{T+3}, v{vH}
        v_lshrrev_b32 v{T}, 2, v{L}
        v_lshrrev_b32 v{T+1}, 1, v{T}
        v_and_b32 v{T+1}, 3, v{T+1}
        v_and_b32 v{T+2}, 3, v{L}
        v_lshlrev_b32 v{T+2}, 3, v{T+2}
        v_lshl_add_u32 v{T+2}, v{T}, 7, v{T+2}
        v_add_u32 v{T+2}, s{sM2}, v{T+2}
        """)
        for u in range(4):
            e(f"v_xor_b32 v{T+3}, {u}, v{T+1}\nv_lshl_add_u32 v{vTr+u}, v{T+3}, 5, v{T+2}")
        e(f"""
        s_lshr_b32 s{sT0}, s2, 3
        s_and_b32 s{sT0}, s{sT0}, {1 if self.opt.get('rot2', 1) else 0}
        s_lshl_b32 s{sT1}, s{sWV}, 1
        s_add_u32 s{sT1}, s{sT1}, s{sT0}
        s_mul_i32 s{sK2}, s{sT1}, {7*32*1280}
        s_mul_i32 s{sKA}, s{sT1}, {7*A2_STEP}
        s_mul_i32 s{sD2}, s{sT0}, {-14*32*1280}
        s_add_u32 s{sD2}, s{sD2}, {32*1280}
        s_mul_i32 s{sDA}, s{sT0}, {-14*A2_STEP}
        s_add_u32 s{sDA}, s{sDA}, {A2_STEP}
        s_mul_i32 s{sKO}, s{sWV}, {160*1280}
        s_mul_i32 s{sO0}, s{sWV}, {5*A2_STEP}
        s_add_u32 s{sO0}, s{sO0}, {54*A2_STEP}
        """)
        for s in range(1, 5): e(f"s_add_u32 s{sO0+s}, s{sO0}, {s*A2_STEP}")
        e(f"""
        s_lshr_b32 s{sT0}, s{sTOK}, 3
        s_add_u32 s{sT1}, s{sTOK}, {nt-1}
        s_lshr_b32 s{sT1}, s{sT1}, 3
        s_sub_u32 s{sT1}, s{sT1}, s{sT0}
        v_bfe_u32 v{T}, v{L}, 3, 1
        v_mul_u32_u24 v{T}, s{sT1}, v{T}
        v_add_u32 v{T}, s{sT0}, v{T}
        v_lshlrev_b32 v{T+2}, 4, v{T}
        v_bfe_u32 v{T+1}, v{L}, 2, 1
        v_lshl_add_u32 v{T}, v{T}, 3, v{T+1}
        s_lshl_b32 s{sT0}, s{sWV}, 8
        s_add_u32 s{sT0}, s{sT0}, {FLAG_OFF}
        v_and_b32 v{T+1}, 3, v{L}
        v_lshl_add_u32 v{T+1}, v{T+1}, 2, s{sT0}
        v_lshl_add_u32 v{vPollO}, v{T}, 7, v{T+1}
        v_add_u32 v{vPollH}, {128*128}, v{vPollO}
        """)
        self.vCnt = T + 2

    def setup_late(self):
        T = self.vT; L = self.vLane
        l = f"""
        s_lshl_b32 s{sT0}, s{sTOK}, 10
        s_add_u32 s{sT0}, s{sT0}, s{sOFF2}
        v_lshl_add_u32 v{self.vA}, v{L}, 4, s{sT0}
        v_add_u32 v{self.vA+1}, 4096, v{self.vA}
        v_lshl_add_u32 v{self.vA+2}, v{L}, 3, s{sT0}
        v_add_u32 v{self.vA+3}, 4096, v{self.vA+2}
        v_and_b32 v{T}, 15, v{L}
        v_lshrrev_b32 v{T+1}, 4, v{L}
        v_and_b32 v{T+2}, 7, v{L}
        v_xor_b32 v{T+2}, v{T+2}, v{T+1}
        v_lshl_add_u32 v{T+3}, v{T}, 8, s{sM2}
        v_lshl_add_u32 v{self.vRw}, v{T+2}, 4, v{T+3}
        v_xor_b32 v{T+2}, 4, v{T+2}
        v_lshl_add_u32 v{self.vRw+1}, v{T+2}, 4, v{T+3}
        s_lshl_b32 s{sT0}, s{sWV}, 2
        v_add_u32 v{T+2}, s{sT0}, v{T+1}
        v_and_b32 v{T+3}, 7, v{T+2}
        v_xor_b32 v{T+3}, v{T+3}, v{T}
        v_lshlrev_b32 v{T+3}, 4, v{T+3}
        v_lshl_add_u32 v{self.vRr}, v{T+2}, 8, v{T+3}
        s_lshl_b32 s{sT0}, s{sTOK}, 4
        v_add_u32 v{T+2}, s{sT0}, v{T+2}
        v_mul_u32_u24 v{T+2}, 1280, v{T+2}
        s_lshl_b32 s{sT0}, s{sCOL}, 7
        v_lshl_add_u32 v{T+3}, v{T}, 3, s{sT0}
        v_add_u32 v{self.vO}, v{T+2}, v{T+3}
        s_lshl_b32 s{sT0}, s{sTOK}, 6
        s_lshl_b32 s{sT1}, s{sWV}, 13
        s_add_u32 s{sT0}, s{sT0}, s{sT1}
        s_add_u32 s{sT0}, s{sT0}, {G_OFF}
        v_lshl_add_u32 v{self.vGaddr}, v{T}, 2, s{sT0}
        """.strip().split('\n')
        assert RED == 0
        return [x.strip() for x in l]
    def setup_tr2(self):
        return [f"v_add_u32 v{self.vTr2+u}, {SET1}, v{vTr+u}" for u in range(4)]

    def poll_issue(self, vaddr, srd=SWS):
        def f(): self.poll_id = self.e(f"buffer_load_dword v{vPD}, v{vaddr}, s[{srd}:{srd+3}], 0 offen sc1")
        f.cost = ['buffer_x']
        return f
    def poll_check(self, vaddr, want, srd=SWS):
        def f():
            e = self.e; self.nlab += 1
            lab = f"{self.role}_poll{self.nlab}"
            cmp = 'v_cmp_ne_u32' if want == 1 else 'v_cmp_gt_u32'
            e(f"{cmp} vcc, {want}, v{vPD}")
            e(f"s_cbranch_vccz {lab}_ok")
            e.raw(f"""    s_mov_b32 s3, 0
{lab}_spin:
    s_add_u32 s3, s3, 1
    s_cmp_gt_u32 s3, 0x8000
    s_cbranch_scc1 {lab}_ok
    s_sleep 1
    buffer_load_dword v{vPD}, v{vaddr}, s[{srd}:{srd+3}], 0 offen sc1
    s_waitcnt vmcnt(0)
    {cmp} vcc, {want}, v{vPD}
    s_cbranch_vccnz {lab}_spin
{lab}_ok:""")
        f.cost = ['s_x', 'v_x', 's_x']
        return f
    def set_flag(self, store_id):
        def f():
            e = self.e
            e(f"v_mov_b32 v{self.vT+1}, 1")
            e.wait_vm(store_id() if callable(store_id) else store_id)
            e(f"buffer_store_dword v{self.vT+1}, v{vFlag}, s[{SWS}:{SWS+3}], 0 offen sc1")
        f.cost = ['v_x', 's_x', 'buffer_x']
        return f

    def stage_dma(self, i, base):
        e = self.e; out = []
        prev = [j for j, b in self.base.items() if b == base]
        self.base[i] = base
        def S(x): return (lambda: e(x))
        def Dm(x):
            def f(): self.stage_ids[i] = e(x)
            f.cost = ['buffer_x']; f.dma = 1; f.sep = 1
            return f
        if prev: out.append(lambda j=max(prev): e.wait_lg(self.rd_ids[j]))
        out.append(S(f"s_add_u32 m0, s{sM2}, {base}"))
        if i < NH:
            if i > 0: out.append(S(f"s_add_u32 s{sK2}, s{sK2}, " + (f"s{sD2}" if i == 7 else f"{32*1280}")))
            for p in range(4): out.append(Dm(f"buffer_load_dwordx4 v{vH+p}, s[{SW2}:{SW2+3}], s{sK2} offen offset:{p*1024} lds"))
        else:
            s = i - NH
            if s != 2:
                rb = {0: 0, 1: 40, 3: 80, 4: 120}[s]
                out.append(S(f"s_add_u32 s{sK2}, s{sKO}, {rb*1280}"))
                for p in range(4):
                    if p == 2: out.append(S(f"s_add_u32 s{sK2}, s{sK2}, {4*1280}"))
                    out.append(Dm(f"buffer_load_dwordx4 v{vH+p}, s[{SWO}:{SWO+3}], s{sK2} offen offset:{p*1024} lds"))
            else:
                for p in range(4):
                    out.append(S(f"s_add_u32 s{sK2}, s{sKO}, {(80*(p>>1) + 40*(p&1) + 16)*1280 - 1024*p}"))
                    out.append(Dm(f"buffer_load_dwordx4 v{vY}, s[{SWO}:{SWO+3}], s{sK2} offen offset:{p*1024} lds"))
        return out
    def wreg(self, i, u): return 16 * (i % 16) + 4 * u
    def stage_read(self, i):
        e = self.e
        base = self.base[i]
        rb, off = (vTr, base) if base < SET1 else (self.vTr2, base - SET1)
        assert off + 2048 < 65536
        out = [lambda: e.wait_vm(self.stage_ids[i])]
        for u in range(4):
            for h in range(2):
                d = self.wreg(i, u) + 2 * h
                x = f"ds_read_b64_tr_b16 a[{d}:{d+1}], v{rb+u} offset:{off + 2048*h}"
                def f(x=x): self.rd_ids[i] = e(x)
                f.cost = [x]
                out.append(f)
        return out

    def a_load(self, n):
        e = self.e; aux = self.aux
        i, T = self.items[n]
        d = self.ring[n % self.NA]
        hi = 1 if T >= 4 else 0; off = (T - 4 * hi) * 1024
        out = []
        def Dm(x):
            def f(): self.a_ids[n] = e(x)
            f.cost = ['buffer_x']
            return f
        if i < NH:
            if T == 0 and 0 < i < NH - 1: out.append(lambda: e(f"s_add_u32 s{sKA}, s{sKA}, " + (f"s{sDA}" if i == 7 else f"{A2_STEP}")))
            if T == 0 and i == NH - 1: out.append(lambda: e(f"s_add_u32 s{sKB}, s{sKA}, {A2_STEP}"))
            sk = sKB if i == NH - 1 else sKA
            if i % 7 != 3: out.append(Dm(f"buffer_load_dwordx4 v[{d}:{d+3}], v{self.vA+hi}, s[{SH}:{SH+3}], s{sk} offen offset:{off} {aux}"))
            else:
                out.append(Dm(f"buffer_load_dwordx2 v[{d}:{d+1}], v{self.vA+2+hi}, s[{SH}:{SH+3}], s{sKA} offen offset:{off} {aux}"))
                out.append(Dm(f"buffer_load_dwordx2 v[{d+2}:{d+3}], v{self.vA+2+hi}, s[{SH}:{SH+3}], s{sKA} offen offset:{off+512} {aux}"))
        else:
            s = i - NH; so = sO0 + s
            if s != 2: out.append(Dm(f"buffer_load_dwordx4 v[{d}:{d+3}], v{self.vA+hi}, s[{SWS}:{SWS+3}], s{so} offen offset:{off} {aux}"))
            else:
                out.append(Dm(f"buffer_load_dwordx2 v[{d}:{d+1}], v{self.vA+2+hi}, s[{SWS}:{SWS+3}], s{so} offen offset:{off} {aux}"))
                out.append(Dm(f"buffer_load_dwordx2 v[{d+2}:{d+3}], v{self.vA+2+hi}, s[{SWS}:{SWS+3}], s{so} offen offset:{off+512} {aux}"))
        return out
    def first_loads(self, k=None):
        out = []
        k = self.NA if k is None else k
        while self.nload < k:
            out += self.a_load(self.nload); self.nload += 1
        return out

    def mainloop(self, n_read, n_dma, free_bases, extra=None):
        e = self.e; NT = self.NT; items = self.items; NA = self.NA
        sch = Sched(e)
        first = {}; last = {}
        for n, (i, T) in enumerate(items):
            r = self.ring[n % NA]
            for u in range(4):
                a = self.acc(T, u); w = self.wreg(i, u)
                c = f"v[{a}:{a+3}]" if i > 0 else "0"
                k = sch.main(f"v_mfma_f32_16x16x32_bf16 v[{a}:{a+3}], a[{w}:{w+3}], v[{r}:{r+3}], {c}")
                first.setdefault(n, k); last[n] = k
        nm = len(sch.mains)
        first_o = NH * NT
        step = [first[i * NT] for i in range(NH - 1)] + [first[first_o]]
        otile = [first[first_o + 5 * T] for T in range(NT)] + [nm]
        self.step = step
        for n in range(self.nload, len(items)):
            g = last[n - NA] if n >= NA else -1
            if n == first_o - self.opt.get('gearly', NT + 2):
                sch.add('a', self.poll_check(vPollO, 1), early=g, dead=g + 1)
                for T in range(NT):
                    x = f"buffer_load_dword v{self.vGm+T}, v{self.vGaddr}, s[{SWS}:{SWS+3}], 0 offen offset:{64*T} {self.aux}"
                    sch.add('a', x, early=g, dead=g + 2)
            if n == first_o - self.opt.get('gearly', NT + 2) - self.opt.get('pollead', 8): sch.add('a', self.poll_issue(vPollO), early=g, dead=g + 2)
            for fn in self.a_load(n): sch.add('a', fn, early=g, dead=g + 2)
        for n in range(1, len(items)):
            def w(n=n):
                if n in self.a_ids: e.wait_vm(self.a_ids[n])
            sch.add('aw', w, early=first[n] - 1, dead=first[n] - 1)
        free = list(free_bases); nd = n_dma; nr = n_read
        rem = NSL - n_read
        for i in range(NH - 1):
            want = min(NSL, n_read + -(-(i + 1) * rem // (NH - 2)), i + 16)
            if i == NH - 3: want = max(want, NH)
            l = []
            while nd < NSL and free:
                l += self.stage_dma(nd, free.pop(0)); nd += 1
            while nr < min(want, nd):
                l += self.stage_read(nr); free.append(self.base[nr]); nr += 1
            assert nr >= i + 2, (i, nr)
            span = step[i + 1] - step[i]
            for k, fn in enumerate(l):
                pos = step[i] + k * span // len(l)
                sch.add('stg', fn, early=pos, dead=min(pos + 2, step[i + 1] - 1))
        assert nr == NSL
        for T in range(NT):
            lo = last[(NH - 2) * NT + 2 * T + 1] + 4
            for k in range(16):
                pos = lo + k // 2
                sch.add('sc', f"v_mul_f32 v{self.acc(T,0)+k}, v{self.vGm+T}, v{self.acc(T,0)+k}", early=pos, dead=min(pos + 3, otile[T] - 2))
        dbg = self.opt.get('dbg', '')
        def writes(T):
            b = (T & 3) * WSLOT
            l = [f"ds_write_b128 v{self.vRw + (u & 1)}, v[{self.acc(T,u)}:{self.acc(T,u)+3}] offset:{b + 128*(u>>1)}" for u in range(4)]
            if T == 4: l = [f"v_add_u32 v{self.vRw}, {4*WSLOT}, v{self.vRw}", f"v_add_u32 v{self.vRw+1}, {4*WSLOT}, v{self.vRw+1}"] + l
            return l
        def bar():
            e.wait_lg_all(); e("s_barrier")
        bar.cost = ['s_x', 's_barrier']
        def reduce_(T, R):
            b = (T & 3) * WSLOT
            l = [f"ds_read_b128 v[{R+4*w}:{R+4*w+3}], v{self.vRr} offset:{b + 4*WBLK*w}" for w in range(4)]
            if T == 4: l = [f"v_add_u32 v{self.vRr}, {4*WSLOT}, v{self.vRr}"] + l
            add = [f"v_add_f32 v{R+k}, v{R+k}, v{R+4+k}" for k in range(4)] + [f"v_add_f32 v{R+8+k}, v{R+8+k}, v{R+12+k}" for k in range(4)]
            add += [f"v_add_f32 v{R+k}, v{R+k}, v{R+8+k}" for k in range(4)]
            add += [f"v_cvt_pk_bf16_f32 v{R}, v{R}, v{R+1}", f"v_cvt_pk_bf16_f32 v{R+1}, v{R+2}, v{R+3}"]
            if T > 0: add.append(f"v_add_u32 v{self.vO}, {16*1280}, v{self.vO}")
            add.append(f"buffer_store_dwordx2 v[{R}:{R+1}], v{self.vO}, s[{SOUT}:{SOUT+3}], 0 offen {self.opt.get('outaux', 'sc1')}")
            return l, add
        wp = self.opt.get('wpos', [4, 8, 12, 16])
        bl = self.opt.get('rbar' + self.role, [[58, 2]] if NT == 4 else [[78, 3], [118, 5]])
        g0 = otile[0]; ndone = 0; bi = 0
        for T in range(1, NT):
            for k, x in enumerate(writes(T - 1)):
                k = max(0, k - (2 if T - 1 == 4 else 0))
                pos = otile[T] + wp[k]
                while bi < len(bl) and g0 + bl[bi][0] <= pos:
                    sch.add('red', bar, early=g0 + bl[bi][0], dead=g0 + bl[bi][0]); bi += 1
                sch.add('red', x, early=pos, dead=pos)
        while bi < len(bl):
            sch.add('red', bar, early=g0 + bl[bi][0], dead=g0 + bl[bi][0]); bi += 1
        for k, (off, upto) in enumerate(bl):
            assert g0 + off > otile[upto] + wp[3]
            lo = g0 + off + 1; hi = (g0 + bl[k + 1][0] if k + 1 < len(bl) else nm) - 1
            l = []
            for T in range(ndone, upto):
                rd, add = reduce_(T, self.acc(T, 0))
                l.append((rd, add))
            seq = list(l[0][0])
            for j in range(len(l)): seq += (list(l[j + 1][0]) if j + 1 < len(l) else []) + list(l[j][1])
            for j, x in enumerate(seq):
                pos = lo + j * (hi - lo) // len(seq)
                sch.add('red2', x, early=pos, dead=min(pos + 2, nm - 1))
            ndone = upto
        if self.tm.on and not self.opt.get('ts3'):
            sch.add('ts', self.tm.stamp, early=step[7], dead=step[7]); sch.add('ts', self.tm.stamp, early=otile[0], dead=otile[0])
        if extra: extra(sch)
        sch.run(); self.over = sch.over
        self.tm.stamp()
        run = lambda l: [x() if callable(x) else e(x) for x in l]
        run(writes(NT - 1)); bar()
        l = [reduce_(T, self.acc(T, 0)) for T in range(ndone, NT)]
        for rd, add in l: run(rd)
        for rd, add in l: run(add)
```

```python
from common import *
from sched import *
SET1 = WOFF + 3 * WSLOT
NT = 6; NU = 8; NWU = 13
ARING = 16 * NWU
P_OFF = 0xA00000

class P3:
    def __init__(self, e, role, opt, tm):
        self.e = e; self.role = role; self.opt = opt; self.tm = tm
        A = role == 'A'
        self.NHS = 4 if A else 10
        self.NTM = 0 if A else opt.get('ntm', 4)
        self.NSL = self.NHS + (5 if A else 0)
        self.NUN = 2 * self.NSL
        self.vLane = 1
        self.vGm = 2; self.vP = 8; self.vG2a = 9; self.vPollP = 10
        self.vA = 11; self.vRw = 15; self.vRr = 17; self.vO = 18; self.vGaddr = 19; self.vTr2 = 20; self.vT = 24
        self.vAcc = 32; self.vR = 224
        self.NA = min(opt.get('na', 11), 12)
        self.ring = [ARING + 4*i for i in range(self.NA)]
        self.stage_ids = {}; self.base = {}; self.rd_ids = {}; self.a_ids = {}
        self.acc = lambda T, u: self.vAcc + 32 * T + 4 * u
        nsm = self.NHS - self.NTM
        self.tm_slots = list(range(nsm, self.NSL))
        self.items = [(i, T) for i in range(nsm) for T in range(NT)] + [(i, T) for T in range(NT) for i in self.tm_slots]
        self.nsm = nsm
        self.nload = 0; self.nlab = 0
        self.aux = opt.get('aux', 'sc1')

    def setup_early(self):
        e = self.e; T = self.vT; L = self.vLane; A = self.role == 'A'
        H = self.NHS // 2
        e(f"""
        s_lshr_b32 s{sT1}, s2, 3
        s_and_b32 s{sT1}, s{sT1}, 15
        s_and_b32 s{sT0}, s2, 7
        s_mul_i32 s{sT0}, s{sT0}, 14
        s_add_u32 s{sT0}, s{sT0}, s{sT1}
        s_cmp_ge_u32 s{sT1}, 14
        s_cselect_b32 s{sOFF2}, {OOB}, 0
        s_cmp_ge_u32 s{sT0}, 110
        s_cselect_b32 s{sOFF2}, {OOB}, s{sOFF2}
        s_min_u32 s{sT0}, s{sT0}, 109
        s_mul_i32 s{sPO}, s{sT0}, {NT*2*4096}
        s_mul_i32 s{sT2}, s{sT0}, 205
        s_lshr_b32 s{sT2}, s{sT2}, 10
        s_mul_i32 s{sT3}, s{sT2}, 5
        s_sub_u32 s{sCOL}, s{sT0}, s{sT3}
        s_mul_i32 s{sTOK}, s{sT2}, {NT}
        s_lshl_b32 s{sT0}, s{sWV}, 10
        s_add_u32 s{sT0}, s{sT0}, {P_OFF}
        s_add_u32 s{sPO}, s{sPO}, s{sT0}
        s_lshl_b32 s{sT0}, s{sCOL}, 8
        s_add_u32 s{sT0}, s{sT0}, s{sOFF2}
        v_lshrrev_b32 v{T}, 3, v{L}
        v_and_b32 v{T+1}, 7, v{L}
        v_lshrrev_b32 v{T+2}, 4, v{L}
        v_lshlrev_b32 v{T+3}, 1, v{T+2}
        v_xor_b32 v{T+1}, v{T+1}, v{T+3}
        v_lshl_add_u32 v{T+1}, v{T+1}, 4, s{sT0}
        v_mul_u32_u24 v{T+3}, 1280, v{T}
        v_add_u32 v{vH}, v{T+3}, v{T+1}
        v_add_u32 v{vH+1}, {1*(8*1280-1024)}, v{vH}
        v_add_u32 v{vH+2}, {2*(8*1280-1024)}, v{vH}
        v_add_u32 v{vH+3}, {3*(8*1280-1024)}, v{vH}
        v_lshrrev_b32 v{T+3}, 2, v{T}
        v_mul_u32_u24 v{T+3}, {16*1280}, v{T+3}
        v_add_u32 v{vY}, v{T+3}, v{vH}
        v_lshrrev_b32 v{T}, 2, v{L}
        v_lshrrev_b32 v{T+1}, 1, v{T}
        v_and_b32 v{T+1}, 3, v{T+1}
        v_and_b32 v{T+2}, 3, v{L}
        v_lshlrev_b32 v{T+2}, 3, v{T+2}
        v_lshl_add_u32 v{T+2}, v{T}, 7, v{T+2}
        v_add_u32 v{T+2}, s{sM2}, v{T+2}
        """)
        for u in range(4):
            e(f"v_xor_b32 v{T+3}, {u}, v{T+1}\nv_lshl_add_u32 v{vTr+u}, v{T+3}, 5, v{T+2}")
        e(f"""
        s_lshr_b32 s{sT0}, s2, 3
        s_and_b32 s{sT0}, s{sT0}, {1 if self.opt.get('rot2', 1) else 0}
        s_lshl_b32 s{sT1}, s{sWV}, 1
        s_add_u32 s{sT1}, s{sT1}, s{sT0}
        s_mul_i32 s{sT1}, s{sT1}, {H}
        s_add_u32 s{sT1}, s{sT1}, {40 if A else 0}
        s_mul_i32 s{sK2}, s{sT1}, {32*1280}
        s_lshl_b32 s{sKA}, s{sT1}, 17
        s_mul_i32 s{sD2}, s{sT0}, {-2*H*32*1280}
        s_add_u32 s{sD2}, s{sD2}, {32*1280 - 128}
        s_mul_i32 s{sDA}, s{sT0}, {-2*H*A2_STEP}
        s_add_u32 s{sDA}, s{sDA}, {A2_STEP}
        """)
        if A:
            e(f"""
            s_mul_i32 s{sKO}, s{sWV}, {160*1280}
            s_mul_i32 s{sO0}, s{sWV}, {5*A2_STEP}
            s_add_u32 s{sO0}, s{sO0}, {54*A2_STEP}
            """)
            for s in range(1, 5): e(f"s_add_u32 s{sO0+s}, s{sO0}, {s*A2_STEP}")
        else:
            e(f"s_add_u32 s{sT1}, s{sKA}, s{sDA}")
            for k, i in enumerate(self.tm_slots):
                assert i >= H
                e(f"s_add_u32 s{sO0+k}, s{sT1}, {(H - 1 + i - H)*A2_STEP}")
        e(f"""
        s_lshr_b32 s{sT0}, s{sTOK}, 3
        s_add_u32 s{sT1}, s{sTOK}, {NT-1}
        s_min_u32 s{sT1}, s{sT1}, 127
        s_lshr_b32 s{sT1}, s{sT1}, 3
        s_sub_u32 s{sT1}, s{sT1}, s{sT0}
        v_lshrrev_b32 v{T}, 5, v{L}
        v_mul_u32_u24 v{T}, s{sT1}, v{T}
        v_add_u32 v{T}, s{sT0}, v{T}
        v_bfe_u32 v{T+1}, v{L}, 2, 3
        v_lshl_add_u32 v{T}, v{T}, 3, v{T+1}
        v_and_b32 v{T+1}, 3, v{L}
        v_lshlrev_b32 v{T+1}, 2, v{T+1}
        v_lshl_add_u32 v{T}, v{T}, 7, v{T+1}
        v_add_u32 v{vPollO}, {FLAG_OFF}, v{T}
        v_add_u32 v{vPollH}, {FLAG_OFF + 128*128}, v{T}
        v_and_b32 v{T+2}, 15, v{L}
        v_lshlrev_b32 v{T+2}, 4, v{T+2}
        """)
        self.vCnt = T + 2

    def setup_late(self):
        T = self.vT; L = self.vLane; A = self.role == 'A'
        l = f"""
        s_lshl_b32 s{sT0}, s{sTOK}, 10
        s_add_u32 s{sT0}, s{sT0}, s{sOFF2}
        v_lshl_add_u32 v{self.vA}, v{L}, 4, s{sT0}
        v_add_u32 v{self.vA+1}, 4096, v{self.vA}
        v_lshl_add_u32 v{self.vA+2}, v{L}, 3, s{sT0}
        v_add_u32 v{self.vA+3}, 4096, v{self.vA+2}
        v_and_b32 v{T}, 15, v{L}
        v_lshrrev_b32 v{T+1}, 4, v{L}
        v_and_b32 v{T+2}, 7, v{L}
        v_xor_b32 v{T+2}, v{T+2}, v{T+1}
        s_lshl_b32 s{sT0}, s{sWV}, 13
        v_lshl_add_u32 v{T+3}, v{T}, 9, s{sT0}
        v_lshl_add_u32 v{self.vRw}, v{T+2}, 4, v{T+3}
        v_xor_b32 v{T+2}, 4, v{T+2}
        v_lshl_add_u32 v{self.vRw+1}, v{T+2}, 4, v{T+3}
        s_lshl_b32 s{sT0}, s{sWV}, 2
        v_add_u32 v{T+2}, s{sT0}, v{T+1}
        v_and_b32 v{T+3}, 7, v{T+2}
        v_xor_b32 v{T+3}, v{T+3}, v{T}
        v_lshlrev_b32 v{T+3}, 4, v{T+3}
        v_lshl_add_u32 v{self.vRr}, v{T+2}, 9, v{T+3}
        """
        if A: l += f"""
        s_lshl_b32 s{sT0}, s{sTOK}, 4
        v_add_u32 v{T+2}, s{sT0}, v{T+2}
        s_lshl_b32 s{sT1}, s{sWV}, 13
        s_add_u32 s{sT1}, s{sT1}, {G_OFF}
        v_lshl_add_u32 v{T+1}, v{T+2}, 2, s{sT1}
        v_mul_u32_u24 v{T+2}, 1280, v{T+2}
        s_lshl_b32 s{sT0}, s{sCOL}, 8
        v_lshl_add_u32 v{T+3}, v{T}, 3, s{sT0}
        v_add_u32 v{self.vO}, v{T+2}, v{T+3}
        s_lshl_b32 s{sT0}, s{sTOK}, 6
        s_add_u32 s{sT0}, s{sT0}, s{sT1}
        v_lshl_add_u32 v{self.vGaddr}, v{T}, 2, s{sT0}
        v_mov_b32 v{T+3}, v{T+1}
        """
        return [x.strip() for x in l.strip().split('\n') if x.strip()]
    def setup_post(self):
        T = self.vT; A = self.role == 'A'
        l = [f"v_lshl_add_u32 v{self.vP}, v{self.vLane}, 4, s{sPO}"]
        if A: l += [f"v_mov_b32 v{self.vG2a}, v{T+3}", f"v_readlane_b32 s{sT0}, v{vFlag}, 0", f"s_add_u32 s{sT0}, s{sT0}, {128*128 + 16}",
                    f"v_mov_b32 v{self.vPollP}, s{sT0}"]
        return l
    def setup_tr2(self):
        return [f"v_add_u32 v{self.vTr2+u}, {SET1}, v{vTr+u}" for u in range(4)]

    def poll_issue(self, vaddr, srd=SWS):
        def f(): self.poll_id = self.e(f"buffer_load_dword v{vPD}, v{vaddr}, s[{srd}:{srd+3}], 0 offen sc1")
        f.cost = ['buffer_x']
        return f
    def poll_check(self, vaddr, want, srd=SWS, top=None):
        def f():
            e = self.e; self.nlab += 1
            lab = f"{self.role}_poll{self.nlab}"
            cmp = 'v_cmp_gt_u32'
            e(f"{cmp} vcc, {want}, v{vPD}")
            e(f"s_cbranch_vccz {lab}_ok")
            e.raw(f"""    s_mov_b32 s3, 0
{lab}_spin:
    s_add_u32 s3, s3, 1
    s_cmp_gt_u32 s3, 0x8000
    s_cbranch_scc1 {lab}_ok
    s_sleep 1
    buffer_load_dword v{vPD}, v{vaddr}, s[{srd}:{srd+3}], 0 offen sc1
    s_waitcnt vmcnt(0)
    {cmp} vcc, {want}, v{vPD}
    s_cbranch_vccnz {lab}_spin
{lab}_ok:""")
        f.cost = ['s_x', 'v_x', 's_x']
        return f
    def set_flag(self, store_id, val=1, off=0):
        def f():
            e = self.e
            e(f"v_mov_b32 v{self.vT+1}, {val}")
            e.wait_vm(store_id() if callable(store_id) else store_id)
            e(f"buffer_store_dword v{self.vT+1}, v{vFlag}, s[{SWS}:{SWS+3}], 0 offen offset:{off} sc1")
        f.cost = ['v_x', 's_x', 'buffer_x']
        return f

    def lazy_flag(self):
        done = [T for T, i in self.pst2.items() if i not in self.e.vm]
        if done and max(done) + 1 > self.published:
            self.published = max(done) + 1
            self.set_flag(-1, self.published, 16)()
    def stage_dma(self, q, base):
        e = self.e; out = []
        i, ch = divmod(q, 2)
        prev = [j for j, b in self.base.items() if b == base]
        self.base[q] = base
        def S(x): return (lambda: e(x))
        def Dm(x):
            def f(): self.stage_ids[q] = e(x)
            f.cost = ['buffer_x']; f.dma = 1; f.sep = 1
            return f
        if prev: out.append(lambda j=max(prev): e.wait_lg(self.rd_ids[j]))
        out.append(S(f"s_add_u32 m0, s{sM2}, {base}"))
        if i < self.NHS:
            if ch: out.append(S(f"s_add_u32 s{sK2}, s{sK2}, 128"))
            elif i > 0: out.append(S(f"s_add_u32 s{sK2}, s{sK2}, " + (f"s{sD2}" if i == self.NHS // 2 else f"{32*1280 - 128}")))
            for p in range(4): out.append(Dm(f"buffer_load_dwordx4 v{vH+p}, s[{SW2}:{SW2+3}], s{sK2} offen offset:{p*1024} lds"))
        else:
            s = i - self.NHS
            if s != 2:
                rb = {0: 0, 1: 40, 3: 80, 4: 120}[s]
                out.append(S(f"s_add_u32 s{sK2}, s{sKO}, {rb*1280 + 128*ch}"))
                for p in range(4):
                    if p == 2: out.append(S(f"s_add_u32 s{sK2}, s{sK2}, {4*1280}"))
                    out.append(Dm(f"buffer_load_dwordx4 v{vH+p}, s[{SWO}:{SWO+3}], s{sK2} offen offset:{p*1024} lds"))
            else:
                for p in range(4):
                    out.append(S(f"s_add_u32 s{sK2}, s{sKO}, {(80*(p>>1) + 40*(p&1) + 16)*1280 - 1024*p + 128*ch}"))
                    out.append(Dm(f"buffer_load_dwordx4 v{vY}, s[{SWO}:{SWO+3}], s{sK2} offen offset:{p*1024} lds"))
        return out
    def wreg(self, i, u): return 16 * ((2 * i + (u >> 2)) % NWU) + 4 * (u & 3)
    def stage_read(self, q):
        e = self.e
        base = self.base[q]
        rb, off = (vTr, base) if base < SET1 else (self.vTr2, base - SET1)
        assert off + 2048 < 65536
        out = [lambda: e.wait_vm(self.stage_ids[q])]
        for u in range(4):
            for h in range(2):
                d = 16 * (q % NWU) + 4 * u + 2 * h
                x = f"ds_read_b64_tr_b16 a[{d}:{d+1}], v{rb+u} offset:{off + 2048*h}"
                def f(x=x): self.rd_ids[q] = e(x)
                f.cost = [x]
                out.append(f)
        return out

    def a_load(self, n):
        e = self.e; aux = self.aux
        i, T = self.items[n]
        d = self.ring[n % self.NA]
        hi = 1 if T >= 4 else 0; off = (T - 4 * hi) * 1024
        out = []
        def Dm(x):
            def f(): self.a_ids[n] = e(x)
            f.cost = ['buffer_x']
            return f
        if i < self.nsm:
            if T == 0 and i > 0: out.append(lambda: e(f"s_add_u32 s{sKA}, s{sKA}, " + (f"s{sDA}" if i == self.NHS // 2 else f"{A2_STEP}")))
            so, srd = sKA, SH
        else: so, srd = sO0 + i - self.nsm, (SH if i < self.NHS else SWS)
        if i != self.NHS + 2: out.append(Dm(f"buffer_load_dwordx4 a[{d}:{d+3}], v{self.vA+hi}, s[{srd}:{srd+3}], s{so} offen offset:{off} {aux}"))
        else:
            out.append(Dm(f"buffer_load_dwordx2 a[{d}:{d+1}], v{self.vA+2+hi}, s[{srd}:{srd+3}], s{so} offen offset:{off} {aux}"))
            out.append(Dm(f"buffer_load_dwordx2 a[{d+2}:{d+3}], v{self.vA+2+hi}, s[{srd}:{srd+3}], s{so} offen offset:{off+512} {aux}"))
        return out
    def first_loads(self, k=None):
        out = []
        k = self.NA if k is None else k
        while self.nload < k:
            out += self.a_load(self.nload); self.nload += 1
        return out

    def mainloop(self, n_read, n_dma, free_bases, extra=None):
        e = self.e; items = self.items; NA = self.NA; A = self.role == 'A'; opt = self.opt
        nsm = self.nsm; ntm = len(self.tm_slots)
        sch = Sched(e)
        first = {}; last = {}
        for n, (i, T) in enumerate(items):
            r = self.ring[n % NA]
            for u in range(NU):
                a = self.acc(T, u); w = self.wreg(i, u)
                c = f"v[{a}:{a+3}]" if i > 0 else "0"
                k = sch.main(f"v_mfma_f32_16x16x32_bf16 v[{a}:{a+3}], a[{w}:{w+3}], a[{r}:{r+3}], {c}")
                first.setdefault(n, k); last[n] = k
        nm = len(sch.mains)
        n_tm = nsm * NT
        step = [first[i * NT] for i in range(nsm + 1)]
        otile = [first[n_tm + ntm * T] for T in range(NT)] + [nm]
        self.step = step
        nchk = max(self.nload, n_tm - opt.get('gearly', 0))
        for n in range(self.nload, len(items)):
            g = last[n - NA] if n >= NA else -1
            if A and n == max(self.nload, nchk - opt.get('pollead', 4)): sch.add('a', self.poll_issue(vPollO), early=g, dead=g + 2)
            if A and n == nchk:
                sch.add('a', self.poll_check(vPollO, 1), early=g, dead=g + 1)
                for T in range(NT):
                    sch.add('a', f"buffer_load_dword v{self.vGm+T}, v{self.vGaddr}, s[{SWS}:{SWS+3}], 0 offen offset:{64*T} {self.aux}", early=g, dead=g + 7)
            for fn in self.a_load(n): sch.add('a', fn, early=g, dead=g + 7)
        for n in range(1, len(items)):
            def w(n=n):
                if n in self.a_ids: e.wait_vm(self.a_ids[n])
            sch.add('aw', w, early=first[n] - 1, dead=first[n] - 1)
        free = list(free_bases); nd = n_dma; nr = n_read; NUN = self.NUN
        rem = NUN - n_read
        for i in range(nsm):
            lastuse = lambda q: 10**9 if q // 2 >= nsm else step[q // 2 + 1] - 1
            want = min(NUN, n_read + -(-(i + 1) * rem // nsm))
            l = []
            while True:
                prog = False
                if nd < NUN and free: l += [(x, 0) for x in self.stage_dma(nd, free.pop(0))]; nd += 1; prog = True
                if nr < min(want, nd) and (nr < NWU or (nr - NWU) // 2 <= i):
                    lo = lastuse(nr - NWU) if nr >= NWU else 0
                    l += [(x, lo) for x in self.stage_read(nr)]; free.append(self.base[nr]); nr += 1; prog = True
                if not prog: break
            assert nr >= min(NUN, 2 * i + 4) or i == nsm - 1, (i, nr)
            span = step[i + 1] - step[i]
            for k, (fn, lo) in enumerate(l):
                pos = max(step[i] + k * span // len(l), lo)
                sch.add('stg', fn, early=pos, dead=pos + 2)
        assert nr == NUN, (nr, NUN)
        if A:
            for T in range(NT):
                lo = max(last[(nsm - 1) * NT + T] + 4, otile[0] - opt.get('sc0', 24))
                if T > 0: lo = max(lo, otile[T - 1] - 8)
                for k in range(32):
                    pos = lo + k // 2
                    sch.add('sc', f"v_mul_f32 v{self.acc(T,0)+k}, v{self.vGm+T}, v{self.acc(T,0)+k}", early=min(pos, otile[T] - 2 + k // 4), dead=min(pos + 3, otile[T] - 2 + k // 4))
        PB = lambda T: [240, 20][T] if T < 2 else self.acc(T - 2, 4)
        G2 = lambda T: [248, 28][T] if T < 2 else self.acc(T - 2, 6)
        def writes(T):
            b = (T & 1) * 32768
            return [f"ds_write_b128 v{self.vRw + (u & 1)}, v[{self.acc(T,u)}:{self.acc(T,u)+3}] offset:{b + 128*(u>>1)}" for u in range(NU)]
        def bar():
            e.wait_lg_all(); e("s_barrier")
        bar.cost = ['s_x', 's_barrier']
        self.pst = {}; self.pst2 = {}; self.published = 0
        def reduce_(T, h, R):
            b = (T & 1) * 32768 + 256 * h
            rd = [f"ds_read_b128 v[{R+4*w}:{R+4*w+3}], v{self.vRr} offset:{b + 8192*w}" for w in range(4)]
            add = [f"v_add_f32 v{R+k}, v{R+k}, v{R+4+k}" for k in range(4)] + [f"v_add_f32 v{R+8+k}, v{R+8+k}, v{R+12+k}" for k in range(4)]
            if A:
                add += [f"v_fmac_f32 v{R+k}, v{G2(T)}, v{PB(T)+4*h+k}" for k in range(4)]
            add += [f"v_add_f32 v{R+k}, v{R+k}, v{R+8+k}" for k in range(4)]
            if A:
                add += [f"v_cvt_pk_bf16_f32 v{R}, v{R}, v{R+1}", f"v_cvt_pk_bf16_f32 v{R+1}, v{R+2}, v{R+3}"]
                if T > 0 and h == 0: add.append(f"v_add_u32 v{self.vO}, {16*1280}, v{self.vO}")
                add.append(f"buffer_store_dwordx2 v[{R}:{R+1}], v{self.vO}, s[{SOUT}:{SOUT+3}], 0 offen offset:{128*h} {opt.get('outaux', 'sc1')}")
            else:
                add.append(f"s_mov_b32 s{sT2}, {(2*T+h)*4096}")
                def f():
                    if h == 1: self.pst2[T] = e.nid + 1
                    self.pst[T] = e(f"buffer_store_dwordx4 v[{R}:{R+3}], v{self.vP}, s[{SWS}:{SWS+3}], s{sT2} offen sc1")
                f.cost = ['buffer_x']
                add.append(f)
            return rd, add
        def pload(T):
            l = [self.poll_check(self.vPollP, T + 1), f"s_mov_b32 s{sT2}, {2*T*4096}", f"s_mov_b32 s{sT3}, {(2*T+1)*4096}"]
            l += [f"buffer_load_dwordx4 v[{PB(T)+4*h}:{PB(T)+4*h+3}], v{self.vP}, s[{SWS}:{SWS+3}], s{sT2+h} offen sc1" for h in range(2)]
            l.append(f"buffer_load_dword v{G2(T)}, v{self.vG2a}, s[{SWS}:{SWS+3}], 0 offen offset:{64*T} sc1")
            return l
        R = self.vR
        W = otile[1] - otile[0]
        for T in range(1, NT):
            g = otile[T]; lastT = T == NT - 1
            sch.add('red', bar, early=g + 3, dead=g + 3)
            if T >= 2:
                for h in range(2):
                    rd, add = reduce_(T - 2, h, R if h == 0 else self.acc(T - 2, 0))
                    for k, x in enumerate(rd): sch.add('red3', x, early=g + 4 + 8*h + 2*k, dead=g + 4 + 8*h + 2*k)
                    lo = g + 12 + h * (W - 14) // 2
                    for k, x in enumerate(add):
                        pos = lo + k * ((W - 14) // 2) // len(add)
                        sch.add('red2', x, early=pos, dead=min(pos + 2, g + W - 1))
            nw = W - 6 if not lastT else W - 14
            for k, x in enumerate(writes(T - 1)):
                pos = g + 5 + k * nw // NU
                sch.add('red', x, early=pos, dead=pos)
            if lastT:
                sch.add('red', bar, early=g + W - 8, dead=g + W - 8)
                tail = []
                for h in range(2):
                    rd, add = reduce_(T - 1, h, self.acc(0, 4*h))
                    for k, x in enumerate(rd): sch.add('red', x, early=g + W - 7 + (4*h + k) * 7 // 8, dead=g + W - 7 + (4*h + k) * 7 // 8)
                    tail += add
            if not A and T >= 3:
                for pos in (g + 2, g + W // 2): sch.add('flag', self.lazy_flag, early=pos, dead=pos + 3, cost=['v_x', 'buffer_x'])
        if A:
            for T in range(NT):
                g = otile[T]
                sch.add('a2', self.poll_issue(self.vPollP), early=g + opt.get('ppos', 4), dead=g + opt.get('ppos', 4) + 3)
                for k, x in enumerate(pload(T)): sch.add('a2', x, early=g + W - 9 + k, dead=g + W - 8 + k)
        if self.tm.on:
            sch.add('ts', self.tm.stamp, early=otile[0], dead=otile[0])
        if extra: extra(sch)
        sch.run(); self.over = sch.over
        self.tm.stamp()
        run = lambda l: [x() if callable(x) else e(x) for x in l]
        if A:
            run(tail[:12]); weave(e, writes(NT - 1), tail[12:]); bar()
        else:
            run(tail[:8]); weave(e, writes(NT - 1), tail[8:]); bar()
        l = [reduce_(NT - 1, h, self.acc(1, 4*h)) for h in range(2)]
        run(l[0][0]); run(l[1][0]); run(l[0][1]); run(l[1][1])
        if not A:
            for T in range(self.published, NT):
                if T != NT - 2: self.set_flag(self.pst[T], T + 1, 16)()
```

```python
import sys, json
from common import *
from p1 import P1
from p2 import P2, NSL
from p3 import P3, NWU

HDR = open('cdna_kernels/' + KN + '.s.ref').read().split('; Override launch')[0]
def srd(e, base, nbytes): e(f"s_mov_b32 s{base+2}, {nbytes}\ns_mov_b32 s{base+3}, 0x20000")
WB = lambda st: WOFF + (st % NWS) * WSLOT
XB = lambda k: XOFF + k * XSLOT

def entry(e, opt, tm):
    e(f"s_cmp_ge_u32 s2, 256\ns_cbranch_scc1 L_done")
    if opt.get('cpf0', 1):
        e(f"s_getpc_b64 s[6:7]\nv_min_u32 v34, 15, v0\nv_lshlrev_b32 v34, 7, v34")
        e.touch(f"global_load_dword v{vDUM}, v34, s[6:7]")
    if opt.get('cpf', 1) == 1:
        assert opt['cpf_lines'] == 16
        e(f"s_lshr_b32 s3, s2, 3\ns_lshl_b32 s3, s3, 11\nv_add_u32 v35, s3, v34")
        e.touch(f"global_load_dword v{vDUM}, v35, s[6:7]")
    for base, off in [(SX, 0), (SPF, 8), (SW, 32), (SWS, 72), (SGATE, 48), (SW2, 40), (SWO, 16), (SOUT, 56), (SDBG, 64)]:
        e(f"s_load_dwordx2 s[{base}:{base+1}], s[0:1], {off}")
    e(f"""
    v_lshrrev_b32 v2, 6, v0
    v_and_b32 v1, 63, v0
    s_lshr_b32 s{sT1}, s2, 3
    v_readfirstlane_b32 s{sWV}, v2
    s_bfe_u32 s{sRB}, s2, 0x10002
    s_lshl_b32 s{sRB}, s{sRB}, 3
    s_and_b32 s{sT2}, s{sT1}, 7
    s_add_u32 s{sRB}, s{sRB}, s{sT2}
    s_and_b32 s{sC}, s2, 3
    s_lshl_b32 s{sC}, s{sC}, 1
    s_bfe_u32 s{sT2}, s2, 0x10006
    s_add_u32 s{sC}, s{sC}, s{sT2}
    s_lshr_b32 s{sROLE}, s2, 7
    """)
    p = P1(e, 'F', opt); p.rots = [0]
    PF = opt.get('pf', 'xwp01')
    def wsel():
        e(f"""
        s_mov_b32 s{SW+3}, 0x20000
        s_mov_b32 s{SPF+3}, 0x20000
        s_cmp_eq_u32 s{sROLE}, 0
        s_mov_b32 s{SW+2}, {640*1728*2}
        s_cselect_b32 s{SW+2}, {640*1920*2}, s{SW+2}
        s_mov_b32 s{SPF+2}, {640*1920*2}
        s_cselect_b32 s{SPF+2}, {640*1728*2}, s{SPF+2}
        s_mov_b32 s4, s{SW}
        s_mov_b32 s5, s{SW+1}
        s_cselect_b32 s{SW}, s{SPF}, s{SW}
        s_cselect_b32 s{SW+1}, s{SPF+1}, s{SW+1}
        s_cselect_b32 s{SPF}, s4, s{SPF}
        s_cselect_b32 s{SPF+1}, s5, s{SPF+1}
        """)
    srd(e, SX, S*D*2)
    done = set()
    for c in PF:
        if c in 'xX' and 'x' not in done: p.setup_x(); done.add('x')
        if c in 'wW' and 'w' not in done: p.setup_w(); wsel(); done.add('w')
        if c == 'p': pf_setup(e)
        if c == 'x':
            for f in p.dma_x(0): f()
        if c == 'w':
            for f in p.dma_w(0): f()
        if c in '01':
            for f in pf_site(e, int(c), PF1): f()
    e.first_id = max(p.dma_ids.values())
    if opt.get('ts2'): e("s_mov_b32 s98, s4\ns_mov_b32 s99, s5"); tm.stamp(); e("s_mov_b32 s4, s98\ns_mov_b32 s5, s99")
    if opt.get('cpf', 1) == 2:
        e(f"""
        s_getpc_b64 s[6:7]
        s_lshr_b32 s3, s2, 3
        s_mul_i32 s3, s3, {opt['cpf_lines']*128}
        v_lshl_add_u32 v34, v0, 7, s3
        v_cmp_gt_u32 vcc, {opt['cpf_lines']}, v0
        s_and_saveexec_b64 s[{sT0}:{sT0+1}], vcc
        """)
        e.touch(f"global_load_dword v{vDUM}, v34, s[6:7]")
        e(f"s_mov_b64 exec, s[{sT0}:{sT0+1}]")
    e(f"""
    s_lshl_b32 s{sT0}, s{sROLE}, 4
    s_add_u32 s{sT0}, s{sT0}, s{sRB}
    s_lshl_b32 s{sT0}, s{sT0}, 3
    s_add_u32 s{sT0}, s{sT0}, s{sC}
    s_lshl_b32 s{sT0}, s{sT0}, 5
    s_add_u32 s{sT0}, s{sT0}, s{sWV}
    s_lshl_b32 s{sT0}, s{sT0}, 2
    s_add_u32 s{sT0}, s{sT0}, {FLAG_OFF}
    v_mov_b32 v{vFlag}, {OOB}
    v_mov_b32 v{vPD}, 0
    v_writelane_b32 v{vFlag}, s{sT0}, 0
    """)
    srd(e, SWS, WS_BYTES)
    srd(e, SGATE, 1280); srd(e, SW2, 1728*640*2); srd(e, SWO, 640*640*2)
    srd(e, SOUT, S*D*2); srd(e, SDBG, 256); srd(e, SH, 54*A2_STEP)
    e(f"s_mov_b32 s{SH}, s{SWS}\ns_mov_b32 s{SH+1}, s{SWS+1}")
    if opt.get('tlb'):
        sh = opt['tlb']
        e(f"v_min_u32 v34, {(10 << 20 >> sh) - 1}, v0\nv_lshlrev_b32 v34, {sh}, v34")
        for srd_ in (SWS, SOUT, SW2, SWO): e.touch(f"buffer_load_dword v{vDUM}, v34, s[{srd_}:{srd_+3}], 0 offen")

def pf_setup(e):
    e(f"""
    s_lshr_b32 s{sT0}, s2, 3
    s_mul_i32 s{sT1}, s{sT0}, 13
    s_lshr_b32 s{sT1}, s{sT1}, 6
    s_mul_i32 s{sT2}, s{sT1}, 5
    s_sub_u32 s{sT2}, s{sT0}, s{sT2}
    s_cmp_lt_u32 s{sT0}, 30
    s_cselect_b32 s{sPG}, s{sT2}, 7
    s_and_b32 s{sT0}, s2, 7
    s_mul_i32 s{sT0}, s{sT0}, 6
    s_add_u32 s{sT0}, s{sT0}, s{sT1}
    s_lshl_b32 s{sT0}, s{sT0}, 2
    s_add_u32 s{sDP}, s{sT0}, s{sWV}
    s_mul_i32 s{sT0}, s{sDP}, {20*128}
    v_min_u32 v{vP}, 19, v1
    s_mul_i32 s{sT1}, s{sT2}, s{sKP}
    v_lshl_add_u32 v{vP}, v{vP}, 7, s{sT0}
    s_lshl_b32 s{sT1}, s{sT1}, 7
    s_mul_i32 s{sT3}, s{sT2}, {128*(3840+3456)}
    s_sub_u32 s{sT3}, s{sT3}, s{sT1}
    v_add_u32 v{vP+1}, s{sT3}, v{vP}
    v_add_u32 v{vP}, s{sT1}, v{vP}
    v_min_u32 v{vP+2}, 21, v1
    s_mul_i32 s{sT0}, s{sDP}, {11*1280}
    s_lshl_b32 s{sT1}, s{sT2}, 8
    v_and_b32 v34, 1, v{vP+2}
    s_add_u32 s{sT0}, s{sT0}, s{sT1}
    v_lshrrev_b32 v{vP+2}, 1, v{vP+2}
    v_lshl_add_u32 v34, v34, 7, s{sT0}
    v_mad_u32_u24 v{vP+2}, v{vP+2}, s{sE}, v34
    """.replace(f"    v_min_u32 v{vP+2}, 21, v1\n", f"    v_min_u32 v{vP+2}, 21, v1\n    s_movk_i32 s{sE}, 1280\n"))
def pf2_setup_A(e):
    e(f"""
    s_lshr_b32 s{sT0}, s2, 3
    s_mul_i32 s{sT1}, s{sT0}, 13
    s_lshr_b32 s{sT1}, s{sT1}, 6
    s_and_b32 s{sT0}, s2, 7
    s_mul_i32 s{sT0}, s{sT0}, 3
    s_add_u32 s{sT0}, s{sT0}, s{sT1}
    s_lshl_b32 s{sT0}, s{sT0}, 2
    s_add_u32 s{sT0}, s{sT0}, s{sWV}
    s_mul_i32 s{sT0}, s{sT0}, {50*128}
    s_cmp_lt_u32 s{sT1}, 3
    s_cselect_b32 s{sT0}, s{sT0}, {OOB}
    s_mul_i32 s{sT1}, s{sPG}, {4736*128}
    s_add_u32 s{sT0}, s{sT0}, s{sT1}
    v_min_u32 v{vPF}, 49, v1
    v_lshl_add_u32 v{vPF}, v{vPF}, 7, s{sT0}
    v_subrev_u32 v{vP+3}, {1728*1280}, v{vPF}
    """)
def pf2_setup(e):
    e(f"""
    s_mul_i32 s{sT0}, s{sPG}, {4736*128}
    s_mul_i32 s{sT1}, s{sDP}, {25*128}
    s_add_u32 s{sT0}, s{sT0}, s{sT1}
    v_min_u32 v{vPF}, 24, v1
    v_lshl_add_u32 v{vPF}, v{vPF}, 7, s{sT0}
    v_subrev_u32 v{vP+3}, {1728*1280}, v{vPF}
    """)
def pf_site(e, g, what):
    def sel(): e(f"s_cmp_eq_u32 s{sPG}, {g}\ns_cselect_b32 s{sPS}, 0, {OOB}")
    sel.cost = ['s_x', 's_x']
    out = [sel]
    for v, srd_ in what:
        def f(v=v, srd_=srd_): e.touch(f"buffer_load_dword v{vDUM}, v{v}, s[{srd_}:{srd_+3}], s{sPS} offen")
        f.cost = ['buffer_x']; f.sep = 1
        out.append(f)
    return out
PF1 = [(vP + 2, SX), (vP, SW), (vP + 1, SPF)]
PF2 = [(vPF, SW2), (vP + 3, SWO)]

def role_code(e, role, opt, tm):
    A = role == 'A'
    run = lambda l: [x() if callable(x) else e(x) for x in l]
    p = P1(e, role, opt); p.tm = tm
    PAIR = opt.get('pair', 0)
    q = (P3 if PAIR else P2)(e, role, opt, tm)
    NUN, NRES = (q.NUN, NWU) if PAIR else (NSL, 16)
    aux = opt.get('aux', 'sc1'); PF = 'p' in opt.get('pf', 'p')
    p.setup()
    p.prologue_dma()
    e(f"buffer_store_dword v{vPD}, v{vFlag}, s[{SWS}:{SWS+3}], 0 offen sc1")
    if PAIR: e(f"buffer_store_dword v{vPD}, v{vFlag}, s[{SWS}:{SWS+3}], 0 offen offset:16 sc1")
    p.prologue_dma2()
    if opt.get('ts2'): tm.stamp()
    p.setup_reads()
    T = p.vT
    def late():
        e(f"""
        s_lshl_b32 s{sT0}, s{sRB}, 4
        s_cmp_eq_u32 s{sWV}, 0
        s_cselect_b32 s{sT0}, s{sT0}, {OOB}
        v_mov_b32 v{T}, {OOB}
        v_mov_b32 v{T+1}, 1
        v_writelane_b32 v{T}, s{sT0}, 0
        ATOMIC
        """)
        if PF and not opt.get('pf2A', 1): pf2_setup(e)
        elif PF and A: pf2_setup_A(e)
        (p.att_consts if A else p.ffn_consts)()
        q.setup_early()
    late_l = scc_groups(e.capture(late))
    if opt.get('ts2'): tm.stamp()
    def extra(sch):
        lo = p.step0[1]; hi = p.step0[opt.get('late_end', 9)]
        for k, x in enumerate(late_l):
            pos = lo + k * (hi - lo) // len(late_l)
            if x == ['ATOMIC']:
                sch.add('cnt', f"buffer_atomic_add v{T+1}, v{T}, s[{SDBG}:{SDBG+3}], 0 offen sc1", early=p.bpos[2] + 1, dead=p.bpos[2] + 6, after=[p.bars[2]])
            else: sch.add('cnt', (lambda x=x: e('\n'.join(x))), early=pos, dead=max(pos, p.bpos[2] + 7) + 3, cost=x)
        if PF:
            sites = [(st, 2 + k, PF1) for k, st in enumerate(opt.get('pfs', [1, 4, 7]))] + [(st, k, PF2) for k, st in enumerate(opt.get('pfs2', [5, 6, 7, 9, 10])) if A or not opt.get('pf2A', 1)]
            for st, g_, what in sorted(sites, key=lambda t: t[0]):
                for fn in pf_site(e, g_, what): sch.add('pf', fn, early=p.step0[st] + 1, dead=p.step0[st] + 14)
        g = p.step0[14]
        sch.add('cnt', q.poll_issue(q.vCnt, SDBG), early=g, dead=g + 6)
        g = p.step0[17]
        sch.add('cnt', q.poll_check(q.vCnt, 16, SDBG), early=g, dead=g + 6)
        for k, (st, base) in enumerate([(17, E0), (17, WB(15)), (18, WB(16)), (19, WB(17))]):
            fns = q.stage_dma(k, base)
            lo = p.bpos[st] + 1; span = p.bpos[st + 1] - lo
            if st == 17: span //= 2; lo += span * k
            for j, fn in enumerate(fns):
                pos = lo + j * span // len(fns)
                sch.add('dma', fn, early=pos, dead=pos + 2, after=[p.bars[st]])
        if A:
            p.att_lastloop(sch)
        else: p.ffn_lastloop(sch, aux)
    p.mainloop(extra); tm.stamp()
    if A:
        hooks = {}
        hooks['qk1'] = q.setup_tr2()
        hooks['bar'] = q.stage_dma(4, WB(18)) + q.stage_dma(5, WB(19)) + q.stage_dma(6, XB(0))
        h = []
        for i in range(4): h += q.stage_read(i)
        hooks['sm1'] = q.setup_late() + h
        h = []
        for i in range(4): h += q.stage_dma(7 + i, q.base[i])[1:]
        hooks['sm1'].append(lambda: e.wait_lg(q.rd_ids[3]))
        k = opt.get('apoll', 1) * 6
        hooks['mid'] = h[:k] + [q.poll_issue(vPollH)]
        hooks['sm0'] = h[k:]
        nx = opt.get('amore', 0)
        for i in range(nx): hooks['sm0'] += q.stage_read(4 + i)
        for i in range(nx): hooks['pv0' if opt.get('amore2') else 'sm0'] = hooks.get('pv0' if opt.get('amore2') else 'sm0', []) + q.stage_dma(11 + i, q.base[4 + i])
        hooks['pv0'] = [q.poll_check(vPollH, 1)] + q.first_loads(4) + hooks.get('pv0', [])
        hooks['end'] = q.first_loads()
        if opt.get('nohook'): pre = [x for k in ('qk1', 'bar', 'sm1', 'mid', 'sm0', 'pv0', 'end') for x in hooks[k]]; hooks = {}
        p.epilogue_A(aux, hooks); tm.stamp()
        if opt.get('nohook'): run(pre); tm.stamp()
        e(f"s_cmp_lg_u32 s{sOFF2}, 0\ns_cbranch_scc1 A_pub")
        snap = e.snapshot()
        def ex2(sch):
            g = opt.get('aflag', 8 if PAIR else 24)
            sch.add('flag', q.set_flag(p.last_store), early=g, dead=g + 4)
        if PAIR: run(q.setup_post())
        q.mainloop(4 + nx, 11 + nx, [], ex2)
    else:
        p.epilogue_F(); tm.stamp()
        e("s_barrier")
        run(q.setup_tr2())
        free = [WB(18), WB(19), XB(0), XB(1)]; nd = 4
        for k in range(opt.get('nflag', 2)):
            run(q.stage_dma(nd, free.pop(0))); nd += 1
        run(q.setup_late())
        for i in range(4): run(q.stage_read(i))
        q.set_flag(p.last_store)(); tm.stamp()
        e(f"s_cmp_lg_u32 s{sOFF2}, 0\ns_cbranch_scc1 F_pub")
        snap = e.snapshot()
        free += [q.base[i] for i in range(4)]
        nr = 4
        npre2 = opt.get('npre2', NUN)
        npoll = opt.get('npoll', npre2 - 2)
        if PAIR: run(q.setup_post())
        while nd < npre2:
            if nd == npoll: q.poll_issue(vPollH)()
            if not free:
                run(q.stage_read(nr)); free.append(q.base[nr]); nr += 1
            run(q.stage_dma(nd, free.pop(0))); nd += 1
        assert nr <= NRES
        nr0 = min(opt.get('nrd0', 12), NRES, npoll); nr1 = min(NRES, max(nr0, npoll))
        while nr < nr0: run(q.stage_read(nr)); free.append(q.base[nr]); nr += 1
        q.poll_check(vPollH, 1)(); tm.stamp()
        weave(e, q.first_loads(), [x for i in range(nr, nr1) for x in q.stage_read(i)], start=8)
        free += [q.base[i] for i in range(nr, nr1)]
        q.mainloop(max(nr, nr1), nd, free)
    tm.stamp()
    if tm.on: e.wait_vm_all(); tm.stamp(); tm.flush()
    e("s_endpgm")
    e.restore(snap)
    e.raw(f"{role}_pub:")
    if A: q.set_flag(p.last_store)()
    tm.flush()
    e("s_endpgm")
    print(role, "over p1", p.over, "p2", q.over, file=sys.stderr)

def fused(opt):
    opt.setdefault('cpf_lines', 16)
    e = Emit(); k = KN + '_kernel'
    e.raw(kstart(k))
    tm = Stamps(e, opt.get('ts', 0)); tm.stamp()
    entry(e, opt, tm)
    e(f"s_cmp_eq_u32 s{sROLE}, 0\ns_cbranch_scc0 L_F")
    snap = e.snapshot(); n0 = tm.n
    role_code(e, 'A', opt, tm)
    e.restore(snap); tm.n = n0
    e.raw("L_F:")
    role_code(e, 'F', opt, tm)
    e.raw("L_done:")
    e("s_endpgm")
    print(e.stats, "nops", e.nops, file=sys.stderr)
    txt = HDR + f"; @launch grid=(256,1,1) block=(256,1,1) lds={LDS_END}\n"
    txt += '.amdgcn_target "amdgcn-amd-amdhsa--gfx950"\n.text\n' + e.text()
    txt += f"; padding: the code prefetch above reads {32*opt['cpf_lines']*128} bytes from the entry\n.fill (({32*opt['cpf_lines']*128} + 512 - (. - {k})) / 4), 4, 0xbf810000\n" + kdesc(k)
    return txt

if __name__ == '__main__':
    opt = json.loads(sys.argv[2]) if len(sys.argv) > 2 else {}
    open(sys.argv[1], 'w').write(fused(opt))
```

```python
from emit import *
import struct
KN = 'gated_mix__sliding_local_dilated__dense_activation_relu__prompt'
S, D = 2048, 640
NSTEP2 = 74
A2_STEP = 128 * 1024
G_OFF = NSTEP2 * A2_STEP
FLAG_OFF = 0x980000
WS_BYTES = 268435456
WBLK = 1056; WSLOT = 16 * WBLK; NWS = 5; NXS = 3
LDS_END = NWS * WSLOT + NXS * 24576 + 1280
OOB = 0x7ff00000
def f2h(x): return hex(struct.unpack('<I', struct.pack('<f', x))[0])
def kstart(name): return f".globl {name}\n.p2align 8\n.type {name},@function\n{name}:"
def kdesc(name, vgpr=512, accum=256, sgpr=102):
    return f""".section .rodata,"a"
.p2align 6
.amdhsa_kernel {name}
  .amdhsa_next_free_vgpr {vgpr}
  .amdhsa_next_free_sgpr {sgpr}
  .amdhsa_accum_offset {accum}
  .amdhsa_group_segment_fixed_size 0
  .amdhsa_kernarg_size 80
  .amdhsa_user_sgpr_count 2
  .amdhsa_user_sgpr_kernarg_segment_ptr 1
  .amdhsa_system_sgpr_workgroup_id_x 1
.end_amdhsa_kernel
.text
"""
SX, SWQ, SWS, SW2, SWO, SOUT, SGATE, SH, SDBG, SW1 = 8, 12, 16, 20, 24, 28, 32, 36, 40, 44
sWV, sRB, sC, sI, sM0W, sM0X, sKW, sKX, sPS = range(48, 57)
sT0, sT1, sT2, sT3 = 60, 61, 62, 63
sTOK, sCOL, sM2, sK2, sKA, sKO = range(64, 70)
sO0 = 70
sMASK = 76
sD2, sDA, sKB = 88, 89, 90
sE = 91
vTS = 0

def weave(e, main, side, start=0, end=None):
    end = len(main) if end is None else end
    run = lambda x: x() if callable(x) else e(x)
    k = 0; n = max(end - start, 1)
    for i, m in enumerate(main):
        run(m)
        if start <= i < end:
            tgt = (i - start + 1) * len(side) // n
            while k < tgt: run(side[k]); k += 1
    while k < len(side): run(side[k]); k += 1

def scc_groups(lines):
    out = []; i = 0
    while i < len(lines):
        x = lines[i]
        if x.startswith(('s_cmp', 's_bitcmp')):
            j = i; k = i + 1
            while k < len(lines) and not lines[k].startswith(('s_cmp', 's_bitcmp')):
                if lines[k].startswith('s_cselect'): j = k
                k += 1
            out.append(lines[i:j + 1]); i = j + 1
        else:
            out.append([x]); i += 1
    return out

STAMP_OFF = 0x1000000
class Stamps:
    def __init__(self, e, on):
        self.e = e; self.on = on; self.n = 0
    def first(self):
        if self.on: self.e("s_memrealtime s[4:5]\ns_memtime s[6:7]"); self.e.wait_lg_all(); self.e("s_mov_b32 s58, s4\ns_mov_b32 s59, s6")
    def init(self):
        if self.on: self.e(f"v_mov_b32 v{vTS}, 0\nv_writelane_b32 v{vTS}, s58, 0\nv_writelane_b32 v{vTS}, s59, 16"); self.n = 1
    def stamp(self):
        if not self.on: return
        e = self.e
        assert self.n < 16
        e.wait_lg_all()
        e("s_memrealtime s[4:5]\ns_memtime s[6:7]")
        e.wait_lg_all()
        e(f"v_writelane_b32 v{vTS}, s4, {self.n}\nv_writelane_b32 v{vTS}, s6, {16+self.n}")
        self.n += 1
    def flush(self, vt):
        if not self.on: return
        self.e(f"""
        s_lshl_b32 s4, s2, 2
        s_add_u32 s4, s4, s{sWV}
        s_lshl_b32 s4, s4, 7
        s_add_u32 s4, s4, {STAMP_OFF}
        v_lshlrev_b32 v{vt}, 2, v1
        s_mov_b32 exec_hi, 0
        buffer_store_dword v{vTS}, v{vt}, s[{SWS}:{SWS+3}], s4 offen
        s_mov_b32 exec_hi, -1
        """)

class Handoff:
    def __init__(self, e, tag, vPD, vFlag, vOne, slp=1):
        self.slp = slp
        self.e = e; self.tag = tag; self.vPD = vPD; self.vFlag = vFlag; self.vOne = vOne; self.nlab = 0
    def poll_issue(self, vaddr, srd=SWS):
        def f(): self.e(f"buffer_load_dword v{self.vPD}, v{vaddr}, s[{srd}:{srd+3}], 0 offen sc1")
        f.cost = ['buffer_x']
        return f
    def poll_check(self, vaddr, want, srd=SWS):
        def f():
            e = self.e; self.nlab += 1
            lab = f"{self.tag}_poll{self.nlab}"
            e(f"v_cmp_gt_u32 vcc, {want}, v{self.vPD}")
            e(f"s_nop 0\ns_cbranch_vccz {lab}_ok")
            e.raw(f"""    s_mov_b32 s3, 0
{lab}_spin:
    s_add_u32 s3, s3, 1
    s_cmp_gt_u32 s3, 0x8000
    s_cbranch_scc1 {lab}_ok
    s_sleep {self.slp}
    buffer_load_dword v{self.vPD}, v{vaddr}, s[{srd}:{srd+3}], 0 offen sc1
    s_waitcnt vmcnt(0)
    v_cmp_gt_u32 vcc, {want}, v{self.vPD}
    s_nop 0
    s_cbranch_vccnz {lab}_spin
{lab}_ok:""")
        f.cost = ['s_x', 'v_x', 's_x', 's_x']
        return f
    def set_flag(self, store_id):
        e = self.e
        e(f"v_mov_b32 v{self.vOne}, 1")
        e.wait_vm(store_id)
        e(f"buffer_store_dword v{self.vOne}, v{self.vFlag}, s[{SWS}:{SWS+3}], 0 offen sc1")
```

```python
from common import *
from sched import *

class P1:
    def __init__(self, e, role, opt, tm):
        self.e = e; self.role = role; self.opt = opt; self.tm = tm
        A = role == 'A'
        self.pitch = 3840 if A else 3456
        self.SW = SWQ if A else SW1
        self.WOFF = 0 if A else WSLOT
        self.XOFF = self.WOFF + NWS * WSLOT
        self.XSLOT = 24576 if A else WSLOT
        self.GOFF = self.XOFF + NXS * self.XSLOT
        self.NXP = 6 if A else 4
        self.vLane = 1; self.vDw = 2; self.vDx = 6; self.vXo = 12; self.vG = 14; self.vWb = 15; self.vT = 24
        if A:
            self.vPw, self.vPx, self.vFlag, self.vPD, self.vDUM = 19, 20, 21, 22, 23
            self.fk = 'a'; self.rWF = 0; self.rXF = 32; self.NF = opt.get('nf', 6)
            self.accQ = lambda T, t: 64 + 40 * (2 - T) + 4 * t
            self.accK = lambda T, t: 84 + 40 * (2 - T) + 4 * t
            self.accV = lambda T, u: 184 + 12 * u + 4 * T
            self.accG = lambda T: 244 + 4 * T
        else:
            self.vFlag, self.vPD, self.vDUM = 251, 252, 253
            self.fk = 'v'; self.rXF = 32; self.rWF = 64; self.NF = opt.get('nfF', 5)
            self.accF = lambda T, t: 96 + 24 * T + 4 * t
        self.dma_ids = {}

    def setup_x(self):
        e = self.e; T = self.vT; L = self.vLane; A = self.role == 'A'
        if not A:
            e(f"""
            v_lshrrev_b32 v{T}, 3, v{L}
            s_lshl_b32 s{sT0}, s{sRB}, 2
            v_and_b32 v{T+2}, 7, v{L}
            s_add_u32 s{sT0}, s{sT0}, s{sWV}
            v_lshrrev_b32 v{T+3}, 4, v{L}
            s_mul_i32 s{sT0}, s{sT0}, {32*1280}
            v_mul_u32_u24 v{T+1}, 1280, v{T}
            s_lshl_b32 s{sM0X}, s{sWV}, 12
            v_xor_b32 v{T+4}, v{T+2}, v{T+3}
            s_add_u32 s{sM0X}, s{sM0X}, {self.XOFF}
            v_add_u32 v{T+1}, s{sT0}, v{T+1}
            v_xor_b32 v{T+5}, 4, v{T+4}
            v_lshl_add_u32 v{self.vDx}, v{T+4}, 4, v{T+1}
            v_lshl_add_u32 v{self.vDx+1}, v{T+5}, 4, v{T+1}
            v_add_u32 v{self.vDx+2}, {16*1280-2048}, v{self.vDx}
            v_add_u32 v{self.vDx+1}, {8*1280-1024}, v{self.vDx+1}
            v_add_u32 v{self.vDx+3}, {16*1280-2048}, v{self.vDx+1}
            """)
        else:
            e(f"""
            v_lshrrev_b32 v{T}, 3, v{L}
            s_mul_i32 s{sT0}, s{sRB}, 176
            v_and_b32 v{T+2}, 7, v{L}
            s_mul_i32 s{sT1}, s{sWV}, 48
            v_lshrrev_b32 v{T+3}, 4, v{L}
            s_add_u32 s{sT0}, s{sT0}, s{sT1}
            v_xor_b32 v{T+4}, v{T+2}, v{T+3}
            s_sub_u32 s{sT0}, s{sT0}, 16
            v_xor_b32 v{T+5}, 4, v{T+4}
            s_mul_i32 s{sM0X}, s{sWV}, 6144
            v_add_u32 v{T}, s{sT0}, v{T}
            s_add_u32 s{sM0X}, s{sM0X}, {self.XOFF}
            v_lshlrev_b32 v{T+4}, 4, v{T+4}
            v_lshlrev_b32 v{T+5}, 4, v{T+5}
            s_movk_i32 s{sT1}, 1280
            """)
            for p in range(6):
                e(f"v_add_u32 v{T+1}, {8*p}, v{T}")
                if p < 2: e(f"v_max_i32 v{T+1}, {p}, v{T+1}")
                e(f"v_mad_u32_u24 v{self.vDx+p}, v{T+1}, s{sT1}, v{T+4+(p&1)}")
                if p & 3: e(f"v_subrev_u32 v{self.vDx+p}, {1024*(p&3)}, v{self.vDx+p}")
    def setup_w(self):
        e = self.e; T = self.vT; L = self.vLane; A = self.role == 'A'
        if A:
            e(f"""
            v_mul_u32_u24 v{T}, 205, v{L}
            s_mul_i32 s{sT0}, s{sWV}, {8*self.pitch}
            v_lshrrev_b32 v{T}, 11, v{T}
            s_mul_i32 s{sT1}, s{sC}, 160
            v_mad_i32_i24 v{T+1}, v{T}, -10, v{L}
            s_add_u32 s{sT0}, s{sT0}, s{sT1}
            v_mul_u32_u24 v{T+2}, 1280, v{T}
            v_cmp_le_u32 vcc, 3, v{T}
            v_lshl_add_u32 v{T+2}, v{T+1}, 4, v{T+2}
            v_mov_b32 v{T+3}, {4*self.pitch - 3*1280}
            v_cndmask_b32 v{T+3}, 0, v{T+3}, vcc
            v_add3_u32 v{T+2}, v{T+2}, v{T+3}, s{sT0}
            v_mov_b32 v{T+3}, {OOB}
            v_cmp_gt_u32 vcc, 60, v{L}
            """)
        else:
            e(f"""
            v_lshrrev_b32 v{T}, 5, v{L}
            s_mul_i32 s{sT0}, s{sWV}, {8*self.pitch}
            v_and_b32 v{T+1}, 31, v{L}
            s_mul_i32 s{sT1}, s{sC}, 384
            v_mul_u32_u24 v{T}, {4*self.pitch}, v{T}
            s_add_u32 s{sT0}, s{sT0}, s{sT1}
            v_lshl_add_u32 v{T+2}, v{T+1}, 4, v{T}
            v_mov_b32 v{T+3}, {OOB}
            v_add_u32 v{T+2}, s{sT0}, v{T+2}
            v_cmp_gt_u32 vcc, 24, v{T+1}
            """)
        e(f"""
        s_mul_i32 s{sM2}, s{sWV}, {4*WBLK}
        s_add_u32 s{sM0W}, s{sM2}, {self.WOFF}
        v_cndmask_b32 v{self.vDw}, v{T+3}, v{T+2}, vcc
        """)
        for p in range(1, 4): e(f"v_add_u32 v{self.vDw+p}, {p*(self.pitch-WBLK)}, v{self.vDw}")
    def setup_reads(self):
        e = self.e; A = self.role == 'A'; T = self.vT; L = self.vLane
        if not A: e(f"s_lshr_b32 s{sT0}, s{sWV}, 1\ns_lshl_b32 s{sT0}, s{sT0}, 13\ns_add_u32 s{sT0}, s{sT0}, {self.XOFF}\ns_and_b32 s{sT1}, s{sWV}, 1\ns_mul_i32 s{sT1}, s{sT1}, 192\ns_add_u32 s{sT1}, s{sT1}, {self.WOFF}")
        e(f"""
        v_and_b32 v{T}, 15, v{L}
        v_lshrrev_b32 v{T+1}, 4, v{L}
        v_lshrrev_b32 v{T+2}, 1, v{T}
        v_xor_b32 v{T+2}, v{T+2}, v{T+1}
        v_lshlrev_b32 v{T+2}, 4, v{T+2}
        v_lshl_add_u32 v{T+2}, v{T}, 7, v{T+2}
        v_xor_b32 v{T+3}, 64, v{T+2}
        v_add_u32 v{self.vXo}, s{sM0X if A else sT0}, v{T+2}
        v_add_u32 v{self.vXo+1}, s{sM0X if A else sT0}, v{T+3}
        v_lshrrev_b32 v{T+4}, 2, v{L}
        v_mul_u32_u24 v{T+4}, {WBLK}, v{T+4}
        v_and_b32 v{T+5}, 3, v{L}
        v_lshl_add_u32 v{self.vWb+2}, v{T+5}, 3, v{T+4}
        """)
        if A:
            e(f"""
            v_lshlrev_b32 v{self.vG}, 4, v{T+1}
            v_add_u32 v{self.vG}, {self.GOFF}, v{self.vG}
            v_mad_u32_u24 v{self.vWb}, v{T+5}, 40, v{T+4}
            v_add_u32 v{self.vWb+1}, {3*WSLOT}, v{self.vWb}
            """)
        else: e(f"v_add_u32 v{self.vWb+2}, s{sT1}, v{self.vWb+2}")
        e(f"v_add_u32 v{self.vWb+3}, {3*WSLOT}, v{self.vWb+2}")

    def _dm(self, key, text):
        def f():
            if self.opt.get('nodma') in (self.role, self.role + key[0]) and key[1] > 0: self.dma_ids[key] = -1
            else: self.dma_ids[key] = self.e(text)
        f.dma = 1; f.cost = ['buffer_x']
        return f
    def dma_w(self, st):
        e = self.e
        out = [lambda: e(f"s_add_u32 m0, s{sM0W}, {(st % NWS)*WSLOT}"),
               lambda: e(f"s_mov_b32 s{sKW}, 0" if st == 0 else f"s_add_u32 s{sKW}, s{sKW}, {32*self.pitch}")]
        return out + [self._dm(('w', st), f"buffer_load_dwordx4 v{self.vDw+p}, s[{self.SW}:{self.SW+3}], s{sKW} offen offset:{p*WBLK} lds") for p in range(4)]
    def dma_x(self, a):
        e = self.e; A = self.role == 'A'; slot = (a % NXS) * self.XSLOT
        def piece(p):
            return [self._dm(('x', a), f"buffer_load_dwordx4 v{self.vDx+p}, s[{SX}:{SX+3}], s{sKX} offen offset:{(p & 3)*1024} lds")]
        h0 = [lambda: e(f"s_add_u32 m0, s{sM0X}, {slot}"), lambda: e(f"s_mov_b32 s{sKX}, 0" if a == 0 else f"s_add_u32 s{sKX}, s{sKX}, 128")]
        n0 = 4 if A else 2
        for p in range(n0): h0 += piece(p)
        h1 = [lambda: e(f"s_add_u32 m0, s{sM0X}, {slot + (4096 if A else 0)}")]
        for p in range(n0, self.NXP): h1 += piece(p)
        return h0, h1
    def dma_gate(self):
        T = self.vT
        self.e(f"""
        s_mul_i32 s{sT0}, s{sWV}, 320
        s_add_u32 m0, s{sT0}, {self.GOFF}
        v_lshl_add_u32 v{T}, v{self.vLane}, 4, s{sT0}
        s_mov_b64 exec, 0xfffff
        buffer_load_dwordx4 v{T}, s[{SGATE}:{SGATE+3}], 0 offen lds
        s_mov_b64 exec, -1
        """)

    def frags(self):
        fr = []
        if self.role == 'A':
            for t in range(5): fr.append((0, 8*t, [('WX', self.accQ(T, t), T) for T in range(3)]))
            for t in range(5): fr.append((0, 160 + 8*t, [('WX', self.accK(T, t), T) for T in range(3)]))
            for u in range(5):
                m = [('XW', self.accV(T, u), T) for T in range(3)]
                if u >= 2: m.append(('GX', self.accG(u - 2), u - 2))
                fr.append((2, 320 + 40*u, m) if u < 4 else (0, 320 + 32, m))
            self.hstride = 480
        else:
            for t in range(6): fr.append((2, 32*t, [('WX', self.accF(T, t), T) for T in range(4)]))
            self.hstride = 512
        return fr
    def read_frag(self, gf):
        st, f = divmod(gf, len(self.fr))
        pat, off, _ = self.fr[f]
        slot = st % NWS
        base = self.vWb + pat + (1 if slot >= 3 else 0)
        o = (slot - (3 if slot >= 3 else 0)) * WSLOT + off
        d = self.rWF + 4 * (gf % self.NF); k = self.fk
        return [f"ds_read_b64_tr_b16 {k}[{d}:{d+1}], v{base} offset:{o}", f"ds_read_b64_tr_b16 {k}[{d+2}:{d+3}], v{base} offset:{o+self.hstride}"]
    def read_x(self, st):
        a, kk = divmod(st, 2); slot = (a % NXS) * self.XSLOT
        b = self.rXF + 16 * (st & 1); k = self.fk
        out = [f"ds_read_b128 {k}[{b+4*T}:{b+4*T+3}], v{self.vXo+kk} offset:{slot+2048*T}" for T in range(3 if self.role == 'A' else 4)]
        if self.role == 'A': out.append(f"ds_read_b128 {k}[{b+12}:{b+15}], v{self.vG} offset:{st*64}")
        return out
    def mfma(self, st, gf, spec):
        kind, acc, xi = spec
        w = self.rWF + 4 * (gf % self.NF); x = self.rXF + 16 * (st & 1) + 4 * xi; k = self.fk
        if kind == 'GX': w = self.rXF + 16 * (st & 1) + 12
        a, b = (x, w) if kind == 'XW' else (w, x)
        c = f"v[{acc}:{acc+3}]" if st > 0 else "0"
        return f"v_mfma_f32_16x16x32_bf16 v[{acc}:{acc+3}], {k}[{a}:{a+3}], {k}[{b}:{b+3}], {c}"
    def barrier_for(self, st):
        e = self.e
        ids = [self.dma_ids[('w', st)]]
        if st % 2 == 0: ids.append(self.dma_ids[('x', st // 2)])
        live = [i for i in ids if i in e.vm]
        if live: e.wait_vm(max(live, key=e.vm.index))
        e("s_barrier")

    def mainloop(self, extra=None):
        e = self.e; opt = self.opt; A = self.role == 'A'
        self.fr = fr = self.frags(); nf = len(fr); NF = self.NF
        NST = 20
        sch = Sched(e)
        first = {}; last = {}
        for st in range(NST):
            for f in range(nf):
                gf = st * nf + f
                for spec in fr[f][2]:
                    i = sch.main(self.mfma(st, gf, spec)); first.setdefault(gf, i); last[gf] = i
        step0 = self.step0 = [first[st * nf] for st in range(NST)] + [len(sch.mains)]
        lead = opt.get('lead', 12) if A else opt.get('leadF', 11)
        ids = {}; bars = {}
        self.barrier_for(0); self.tm.stamp()
        bpos = [-2] + [step0[st] - lead - 1 for st in range(1, NST)] + [step0[NST] - lead - 1]
        for st in range(1, NST):
            bars[st] = sch.add('bar', (lambda st=st: self.barrier_for(st)), early=bpos[st], dead=bpos[st], cost=['s_x', 's_barrier'])
        self.bars = bars; self.bpos = bpos
        for st in range(NST):
            xr = self.read_x(st); l = []
            for f in range(nf):
                gf = st * nf + f
                rf = [(x, gf) for x in self.read_frag(gf)]
                l += rf if f else [rf[0], (xr[0], None), rf[1], (xr[1], None), (xr[2], None)]
                if f == (6 if A else 0): l.append((xr[3], None))
            lo = bpos[st] + 1; G = bpos[st + 1] - lo
            if st == 0: lo = -lead; G = bpos[1] - lo
            for k, (x, gf) in enumerate(l):
                g = max(-1, lo + k * G // len(l))
                if gf is not None and gf >= NF: assert g >= last[gf - NF], (st, gf, g, last[gf - NF])
                if gf is not None: assert g < first[gf] - 2 or st == 0, (st, gf, g, first[gf])
                def r(x=x, gf=gf): ids[gf] = e(x)
                sch.add('rd', r, early=g, dead=g, cost=[x])
        for gf in range(1, NST * nf):
            def w(gf=gf):
                if gf in ids: e.wait_lg(ids[gf])
            sch.add('wait', w, early=first[gf] - 2, dead=first[gf] - 1)
        per = [[] for _ in range(NST)]
        for s2 in range(1, NST): per[max(s2 - 3, 0)].append((s2, self.dma_w(s2)))
        for a in range(1, 10):
            h0, h1 = self.dma_x(a)
            if a < 3: per[0].append((2 * a - 0.5, h0 + h1))
            else: per[2 * a - 4].append((2 * a - 0.5, h0)); per[2 * a - 3].append((2 * a - 0.5, h1))
        for st in range(NST):
            fns = [f for _, l in sorted(per[st], key=lambda t: t[0]) for f in l]
            nd = sum(1 for f in fns if getattr(f, 'dma', 0))
            b0 = max(bpos[st], -1); k = 0; span = bpos[st + 1] - b0 - 1
            for fn in fns:
                pos = b0 + 1 + int((k + 0.3) * span / max(nd, 1))
                if getattr(fn, 'dma', 0): k += 1; fn.sep = 1
                else: pos -= 3
                sch.add('dma', fn, early=pos, dead=min(pos + 2, bpos[st + 1] - 1), after=[bars.get(st)])
        if self.tm.on:
            for st in opt.get('tsst', (5, 10)): sch.add('ts', self.tm.stamp, early=step0[st], dead=step0[st])
        if extra: extra(sch)
        sch.run(); self.over = sch.over

    def ffn_consts(self):
        self.e(f"""
        s_mul_i32 s{sT0}, s{sC}, {6*A2_STEP}
        s_lshl_b32 s{sT1}, s{sRB}, 13
        s_add_u32 s{sT0}, s{sT0}, s{sT1}
        s_lshr_b32 s{sT1}, s{sWV}, 1
        s_lshl_b32 s{sT1}, s{sT1}, 12
        s_add_u32 s{sT0}, s{sT0}, s{sT1}
        s_and_b32 s{sT1}, s{sWV}, 1
        s_mul_i32 s{sT1}, s{sT1}, {3*A2_STEP}
        s_add_u32 s{sE}, s{sT0}, s{sT1}
        s_add_u32 s{sE+1}, s{sE}, {A2_STEP}
        s_add_u32 s{sE+2}, s{sE}, {2*A2_STEP}
        v_lshlrev_b32 v{self.vT+4}, 4, v{self.vLane}
        """)
    def _st(self, x):
        def f(): self.last_store = self.e(x)
        f.cost = [x]
        return f
    def ffn_lastloop(self, sch, aux):
        g0 = self.step0[19]; n = self.step0[20]
        self.ffn_rest = []; pos = g0
        for m in range(3):
            for T in range(4):
                a = self.accF(T, 2*m)
                l = [f"v_cvt_pk_bf16_f32 v{a+i}, v{a+2*i}, v{a+2*i+1}" for i in range(4)] + [f"v_pk_max_i16 v{a+i}, v{a+i}, 0" for i in range(4)]
                l.append(self._st(f"buffer_store_dwordx4 v[{a}:{a+3}], v{self.vT+4}, s[{SWS}:{SWS+3}], s{sE+m} offen offset:{T*1024} {aux}"))
                pos = max(pos, g0 + 4 * (2*m + 1) + T + 5)
                if pos + 4 < n and not self.ffn_rest:
                    for k, x in enumerate(l): sch.add('cv', x, early=pos + k // 2, dead=pos + k // 2 + 1)
                    pos += 4
                else: self.ffn_rest += l

    def att_consts(self):
        e = self.e; T = self.vT; L = self.vLane
        sPar, sM0, sM1, sG1, sG2, sG3 = [sMASK + 2 * i for i in range(6)]
        vSel = T + 4
        e(f"""
        v_and_b32 v{T}, 15, v{L}
        v_lshrrev_b32 v{T+1}, 4, v{L}
        v_and_b32 v{T+2}, 1, v{L}
        v_cmp_eq_u32 s[{sPar}:{sPar+1}], 1, v{T+2}
        v_lshl_add_u32 v{T+3}, v{T+1}, 2, v{T+2}
        v_cmp_le_u32 s[{sM0}:{sM0+1}], v{T+3}, v{T}
        v_add_u32 v{T+3}, 2, v{T+3}
        v_cmp_le_u32 s[{sM1}:{sM1+1}], v{T+3}, v{T}
        v_cmp_eq_u32 s[{sG1}:{sG1+1}], 1, v{T+1}
        v_cmp_eq_u32 s[{sG2}:{sG2+1}], 2, v{T+1}
        v_cmp_eq_u32 s[{sG3}:{sG3+1}], 3, v{T+1}
        v_mov_b32 v{T}, 0x0c0c0100
        v_mov_b32 v{T+1}, 0x01000c0c
        v_cndmask_b32 v{T}, v{T}, v{T+1}, s[{sPar}:{sPar+1}]
        v_mov_b32 v{T+1}, 0x0c0c0302
        v_mov_b32 v{T+2}, 0x03020c0c
        v_cndmask_b32 v{T+1}, v{T+1}, v{T+2}, s[{sPar}:{sPar+1}]
        v_mov_b32 v{T+2}, 0x0c0c0c0c
        v_cndmask_b32 v{vSel}, v{T}, v{T+2}, s[{sM0}:{sM0+1}]
        v_cndmask_b32 v{vSel+1}, v{T+1}, v{T+2}, s[{sM1}:{sM1+1}]
        v_cndmask_b32 v{vSel+2}, v{T+2}, v{T}, s[{sM0}:{sM0+1}]
        v_cndmask_b32 v{vSel+3}, v{T+2}, v{T+1}, s[{sM1}:{sM1+1}]
        s_lshr_b32 s{sT0}, s{sC}, 1
        s_lshl_b32 s{sT3}, s{sT0}, 13
        s_add_u32 s{sO0+3}, s{sT3}, {G_OFF}
        s_mul_i32 s{sT0}, s{sT0}, 5
        s_add_u32 s{sT0}, s{sT0}, 54
        s_and_b32 s{sT1}, s{sC}, 1
        s_mul_i32 s{sT2}, s{sT1}, 3
        s_add_u32 s{sT2}, s{sT2}, s{sT0}
        s_lshl_b32 s{sE+1}, s{sT2}, 17
        s_add_u32 s{sE+2}, s{sE+1}, {A2_STEP}
        s_add_u32 s{sT0}, s{sT0}, 2
        s_lshl_b32 s{sT0}, s{sT0}, 17
        s_lshl_b32 s{sT2}, s{sT1}, 9
        s_add_u32 s{sE}, s{sT0}, s{sT2}
        s_or_b32 s{sT1}, s{sRB}, s{sWV}
        s_cmp_eq_u32 s{sT1}, 0
        s_cselect_b32 s{sE+3}, 0xff800000, 0
        s_mov_b32 s{sE+4}, {f2h(1.4426950408889634 * 20 ** -0.5)}
        s_mul_i32 s{sT0}, s{sRB}, 11
        s_mul_i32 s{sT1}, s{sWV}, 3
        s_add_u32 s{sT0}, s{sT0}, s{sT1}
        s_sub_u32 s{sT0}, s{sT0}, 1
        """)
        for T_ in range(3):
            e(f"s_add_u32 s{sT1}, s{sT0}, {T_}\ns_lshl_b32 s{sT2}, s{sT1}, 10\ns_lshl_b32 s{sT3}, s{sT1}, 6")
            e(f"s_cmp_lt_u32 s{sT1}, 128\ns_cselect_b32 s{sE+5+T_}, s{sT2}, {OOB}\ns_cselect_b32 s{sO0+T_}, s{sT3}, {OOB}")
        e(f"s_cmp_eq_u32 s{sWV}, 0\ns_cselect_b32 s{sE+5}, {OOB}, s{sE+5}\ns_cselect_b32 s{sO0}, {OOB}, s{sO0}")
        e(f"s_bitcmp1_b32 s{sC}, 0\n" + "\n".join(f"s_cselect_b32 s{sO0+k}, {OOB}, s{sO0+k}" for k in range(3)))
    @staticmethod
    def cvt2(d, a): return [f"v_cvt_pk_bf16_f32 v{d}, v{a}, v{a+1}", f"v_cvt_pk_bf16_f32 v{d+1}, v{a+2}, v{a+3}"]
    def att_lastloop(self, sch):
        L = self.vLane; g0 = self.step0[19]
        EX = self.XOFF + self.XSLOT
        pre = [f"s_add_u32 s{sT0}, s{sWV}, 1", f"s_mul_i32 s{sT0}, s{sT0}, 5120", f"s_add_u32 s{sT0}, s{sT0}, {EX}",
               f"v_lshlrev_b32 v{self.vDx+1}, 3, v{L}", f"v_add_u32 v{self.vDx}, s{sT0}, v{self.vDx+1}",
               f"v_lshlrev_b32 v{self.vDw}, 4, v{L}", f"v_and_b32 v{self.vDw+1}, 15, v{L}", f"v_lshlrev_b32 v{self.vDw+1}, 2, v{self.vDw+1}"]
        for k, x in enumerate(pre): sch.add('cv', x, early=g0 - 10 + k, dead=g0 + 4)
        for k, acc in enumerate((self.accQ, self.accK)):
            for t in range(5):
                for T in range(3):
                    for x in self.cvt2(acc(T, t), acc(T, t)): sch.add('cv', x, early=g0 + 15*k + 3*t + T + 5, dead=g0 + 40 + 6*k)
    def epilogue_A(self, aux):
        e = self.e; T = self.vT; cvt2 = self.cvt2
        sPar, sM0, sM1, sG1, sG2, sG3 = [sMASK + 2 * i for i in range(6)]
        vSel = T + 4
        Vp = lambda Tt, u: self.accV(0, u) + 6 + 2 * Tt
        Kp = lambda Tt, t: self.accK(Tt, t) if Tt >= 0 else 8 + 2 * t
        Qp = self.accQ
        Sc = {2: 32, 1: 64, 0: 32}; Sp = {k: v + 16 for k, v in Sc.items()}
        vE, vE8 = self.vDx, self.vDx + 1
        def qk(Tt):
            l = []
            for t in range(5):
                for (Sr, kt) in ((Sc[Tt], Tt), (Sp[Tt], Tt - 1)):
                    l.append(f"v_mfma_f32_16x16x4_4b_bf16 v[{Sr}:{Sr+15}], v[{Kp(kt,t)}:{Kp(kt,t)+1}], v[{Qp(Tt,t)}:{Qp(Tt,t)+1}], " + (f"v[{Sr}:{Sr+15}]" if t else "0"))
            return l
        rcv = lambda d, a: cvt2(d, a)[::-1]
        side = [f"ds_write_b64 v{vE}, v[{Kp(2,t)}:{Kp(2,t)+1}] offset:{512*t}" for t in range(5)]
        for u in range(5): side += rcv(Vp(2, u), self.accV(2, u)) + [f"ds_write_b64 v{vE}, v[{Vp(2,u)}:{Vp(2,u)+1}] offset:{2560+512*u}"]
        for Tt in (1, 0):
            for u in range(5): side += cvt2(Vp(Tt, u), self.accV(Tt, u))
        side.append(f"v_subrev_u32 v{vE}, 5120, v{vE}")
        weave(e, qk(2), side)
        e.wait_lg_all(); e("s_barrier")
        for t in range(5): e(f"ds_read_b64 v[{Kp(-1,t)}:{Kp(-1,t)+1}], v{vE} offset:{512*t}")
        for u in range(5): e(f"ds_read_b64 v[{Vp(-1,u)}:{Vp(-1,u)+1}], v{vE} offset:{2560+512*u}")
        gate = []
        for op in range(5):
            for Tt in range(3):
                g = self.accG(Tt)
                gate.append([f"v_mul_f32 v{g}, {f2h(-1.4426950408889634)}, v{g}", f"v_exp_f32 v{g}, v{g}", f"v_add_f32 v{g}, 1.0, v{g}",
                             f"v_rcp_f32 v{g}, v{g}", f"v_sub_f32 v{g+1}, 1.0, v{g}"][op])
        for Tt in range(3):
            gate += [f"s_add_u32 s{sT0}, s{sO0+3}, s{sO0+Tt}", f"buffer_store_dword v{self.accG(Tt)+1}, v{self.vDw+1}, s[{SWS}:{SWS+3}], s{sT0} offen {aux}"]
        weave(e, gate, [])
        def softmax(Tt):
            sc, sp = Sc[Tt], Sp[Tt]; l = []
            m0 = [sc + 4*bb for bb in range(4)]; m1 = [sc + 4*bb + 2 for bb in range(4)]
            for bb in range(4):
                c0, p0 = sc + 4*bb, sp + 4*bb
                l += [f"v_cndmask_b32 v{c0}, v{c0}, v{c0+1}, s[{sPar}:{sPar+1}]", f"v_cndmask_b32 v{c0+2}, v{c0+2}, v{c0+3}, s[{sPar}:{sPar+1}]",
                      f"v_cndmask_b32 v{p0}, v{p0}, v{p0+1}, s[{sPar}:{sPar+1}]", f"v_cndmask_b32 v{p0+2}, v{p0+2}, v{p0+3}, s[{sPar}:{sPar+1}]"]
                if Tt == 1: l += [f"v_add_f32 v{p0}, s{sE+3}, v{p0}", f"v_add_f32 v{p0+2}, s{sE+3}, v{p0+2}"]
            l += [f"v_cndmask_b32 v{sc+4*bb}, v{sp+4*bb}, v{sc+4*bb}, s[{sM0}:{sM0+1}]" for bb in range(4)]
            l += [f"v_cndmask_b32 v{sc+4*bb+2}, v{sp+4*bb+2}, v{sc+4*bb+2}, s[{sM1}:{sM1+1}]" for bb in range(4)]
            for m in (m0, m1): l += [f"v_permlane32_swap_b32 v{m[0]}, v{m[2]}", f"v_permlane32_swap_b32 v{m[1]}, v{m[3]}"]
            for m in (m0, m1): l += [f"v_permlane16_swap_b32 v{m[0]}, v{m[1]}", f"v_permlane16_swap_b32 v{m[2]}, v{m[3]}"]
            vals = m0 + m1; t0, t1 = sp, sp + 1
            l += [f"v_max3_f32 v{t0}, v{vals[0]}, v{vals[1]}, v{vals[2]}", f"v_max3_f32 v{t1}, v{vals[3]}, v{vals[4]}, v{vals[5]}",
                  f"v_max3_f32 v{t0}, v{t0}, v{vals[6]}, v{vals[7]}", f"v_max_f32 v{t0}, v{t0}, v{t1}", f"v_mul_f32 v{t0}, s{sE+4}, v{t0}"]
            l += [f"v_fma_f32 v{x}, v{x}, s{sE+4}, -v{t0}" for x in vals]
            l += [f"v_exp_f32 v{x}, v{x}" for x in vals]
            l += [f"v_add_f32 v{t0}, v{vals[0]}, v{vals[1]}", f"v_add_f32 v{t1}, v{vals[2]}, v{vals[3]}", f"v_add_f32 v{t0+2}, v{vals[4]}, v{vals[5]}",
                  f"v_add_f32 v{t0}, v{t0}, v{t1}", f"v_add_f32 v{t0+3}, v{vals[6]}, v{vals[7]}", f"v_add_f32 v{t0}, v{t0}, v{t0+2}",
                  f"v_add_f32 v{t0}, v{t0}, v{t0+3}", f"v_rcp_f32 v{t0}, v{t0}", f"v_mul_f32 v{t0}, v{t0}, v{self.accG(Tt)}"]
            l += [f"v_mul_f32 v{x}, v{t0}, v{x}" for x in (vals[0], vals[4], vals[2], vals[6], vals[1], vals[5], vals[3], vals[7])]
            P = [sp + 4 + i for i in range(4)]
            l += [f"v_cvt_pk_bf16_f32 v{P[i]}, v{m0[i]}, v{m1[i]}" for i in (0, 2, 1, 3)]
            l += [f"v_permlane32_swap_b32 v{P[0]}, v{P[2]}", f"v_permlane32_swap_b32 v{P[1]}, v{P[3]}",
                  f"v_permlane16_swap_b32 v{P[0]}, v{P[1]}", f"v_permlane16_swap_b32 v{P[2]}, v{P[3]}"]
            for bb in range(4): l += [f"v_perm_b32 v{sc+4*bb+i}, v{P[bb]}, v{P[bb]}, v{vSel+i}" for i in range(4)]
            return l
        O = [self.accQ(1, t) for t in range(5)] + [self.accV(0, u) for u in range(3)]
        def pv(Tt):
            sc = Sc[Tt]
            return ([f"v_mfma_f32_16x16x32_bf16 v[{O[bb]}:{O[bb]+3}], v[{Vp(Tt-1,bb)}:{Vp(Tt-1,bb)+3}], v[{sc+4*bb}:{sc+4*bb+3}], 0" for bb in range(4)] +
                    [f"v_mfma_f32_16x16x32_bf16 v[{O[4+bb]}:{O[4+bb]+3}], v[{Vp(Tt-1,4)}:{Vp(Tt-1,4)+3}], v[{sc+4*bb}:{sc+4*bb+3}], 0" for bb in range(4)])
        def final(Tt):
            sp = Sp[Tt]; o = sp + 8; o4 = sp; l = []
            so = lambda k: f"s_add_u32 s{sT0}, s{sE+k}, s{sE+5+Tt}"
            for bb in range(4): l += cvt2(o + 2*bb, O[bb])
            l[4:4] = [so(1), self._st(f"buffer_store_dwordx4 v[{o}:{o+3}], v{self.vDw}, s[{SWS}:{SWS+3}], s{sT0} offen {aux}")]
            l += [so(2), self._st(f"buffer_store_dwordx4 v[{o+4}:{o+7}], v{self.vDw}, s[{SWS}:{SWS+3}], s{sT0} offen {aux}")]
            for bb in range(4): l += cvt2(o4 + 2*bb, O[4+bb])
            for bb, sg in ((1, sG1), (2, sG2), (3, sG3)):
                l += [f"v_cndmask_b32 v{o4}, v{o4}, v{o4+2*bb}, s[{sg}:{sg+1}]", f"v_cndmask_b32 v{o4+1}, v{o4+1}, v{o4+2*bb+1}, s[{sg}:{sg+1}]"]
            l += [so(0), self._st(f"buffer_store_dwordx2 v[{o4}:{o4+1}], v{vE8}, s[{SWS}:{SWS+3}], s{sT0} offen {aux}")]
            return l
        s2, s1, s0 = softmax(2), softmax(1), softmax(0)
        weave(e, s2, qk(1), start=4, end=len(s2) - 12)
        weave(e, s1[:20], pv(2), start=0, end=16)
        weave(e, final(2), [])
        weave(e, s1[20:], qk(0), start=2, end=len(s1) - 20 - 12)
        weave(e, s0[:20], pv(1), start=0, end=16)
        weave(e, final(1), [])
        weave(e, s0[20:] + pv(0) + final(0), [])
```

```python
from common import *
from sched import *
NH = 14; NSL = 19
E0 = 0; WOFF = WSLOT; XOFF = WOFF + NWS * WSLOT
vH, vY, vTr, vPollH, vPollO = 240, 244, 245, 249, 250
SET1 = WOFF + 3 * WSLOT

class P2:
    def __init__(self, e, opt, tm, ho):
        self.e = e; self.opt = opt; self.tm = tm; self.ho = ho
        self.NT = NT = 8
        self.vLane = 1
        self.vGm = 2; self.vA = 11; self.vRw = 15; self.vRr = 17; self.vO = 18; self.vGaddr = 19; self.vTr2 = 20; self.vT = 24
        self.vAcc = 32
        self.ring = [160 + 4*i for i in range(opt.get('na', 11))]
        self.NA = len(self.ring)
        self.stage_ids = {}; self.base = {}; self.rd_ids = {}; self.a_ids = {}
        self.acc = lambda T, u: self.vAcc + 16 * T + 4 * u
        self.items = ([(i, T) for i in range(NH - 2) for T in range(NT)] + [(i, T) for T in range(NT) for i in (NH - 2, NH - 1)]
                      + [(NH + s, T) for T in range(NT) for s in range(5)])
        self.nload = 0; self.nlab = 0
        self.aux = opt.get('aux', 'sc1')

    def setup_early(self):
        e = self.e; T = self.vT; L = self.vLane
        e(f"""
        s_sub_u32 s{sT1}, s{sI}, 12
        s_mul_i32 s{sT2}, s{sT1}, 13
        s_lshr_b32 s{sT2}, s{sT2}, 6
        s_mul_i32 s{sT3}, s{sT2}, 5
        s_sub_u32 s{sCOL}, s{sT1}, s{sT3}
        s_bitcmp1_b32 s2, 0
        s_cselect_b32 s{sT3}, 5, 0
        s_add_u32 s{sCOL}, s{sCOL}, s{sT3}
        s_bfe_u32 s{sT0}, s2, 0x20001
        s_lshl_b32 s{sT0}, s{sT0}, 2
        s_add_u32 s{sT0}, s{sT0}, s{sT2}
        s_lshl_b32 s{sTOK}, s{sT0}, 3
        s_lshl_b32 s{sT0}, s{sCOL}, 7
        v_lshrrev_b32 v{T}, 3, v{L}
        v_and_b32 v{T+1}, 7, v{L}
        v_lshrrev_b32 v{T+2}, 4, v{L}
        v_lshlrev_b32 v{T+3}, 1, v{T+2}
        v_xor_b32 v{T+1}, v{T+1}, v{T+3}
        v_lshl_add_u32 v{T+1}, v{T+1}, 4, s{sT0}
        v_mul_u32_u24 v{T+3}, 1280, v{T}
        v_add_u32 v{vH}, v{T+3}, v{T+1}
        v_add_u32 v{vH+1}, {1*(8*1280-1024)}, v{vH}
        v_add_u32 v{vH+2}, {2*(8*1280-1024)}, v{vH}
        v_add_u32 v{vH+3}, {3*(8*1280-1024)}, v{vH}
        v_lshrrev_b32 v{T+3}, 2, v{T}
        v_mul_u32_u24 v{T+3}, {16*1280}, v{T+3}
        v_add_u32 v{vY}, v{T+3}, v{vH}
        v_lshrrev_b32 v{T}, 2, v{L}
        v_lshrrev_b32 v{T+1}, 1, v{T}
        v_and_b32 v{T+1}, 3, v{T+1}
        v_and_b32 v{T+2}, 3, v{L}
        v_lshlrev_b32 v{T+2}, 3, v{T+2}
        v_lshl_add_u32 v{T+2}, v{T}, 7, v{T+2}
        v_add_u32 v{T+2}, s{sM2}, v{T+2}
        """)
        for u in range(4):
            e(f"v_xor_b32 v{T+3}, {u}, v{T+1}\nv_lshl_add_u32 v{vTr+u}, v{T+3}, 5, v{T+2}")
        e(f"""
        s_and_b32 s{sT0}, s{sI}, {1 if self.opt.get('rot2', 1) else 0}
        s_lshl_b32 s{sT1}, s{sWV}, 1
        s_add_u32 s{sT1}, s{sT1}, s{sT0}
        s_mul_i32 s{sK2}, s{sT1}, {7*32*1280}
        s_mul_i32 s{sKA}, s{sT1}, {7*A2_STEP}
        s_mul_i32 s{sD2}, s{sT0}, {-14*32*1280}
        s_add_u32 s{sD2}, s{sD2}, {32*1280}
        s_mul_i32 s{sDA}, s{sT0}, {-14*A2_STEP}
        s_add_u32 s{sDA}, s{sDA}, {A2_STEP}
        s_mul_i32 s{sKO}, s{sWV}, {160*1280}
        s_mul_i32 s{sO0}, s{sWV}, {5*A2_STEP}
        s_add_u32 s{sO0}, s{sO0}, {54*A2_STEP}
        """)
        for s in range(1, 5): e(f"s_add_u32 s{sO0+s}, s{sO0}, {s*A2_STEP}")
        e(f"""
        s_lshr_b32 s{sT0}, s{sTOK}, 3
        s_mul_i32 s{sT0}, s{sT0}, {9*128}
        s_add_u32 s{sT0}, s{sT0}, {FLAG_OFF + 128*128}
        v_lshrrev_b32 v{T}, 2, v{L}
        v_min_u32 v{T}, 8, v{T}
        v_and_b32 v{T+1}, 3, v{L}
        v_lshlrev_b32 v{T+1}, 2, v{T+1}
        v_lshl_add_u32 v{T}, v{T}, 7, v{T+1}
        v_add_u32 v{vPollH}, s{sT0}, v{T}
        s_mul_i32 s{sT0}, s{sTOK}, 187
        s_lshr_b32 s{sT0}, s{sT0}, 11
        s_add_u32 s{sT1}, s{sTOK}, 7
        s_mul_i32 s{sT1}, s{sT1}, 187
        s_lshr_b32 s{sT1}, s{sT1}, 11
        s_sub_u32 s{sT1}, s{sT1}, s{sT0}
        v_bfe_u32 v{T}, v{L}, 3, 1
        v_mul_u32_u24 v{T}, s{sT1}, v{T}
        v_add_u32 v{T}, s{sT0}, v{T}
        v_bfe_u32 v{T+2}, v{L}, 2, 1
        v_lshl_add_u32 v{T}, v{T}, 3, v{T+2}
        s_lshl_b32 s{sT0}, s{sWV}, 8
        s_add_u32 s{sT0}, s{sT0}, {FLAG_OFF}
        v_add_u32 v{T+1}, s{sT0}, v{T+1}
        v_lshl_add_u32 v{vPollO}, v{T}, 7, v{T+1}
        v_and_b32 v{T+2}, 15, v{L}
        v_lshlrev_b32 v{T+2}, 4, v{T+2}
        """)
        self.vCnt = T + 2

    def setup_late(self):
        T = self.vT; L = self.vLane
        l = f"""
        s_lshl_b32 s{sT0}, s{sTOK}, 10
        v_lshl_add_u32 v{self.vA}, v{L}, 4, s{sT0}
        v_add_u32 v{self.vA+1}, 4096, v{self.vA}
        v_lshl_add_u32 v{self.vA+2}, v{L}, 3, s{sT0}
        v_add_u32 v{self.vA+3}, 4096, v{self.vA+2}
        v_and_b32 v{T}, 15, v{L}
        v_lshrrev_b32 v{T+1}, 4, v{L}
        v_and_b32 v{T+2}, 7, v{L}
        v_xor_b32 v{T+2}, v{T+2}, v{T+1}
        v_lshl_add_u32 v{T+3}, v{T}, 8, s{sM2}
        v_lshl_add_u32 v{self.vRw}, v{T+2}, 4, v{T+3}
        v_xor_b32 v{T+2}, 4, v{T+2}
        v_lshl_add_u32 v{self.vRw+1}, v{T+2}, 4, v{T+3}
        s_lshl_b32 s{sT0}, s{sWV}, 2
        v_add_u32 v{T+2}, s{sT0}, v{T+1}
        v_and_b32 v{T+3}, 7, v{T+2}
        v_xor_b32 v{T+3}, v{T+3}, v{T}
        v_lshlrev_b32 v{T+3}, 4, v{T+3}
        v_lshl_add_u32 v{self.vRr}, v{T+2}, 8, v{T+3}
        s_lshl_b32 s{sT0}, s{sTOK}, 4
        v_add_u32 v{T+2}, s{sT0}, v{T+2}
        v_mul_u32_u24 v{T+2}, 1280, v{T+2}
        s_lshl_b32 s{sT0}, s{sCOL}, 7
        v_lshl_add_u32 v{T+3}, v{T}, 3, s{sT0}
        v_add_u32 v{self.vO}, v{T+2}, v{T+3}
        s_lshl_b32 s{sT0}, s{sTOK}, 6
        s_lshl_b32 s{sT1}, s{sWV}, 13
        s_add_u32 s{sT0}, s{sT0}, s{sT1}
        s_add_u32 s{sT0}, s{sT0}, {G_OFF}
        v_lshl_add_u32 v{self.vGaddr}, v{T}, 2, s{sT0}
        """.strip().split('\n')
        return [x.strip() for x in l]
    def setup_tr2(self):
        return [f"v_add_u32 v{self.vTr2+u}, {SET1}, v{vTr+u}" for u in range(4)]

    def stage_dma(self, i, base):
        e = self.e; out = []
        prev = [j for j, b in self.base.items() if b == base]
        self.base[i] = base
        def S(x): return (lambda: e(x))
        def Dm(x):
            def f(): self.stage_ids[i] = e(x)
            f.cost = ['buffer_x']; f.dma = 1; f.sep = 1
            return f
        if prev: out.append(lambda j=max(prev): e.wait_lg(self.rd_ids[j]))
        out.append(S(f"s_add_u32 m0, s{sM2}, {base}"))
        if i < NH:
            if i > 0: out.append(S(f"s_add_u32 s{sK2}, s{sK2}, " + (f"s{sD2}" if i == 7 else f"{32*1280}")))
            for p in range(4): out.append(Dm(f"buffer_load_dwordx4 v{vH+p}, s[{SW2}:{SW2+3}], s{sK2} offen offset:{p*1024} lds"))
        else:
            s = i - NH
            if s != 2:
                rb = {0: 0, 1: 40, 3: 80, 4: 120}[s]
                out.append(S(f"s_add_u32 s{sK2}, s{sKO}, {rb*1280}"))
                for p in range(4):
                    if p == 2: out.append(S(f"s_add_u32 s{sK2}, s{sK2}, {4*1280}"))
                    out.append(Dm(f"buffer_load_dwordx4 v{vH+p}, s[{SWO}:{SWO+3}], s{sK2} offen offset:{p*1024} lds"))
            else:
                for p in range(4):
                    out.append(S(f"s_add_u32 s{sK2}, s{sKO}, {(80*(p>>1) + 40*(p&1) + 16)*1280 - 1024*p}"))
                    out.append(Dm(f"buffer_load_dwordx4 v{vY}, s[{SWO}:{SWO+3}], s{sK2} offen offset:{p*1024} lds"))
        return out
    def wreg(self, i, u): return 16 * (i % 16) + 4 * u
    def stage_read(self, i):
        e = self.e
        base = self.base[i]
        rb, off = (vTr, base) if base < SET1 else (self.vTr2, base - SET1)
        assert off + 2048 < 65536
        out = [lambda: e.wait_vm(self.stage_ids[i])]
        for u in range(4):
            for h in range(2):
                d = self.wreg(i, u) + 2 * h
                x = f"ds_read_b64_tr_b16 a[{d}:{d+1}], v{rb+u} offset:{off + 2048*h}"
                def f(x=x): self.rd_ids[i] = e(x)
                f.cost = [x]
                out.append(f)
        return out

    def a_load(self, n):
        e = self.e; aux = self.aux
        i, T = self.items[n]
        d = self.ring[n % self.NA]
        hi = 1 if T >= 4 else 0; off = (T - 4 * hi) * 1024
        out = []
        def Dm(x):
            def f(): self.a_ids[n] = e(x)
            f.cost = ['buffer_x']
            return f
        if i < NH:
            if T == 0 and 0 < i < NH - 1: out.append(lambda: e(f"s_add_u32 s{sKA}, s{sKA}, " + (f"s{sDA}" if i == 7 else f"{A2_STEP}")))
            if T == 0 and i == NH - 1: out.append(lambda: e(f"s_add_u32 s{sKB}, s{sKA}, {A2_STEP}"))
            sk = sKB if i == NH - 1 else sKA
            out.append(Dm(f"buffer_load_dwordx4 v[{d}:{d+3}], v{self.vA+hi}, s[{SH}:{SH+3}], s{sk} offen offset:{off} {aux}"))
        else:
            s = i - NH; so = sO0 + s
            if s != 2: out.append(Dm(f"buffer_load_dwordx4 v[{d}:{d+3}], v{self.vA+hi}, s[{SWS}:{SWS+3}], s{so} offen offset:{off} {aux}"))
            else:
                out.append(Dm(f"buffer_load_dwordx2 v[{d}:{d+1}], v{self.vA+2+hi}, s[{SWS}:{SWS+3}], s{so} offen offset:{off} {aux}"))
                out.append(Dm(f"buffer_load_dwordx2 v[{d+2}:{d+3}], v{self.vA+2+hi}, s[{SWS}:{SWS+3}], s{so} offen offset:{off+512} {aux}"))
        return out
    def first_loads(self, k=None):
        out = []
        k = self.NA if k is None else k
        while self.nload < k:
            out += self.a_load(self.nload); self.nload += 1
        return out

    def mainloop(self, n_read, n_dma, free_bases, extra=None):
        e = self.e; NT = self.NT; items = self.items; NA = self.NA
        sch = Sched(e)
        first = {}; last = {}
        for n, (i, T) in enumerate(items):
            r = self.ring[n % NA]
            for u in range(4):
                a = self.acc(T, u); w = self.wreg(i, u)
                c = f"v[{a}:{a+3}]" if i > 0 else "0"
                k = sch.main(f"v_mfma_f32_16x16x32_bf16 v[{a}:{a+3}], a[{w}:{w+3}], v[{r}:{r+3}], {c}")
                first.setdefault(n, k); last[n] = k
        nm = len(sch.mains)
        first_o = NH * NT
        step = [first[i * NT] for i in range(NH - 1)] + [first[first_o]]
        otile = [first[first_o + 5 * T] for T in range(NT)] + [nm]
        self.step = step
        for n in range(self.nload, len(items)):
            g = last[n - NA] if n >= NA else -1
            if n == first_o - self.opt.get('gearly', 2) - self.opt.get('pollead', 5): sch.add('a', self.ho.poll_issue(vPollO), early=g, dead=g + 2)
            if n == first_o - self.opt.get('gearly', 2):
                sch.add('a', self.ho.poll_check(vPollO, 1), early=g, dead=g + 1)
                for T in range(NT):
                    sch.add('a', f"buffer_load_dword v{self.vGm+T}, v{self.vGaddr}, s[{SWS}:{SWS+3}], 0 offen offset:{64*T} {self.aux}", early=g, dead=g + 3)
            for fn in self.a_load(n): sch.add('a', fn, early=g, dead=g + 2)
        for n in range(1, len(items)):
            def w(n=n):
                if n in self.a_ids: e.wait_vm(self.a_ids[n])
            sch.add('aw', w, early=first[n] - 1, dead=first[n] - 1)
        free = list(free_bases); nd = n_dma; nr = n_read
        rem = NSL - n_read
        for i in range(NH - 1):
            want = min(NSL, n_read + -(-(i + 1) * rem // (NH - 2)), i + 16)
            if i == NH - 3: want = max(want, NH)
            l = []
            while nd < NSL and free:
                l += self.stage_dma(nd, free.pop(0)); nd += 1
            while nr < min(want, nd):
                l += self.stage_read(nr); free.append(self.base[nr]); nr += 1
            assert nr >= i + 2, (i, nr)
            span = step[i + 1] - step[i]
            for k, fn in enumerate(l):
                pos = step[i] + k * span // len(l)
                sch.add('stg', fn, early=pos, dead=min(pos + 2, step[i + 1] - 1))
        assert nr == NSL
        for T in range(NT):
            lo = last[(NH - 2) * NT + 2 * T + 1] + 4
            lo = max(lo, otile[0] - self.opt.get('sclate', 20) + 10 * T)
            for k in range(16):
                pos = lo + k // 2
                sch.add('sc', f"v_mul_f32 v{self.acc(T,0)+k}, v{self.vGm+T}, v{self.acc(T,0)+k}", early=pos, dead=min(pos + 3, otile[T] - 2))
        def writes(T):
            b = (T & 3) * WSLOT
            l = [f"ds_write_b128 v{self.vRw + (u & 1)}, v[{self.acc(T,u)}:{self.acc(T,u)+3}] offset:{b + 128*(u>>1)}" for u in range(4)]
            if T == 4: l = [f"v_add_u32 v{self.vRw}, {4*WSLOT}, v{self.vRw}", f"v_add_u32 v{self.vRw+1}, {4*WSLOT}, v{self.vRw+1}"] + l
            return l
        def bar():
            e.wait_lg_all(); e("s_barrier")
        bar.cost = ['s_x', 's_barrier']
        def reduce_(T, R):
            b = (T & 3) * WSLOT
            l = [f"ds_read_b128 v[{R+4*w}:{R+4*w+3}], v{self.vRr} offset:{b + 4*WBLK*w}" for w in range(4)]
            if T == 4: l = [f"v_add_u32 v{self.vRr}, {4*WSLOT}, v{self.vRr}"] + l
            add = [f"v_add_f32 v{R+k}, v{R+k}, v{R+4+k}" for k in range(4)] + [f"v_add_f32 v{R+8+k}, v{R+8+k}, v{R+12+k}" for k in range(4)]
            add += [f"v_add_f32 v{R+k}, v{R+k}, v{R+8+k}" for k in range(4)]
            add += [f"v_cvt_pk_bf16_f32 v{R}, v{R}, v{R+1}", f"v_cvt_pk_bf16_f32 v{R+1}, v{R+2}, v{R+3}"]
            if T > 0: add.append(f"v_add_u32 v{self.vO}, {16*1280}, v{self.vO}")
            add.append(f"buffer_store_dwordx2 v[{R}:{R+1}], v{self.vO}, s[{SOUT}:{SOUT+3}], 0 offen {self.opt.get('outaux', 'sc1')}")
            return l, add
        wp = self.opt.get('wpos', [4, 8, 12, 16])
        bl = self.opt.get('rbar', [[78, 3], [138, 6]])
        g0 = otile[0]; ndone = 0; bi = 0
        for T in range(1, NT):
            for k, x in enumerate(writes(T - 1)):
                k = max(0, k - (2 if T - 1 == 4 else 0))
                pos = otile[T] + wp[k]
                while bi < len(bl) and g0 + bl[bi][0] <= pos:
                    sch.add('red', bar, early=g0 + bl[bi][0], dead=g0 + bl[bi][0]); bi += 1
                sch.add('red', x, early=pos, dead=pos)
        while bi < len(bl):
            sch.add('red', bar, early=g0 + bl[bi][0], dead=g0 + bl[bi][0]); bi += 1
        for k, (off, upto) in enumerate(bl):
            assert g0 + off > otile[upto] + wp[3]
            lo = g0 + off + 1; hi = (g0 + bl[k + 1][0] if k + 1 < len(bl) else nm) - 1
            l = []
            for T in range(ndone, upto):
                rd, add = reduce_(T, self.acc(T, 0))
                l.append((rd, add))
            seq = list(l[0][0])
            for j in range(len(l)): seq += (list(l[j + 1][0]) if j + 1 < len(l) else []) + list(l[j][1])
            for j, x in enumerate(seq):
                pos = lo + j * (hi - lo) // len(seq)
                sch.add('red2', x, early=pos, dead=min(pos + 2, nm - 1))
            ndone = upto
        if self.tm.on:
            sch.add('ts', self.tm.stamp, early=step[7], dead=step[7]); sch.add('ts', self.tm.stamp, early=otile[0], dead=otile[0])
        if extra: extra(sch)
        sch.run(); self.over = sch.over
        self.tm.stamp()
        run = lambda l: [x() if callable(x) else e(x) for x in l]
        run(writes(NT - 1)); bar()
        l = [reduce_(T, self.acc(T, 0)) for T in range(ndone, NT)]
        for rd, add in l: run(rd)
        for rd, add in l: run(add)
```

```python
import sys, json
from common import *
from p1 import P1
from p2 import P2, NSL, E0, WOFF, XOFF, vPollH

HDR = open('cdna_kernels/' + KN + '.s.ref').read().split('; Override launch')[0]
def srd(e, base, nbytes): e(f"s_mov_b32 s{base+2}, {nbytes}\ns_mov_b32 s{base+3}, 0x20000")
WB = lambda st: WOFF + (st % NWS) * WSLOT
XB = lambda k: XOFF + k * WSLOT

def entry(e, opt, tm):
    e(f"s_cmp_ge_u32 s2, 256\ns_cbranch_scc1 L_done")
    for base, off in [(SX, 0), (SW1, 32), (SWQ, 8)]: e(f"s_load_dwordx2 s[{base}:{base+1}], s[0:1], {off}")
    e(f"s_getpc_b64 s[6:7]\nv_min_u32 v24, 15, v0\nv_lshlrev_b32 v24, 7, v24")
    e.touch(f"global_load_dword v23, v24, s[6:7]")
    e(f"s_lshr_b32 s{sI}, s2, 3\ns_lshl_b32 s3, s{sI}, 11\nv_add_u32 v25, s3, v24")
    e.touch(f"global_load_dword v23, v25, s[6:7]")
    for base, off in [(SWS, 72), (SW2, 40), (SWO, 16), (SOUT, 56), (SDBG, 64), (SGATE, 48)]: e(f"s_load_dwordx2 s[{base}:{base+1}], s[0:1], {off}")
    e(f"""
    v_lshrrev_b32 v2, 6, v0
    v_and_b32 v1, 63, v0
    s_and_b32 s{sT0}, s2, 7
    v_readfirstlane_b32 s{sWV}, v2
    """)
    tm.init()
    srd(e, SX, S*D*2)
    e(f"s_cmp_lt_u32 s{sI}, 12\ns_cbranch_scc1 L_A\ns_cmp_ge_u32 s{sI}, 30\ns_cbranch_scc1 L_P")

def rest_srds(e, role):
    srd(e, SWS, WS_BYTES); srd(e, SDBG, 256)
    if role == 'A': srd(e, SGATE, 1280); srd(e, SW1, 640*1728*2); srd(e, SW2, 1728*640*2); srd(e, SWO, 640*640*2)
    else:
        srd(e, SW2, 1728*640*2); srd(e, SWO, 640*640*2); srd(e, SOUT, S*D*2); srd(e, SH, 54*A2_STEP)
        e(f"s_mov_b32 s{SH}, s{SWS}\ns_mov_b32 s{SH+1}, s{SWS+1}")

def flag_setup(e, p, line0, ncol):
    e(f"""
    s_mul_i32 s{sT0}, s{sRB}, {ncol}
    s_add_u32 s{sT0}, s{sT0}, s{sC}
    s_lshl_b32 s{sT0}, s{sT0}, 5
    s_add_u32 s{sT0}, s{sT0}, s{sWV}
    s_lshl_b32 s{sT0}, s{sT0}, 2
    s_add_u32 s{sT0}, s{sT0}, {FLAG_OFF + 128*line0}
    v_mov_b32 v{p.vFlag}, {OOB}
    v_mov_b32 v{p.vPD}, 0
    v_writelane_b32 v{p.vFlag}, s{sT0}, 0
    buffer_store_dword v{p.vPD}, v{p.vFlag}, s[{SWS}:{SWS+3}], 0 offen sc1
    """)
def count_setup(e, T):
    e(f"""
    s_and_b32 s{sT0}, s2, 15
    s_lshl_b32 s{sT0}, s{sT0}, 4
    s_cmp_eq_u32 s{sWV}, 0
    s_cselect_b32 s{sT0}, s{sT0}, {OOB}
    v_mov_b32 v{T}, {OOB}
    v_mov_b32 v{T+1}, 1
    v_writelane_b32 v{T}, s{sT0}, 0
    ATOMIC
    """)
def add_late(e, sch, p, late_l, hi):
    lo = p.step0[1]; T = p.vT
    for k, x in enumerate(late_l):
        pos = lo + k * (hi - lo) // len(late_l)
        if x == ['ATOMIC']:
            sch.add('cnt', f"buffer_atomic_add v{T+1}, v{T}, s[{SDBG}:{SDBG+3}], 0 offen sc1", early=p.bpos[2] + 1, dead=p.bpos[2] + 6, after=[p.bars[2]])
        else: sch.add('cnt', (lambda x=x: e('\n'.join(x))), early=pos, dead=max(pos, p.bpos[2] + 7) + 3, cost=x)

def role_A(e, opt, tm):
    run = lambda l: [x() if callable(x) else e(x) for x in l]
    p = P1(e, 'A', opt, tm); aux = 'sc1'; T = p.vT
    ho = Handoff(e, 'A', p.vPD, p.vFlag, T)
    e(f"""
    s_lshr_b32 s{sRB}, s{sT0}, 2
    s_mul_i32 s{sRB}, s{sRB}, 6
    s_and_b32 s{sC}, s{sT0}, 3
    s_lshl_b32 s{sC}, s{sC}, 1
    s_add_u32 s{sRB}, s{sRB}, s{sI}
    s_cmp_ge_u32 s{sI}, 6
    s_cselect_b32 s{sT1}, 6, 0
    s_cselect_b32 s{sT2}, 1, 0
    s_sub_u32 s{sRB}, s{sRB}, s{sT1}
    s_add_u32 s{sC}, s{sC}, s{sT2}
    s_mul_i32 s{sPS}, s{sT0}, 12
    """)
    srd(e, SWQ, 640*1920*2); rest_srds(e, 'A')
    p.setup_x(); h0, h1 = p.dma_x(0); run(h0)
    p.setup_w(); run(p.dma_w(0)); run(h1); p.dma_gate()
    p.dma_ids[('w', 0)] = p.dma_ids[('x', 0)] = e.vm[-1]
    flag_setup(e, p, 0, 8)
    e(f"""
    s_add_u32 s{sPS}, s{sPS}, s{sI}
    s_lshl_b32 s{sPS}, s{sPS}, 2
    s_add_u32 s{sKB}, s{sPS}, s{sWV}
    s_lshl_b32 s{sT0}, s{sKB}, 11
    v_min_u32 v{p.vPw}, 15, v1
    v_lshl_add_u32 v{p.vPw}, v{p.vPw}, 7, s{sT0}
    v_min_u32 v{T}, 23, v1
    v_lshrrev_b32 v{T+1}, 2, v{T}
    v_and_b32 v{T}, 3, v{T}
    v_mul_u32_u24 v{T+1}, 1280, v{T+1}
    s_mul_i32 s{sT0}, s{sKB}, {6*1280}
    v_lshl_add_u32 v{T}, v{T}, 7, s{sT0}
    v_add_u32 v{p.vPx}, v{T}, v{T+1}
    """)
    def site(b):
        out = []
        what = [(p.vPx, SX, 128 * (2 + 4*b)), (p.vPw, SW1, (184 + 228*b) * 3456)]
        if b == 2:
            what = [(p.vPw, SW2, 0), (p.vPx, SWO, 0)]
            out += [f"s_mul_i32 s{sPS}, s{sKB}, {62*128}", f"v_min_u32 v{p.vPw}, 61, v1", f"v_lshl_add_u32 v{p.vPw}, v{p.vPw}, 7, s{sPS}", f"v_subrev_u32 v{p.vPx}, {1728*1280}, v{p.vPw}"]
        for v, srd_, off in what:
            out.append(lambda off=off: e(f"s_mov_b32 s{sPS}, {off}"))
            def f(v=v, srd_=srd_): e.touch(f"buffer_load_dword v{p.vDUM}, v{v}, s[{srd_}:{srd_+3}], s{sPS} offen")
            f.cost = ['buffer_x']; f.sep = 1
            out.append(f)
        return out
    pfs = opt.get('pfs', [-1, 1] if opt.get('w2F', 1) else [-1, 1, 4])
    for b, st in enumerate(pfs):
        if st < 0: run(site(b))
    p.setup_reads()
    late_l = scc_groups(e.capture(lambda: (count_setup(e, T), p.att_consts())))
    def extra(sch):
        add_late(e, sch, p, late_l, p.step0[9])
        for b, st in enumerate(pfs):
            if st >= 0:
                for fn in site(b): sch.add('pf', fn, early=p.step0[st] + opt.get('pfo', 1), dead=p.step0[st] + opt.get('pfo', 1) + 14)
        p.att_lastloop(sch)
    p.mainloop(extra); tm.stamp()
    p.epilogue_A(aux); tm.stamp()
    ho.set_flag(p.last_store); tm.stamp()
    tm.flush(T + 1)
    e("s_endpgm")
    print("A over", p.over, file=sys.stderr)

def role_F(e, opt, tm):
    run = lambda l: [x() if callable(x) else e(x) for x in l]
    p = P1(e, 'F', opt, tm); aux = 'sc1'; T = p.vT
    ho = Handoff(e, 'F', p.vPD, p.vFlag, T + 1, opt.get('slp', 1))
    q = P2(e, opt, tm, ho)
    e(f"""
    s_and_b32 s{sT1}, s2, 3
    s_mul_i32 s{sT1}, s{sT1}, 18
    s_and_b32 s{sRB}, s2, 4
    s_add_u32 s{sT1}, s{sT1}, s{sI}
    s_lshl_b32 s{sRB}, s{sRB}, 1
    s_sub_u32 s{sT1}, s{sT1}, 12
    s_lshr_b32 s{sC}, s{sT1}, 3
    s_and_b32 s{sT1}, s{sT1}, 7
    s_add_u32 s{sRB}, s{sRB}, s{sT1}
    """)
    p.setup_x(); h0, h1 = p.dma_x(0); run(h0 + h1[1:])
    srd(e, SW1, 640*1728*2)
    p.setup_w(); run(p.dma_w(0))
    first_id = e.vm[-1]
    rest_srds(e, 'F'); flag_setup(e, p, 128, 9)
    p.dma_ids[('w', 0)] = p.dma_ids[('x', 0)] = first_id
    p.setup_reads()
    def w2_setup():
        e(f"""
        s_sub_u32 s{sT0}, s{sI}, 12
        s_mul_i32 s{sT1}, s{sT0}, 43
        s_lshr_b32 s{sT1}, s{sT1}, 7
        s_mul_i32 s{sT2}, s{sT1}, 3
        s_sub_u32 s{sPS+1}, s{sT0}, s{sT2}
        s_and_b32 s{sT0}, s2, 7
        s_mul_i32 s{sT0}, s{sT0}, 6
        s_add_u32 s{sT0}, s{sT0}, s{sT1}
        s_lshl_b32 s{sT0}, s{sT0}, 2
        s_add_u32 s{sT0}, s{sT0}, s{sWV}
        s_mul_i32 s{sT1}, s{sPS+1}, 192
        s_add_u32 s{sT0}, s{sT0}, s{sT1}
        s_mul_i32 s{sT0}, s{sT0}, {42*128}
        v_min_u32 v92, 41, v1
        v_lshl_add_u32 v92, v92, 7, s{sT0}
        v_subrev_u32 v93, {1728*1280}, v92
        """)
    W2F = opt.get('w2F', 1)
    late_l = scc_groups(e.capture(lambda: (count_setup(e, T), W2F and w2_setup(), p.ffn_consts(), q.setup_early())))
    bases0 = [E0, WB(15), WB(16), WB(17)]
    def extra(sch):
        add_late(e, sch, p, late_l, p.step0[12])
        for g_, st in enumerate(opt.get('pfs2', [6, 9, 12]) if W2F else []):
            sch.add('pf', (lambda g_=g_: e(f"s_cmp_eq_u32 s{sPS+1}, {g_}\ns_cselect_b32 s{sPS}, 0, {OOB}")), early=p.step0[st] + 1, dead=p.step0[st] + 10, cost=['s_x', 's_x'])
            for v, srd_ in ((92, SW2), (93, SWO)):
                def f(v=v, srd_=srd_): e.touch(f"buffer_load_dword v{p.vDUM}, v{v}, s[{srd_}:{srd_+3}], s{sPS} offen")
                f.sep = 1
                sch.add('pf', f, early=p.step0[st] + 1, dead=p.step0[st] + 12, cost=['buffer_x'])
        sch.add('cnt', ho.poll_issue(q.vCnt, SDBG), early=p.step0[14], dead=p.step0[14] + 6)
        sch.add('cnt', ho.poll_check(q.vCnt, 15, SDBG), early=p.step0[17], dead=p.step0[17] + 6)
        for k, st in enumerate([17, 17, 18, 19]):
            fns = q.stage_dma(k, bases0[k])
            lo = p.bpos[st] + 1; span = p.bpos[st + 1] - lo
            if st == 17: span //= 2; lo += span * k
            for j, fn in enumerate(fns):
                pos = lo + j * span // len(fns)
                sch.add('dma', fn, early=pos, dead=pos + 2, after=[p.bars[st]])
        p.ffn_lastloop(sch, aux)
    p.mainloop(extra); tm.stamp()
    run(p.ffn_rest); tm.stamp()
    n_join = tm.n
    e.raw("L_post:")
    e("s_barrier")
    run(q.setup_tr2())
    free = [WB(18), WB(19), XB(0), XB(1)]; nd = 4
    for k in range(opt.get('nflag', 2)): run(q.stage_dma(nd, free.pop(0))); nd += 1
    run(q.setup_late())
    for i in range(4): run(q.stage_read(i))
    ho.set_flag(p.last_store); tm.stamp()
    free += bases0; nr = 4
    npoll = opt.get('npoll', NSL - 2)
    while nd < NSL:
        if nd == npoll: ho.poll_issue(vPollH)()
        if not free:
            run(q.stage_read(nr)); free.append(q.base[nr]); nr += 1
        run(q.stage_dma(nd, free.pop(0))); nd += 1
    while nr < 12: run(q.stage_read(nr)); nr += 1
    ho.poll_check(vPollH, 1)(); tm.stamp()
    weave(e, q.first_loads(), [x for i in range(nr, 16) for x in q.stage_read(i)], start=8)
    q.mainloop(16, NSL, [])
    tm.stamp()
    if tm.on: e.wait_vm_all(); tm.stamp(); tm.flush(T)
    e("s_endpgm")
    print("F over p1", p.over, "p2", q.over, file=sys.stderr)
    return n_join

def role_P(e, opt, tm, n_join):
    run = lambda l: [x() if callable(x) else e(x) for x in l]
    p = P1(e, 'F', opt, tm); T = p.vT
    ho = Handoff(e, 'P', p.vPD, p.vFlag, T + 1, opt.get('slpP', 32))
    q = P2(e, opt, tm, ho)
    srd(e, SW1, 640*1728*2); srd(e, SWQ, 640*1920*2)
    e(f"""
    s_lshl_b32 s{sT0}, s{sT0}, 1
    s_sub_u32 s{sT1}, s{sI}, 30
    s_add_u32 s{sT0}, s{sT0}, s{sT1}
    s_lshl_b32 s{sT0}, s{sT0}, 2
    s_add_u32 s{sT0}, s{sT0}, s{sWV}
    s_mul_i32 s{sT2}, s{sT0}, {32*1280}
    s_add_u32 s{sT2}, s{sT2}, 128
    v_min_u32 v{T}, 31, v1
    v_mul_u32_u24 v{T}, 1280, v{T}
    s_lshl_b32 s{sT3}, s{sT0}, 13
    s_add_u32 s{sT3}, s{sT3}, {32*3456}
    v_lshlrev_b32 v{T+1}, 7, v1
    """)
    e.touch(f"buffer_load_dword v{p.vDUM}, v{T+1}, s[{SW1}:{SW1+3}], s{sT3} offen")
    e.touch(f"buffer_load_dword v{p.vDUM}, v{T}, s[{SX}:{SX+3}], s{sT2} offen")
    e(f"""
    s_lshl_b32 s{sT1}, s{sT1}, 2
    s_add_u32 s{sT1}, s{sT1}, s{sWV}
    s_mul_i32 s{sT1}, s{sT1}, {7*3840}
    s_and_b32 s{sT2}, s2, 3
    s_mul_i32 s{sT2}, s{sT2}, 320
    s_and_b32 s{sT2}, s{sT2}, 0xffffff80
    s_add_u32 s{sT1}, s{sT1}, s{sT2}
    s_add_u32 s{sT1}, s{sT1}, {opt.get('prow0', 32)*3840}
    v_min_u32 v{T}, 62, v1
    v_mul_u32_u24 v{T+1}, 57, v{T}
    v_lshrrev_b32 v{T+1}, 9, v{T+1}
    v_mad_i32_i24 v{T}, v{T+1}, -9, v{T}
    v_mul_u32_u24 v{T+1}, 3840, v{T+1}
    v_mul_u32_u24 v{T+2}, 11, v{T}
    v_lshrrev_b32 v{T+2}, 5, v{T+2}
    v_mul_u32_u24 v{T+2}, 896, v{T+2}
    v_lshl_add_u32 v{T}, v{T}, 7, v{T+2}
    v_add_u32 v{T}, v{T}, v{T+1}
    s_mul_i32 s{sM2}, s{sWV}, {4*WBLK}
    v_mov_b32 v{p.vFlag}, {OOB}
    """)
    rest_srds(e, 'P')
    for k in range(-(-(640 - opt.get('prow0', 32)) // 56)):
        e.touch(f"buffer_load_dword v{p.vDUM}, v{T}, s[{SWQ}:{SWQ+3}], s{sT1} offen")
        e(f"s_add_u32 s{sT1}, s{sT1}, {56*3840}")
        if k >= opt.get('pdep', 1): e.wait_vm(e.vm[-1 - opt.get('pdep', 1)])
    q.setup_early()
    for k, b in enumerate([E0, WB(15), WB(16), WB(17)]): run(q.stage_dma(k, b))
    ho.poll_issue(q.vCnt, SDBG)(); ho.poll_check(q.vCnt, 15, SDBG)()
    e.wait_vm_all()
    while tm.on and tm.n < n_join: tm.stamp()
    e("s_branch L_post")

def fused(opt):
    e = Emit(); k = KN + '_kernel'
    e.raw(kstart(k))
    tm = Stamps(e, opt.get('ts', 0)); tm.first()
    entry(e, opt, tm)
    snap = e.snapshot(); n0 = tm.n
    n_join = role_F(e, opt, tm)
    e.restore(snap); tm.n = n0; e.raw("L_A:"); role_A(e, opt, tm)
    e.restore(snap); tm.n = n0; e.raw("L_P:"); role_P(e, opt, tm, n_join)
    e.raw("L_done:")
    e("s_endpgm")
    print(e.stats, "nops", e.nops, file=sys.stderr)
    txt = HDR + f"; @launch grid=(256,1,1) block=(256,1,1) lds={LDS_END}\n"
    txt += '.amdgcn_target "amdgcn-amd-amdhsa--gfx950"\n.text\n' + e.text()
    txt += f"; padding: the code prefetch above reads 65536 bytes from the entry\n.fill ((65536 + 512 - (. - {k})) / 4), 4, 0xbf810000\n" + kdesc(k)
    return txt

if __name__ == '__main__':
    opt = json.loads(sys.argv[2]) if len(sys.argv) > 2 else {}
    open(sys.argv[1], 'w').write(fused(opt))
```

```python
from common import *
from sched import *
NH = 14; NSL = 19
E0 = 0; WOFF = WSLOT; XOFF = WOFF + NWS * WSLOT
vH, vY, vTr, vPollH, vPollO = 240, 244, 245, 249, 250
SET1 = WOFF + 3 * WSLOT

class P2:
    def __init__(self, e, opt, tm, ho):
        self.e = e; self.opt = opt; self.tm = tm; self.ho = ho
        self.NT = NT = 8
        self.vLane = 1
        self.vGm = 2; self.vA = 11; self.vRw = 15; self.vRr = 17; self.vO = 18; self.vGaddr = 19; self.vTr2 = 20; self.vT = 24
        self.vAcc = 32
        self.ring = [160 + 4*i for i in range(opt.get('na', 12))]
        self.NA = len(self.ring)
        self.stage_ids = {}; self.base = {}; self.rd_ids = {}; self.a_ids = {}
        self.acc = lambda T, u: self.vAcc + 16 * T + 4 * u
        self.items = ([(i, T) for i in range(NH - 2) for T in range(NT)] + [(i, T) for T in range(NT) for i in (NH - 2, NH - 1)]
                      + [(NH + s, T) for T in range(NT) for s in range(5)])
        self.nload = 0; self.nlab = 0
        self.aux = opt.get('aux', 'sc1')

    def setup_early(self):
        e = self.e; T = self.vT; L = self.vLane
        e(f"""
        s_sub_u32 s{sT1}, s{sI}, 12
        s_mul_i32 s{sT2}, s{sT1}, 13
        s_lshr_b32 s{sT2}, s{sT2}, 6
        s_mul_i32 s{sT3}, s{sT2}, 5
        s_sub_u32 s{sCOL}, s{sT1}, s{sT3}
        s_bitcmp1_b32 s2, 0
        s_cselect_b32 s{sT3}, 5, 0
        s_add_u32 s{sCOL}, s{sCOL}, s{sT3}
        s_bfe_u32 s{sT0}, s2, 0x20001
        s_lshl_b32 s{sT0}, s{sT0}, 2
        s_add_u32 s{sT0}, s{sT0}, s{sT2}
        s_lshl_b32 s{sTOK}, s{sT0}, 3
        s_lshl_b32 s{sT0}, s{sCOL}, 7
        v_lshrrev_b32 v{T}, 3, v{L}
        v_and_b32 v{T+1}, 7, v{L}
        v_lshrrev_b32 v{T+2}, 4, v{L}
        v_lshlrev_b32 v{T+3}, 1, v{T+2}
        v_xor_b32 v{T+1}, v{T+1}, v{T+3}
        v_lshl_add_u32 v{T+1}, v{T+1}, 4, s{sT0}
        v_mul_u32_u24 v{T+3}, 1280, v{T}
        v_add_u32 v{vH}, v{T+3}, v{T+1}
        v_add_u32 v{vH+1}, {1*(8*1280-1024)}, v{vH}
        v_add_u32 v{vH+2}, {2*(8*1280-1024)}, v{vH}
        v_add_u32 v{vH+3}, {3*(8*1280-1024)}, v{vH}
        v_lshrrev_b32 v{T+3}, 2, v{T}
        v_mul_u32_u24 v{T+3}, {16*1280}, v{T+3}
        v_add_u32 v{vY}, v{T+3}, v{vH}
        v_lshrrev_b32 v{T}, 2, v{L}
        v_lshrrev_b32 v{T+1}, 1, v{T}
        v_and_b32 v{T+1}, 3, v{T+1}
        v_and_b32 v{T+2}, 3, v{L}
        v_lshlrev_b32 v{T+2}, 3, v{T+2}
        v_lshl_add_u32 v{T+2}, v{T}, 7, v{T+2}
        v_add_u32 v{T+2}, s{sM2}, v{T+2}
        """)
        for u in range(4):
            e(f"v_xor_b32 v{T+3}, {u}, v{T+1}\nv_lshl_add_u32 v{vTr+u}, v{T+3}, 5, v{T+2}")
        e(f"""
        s_and_b32 s{sT0}, s{sI}, {1 if self.opt.get('rot2', 1) else 0}
        s_lshl_b32 s{sT1}, s{sWV}, 1
        s_add_u32 s{sT1}, s{sT1}, s{sT0}
        s_mul_i32 s{sK2}, s{sT1}, {7*32*1280}
        s_mul_i32 s{sKA}, s{sT1}, {7*A2_STEP}
        s_mul_i32 s{sD2}, s{sT0}, {-14*32*1280}
        s_add_u32 s{sD2}, s{sD2}, {32*1280}
        s_mul_i32 s{sDA}, s{sT0}, {-14*A2_STEP}
        s_add_u32 s{sDA}, s{sDA}, {A2_STEP}
        s_mul_i32 s{sKO}, s{sWV}, {160*1280}
        s_mul_i32 s{sO0}, s{sWV}, {5*A2_STEP}
        s_add_u32 s{sO0}, s{sO0}, {54*A2_STEP}
        """)
        for s in range(1, 5): e(f"s_add_u32 s{sO0+s}, s{sO0}, {s*A2_STEP}")
        e(f"""
        s_lshr_b32 s{sT0}, s{sTOK}, 3
        s_mul_i32 s{sT0}, s{sT0}, {9*128}
        s_add_u32 s{sT0}, s{sT0}, {FLAG_OFF + 128*128}
        v_lshrrev_b32 v{T}, 2, v{L}
        v_min_u32 v{T}, 8, v{T}
        v_and_b32 v{T+1}, 3, v{L}
        v_lshlrev_b32 v{T+1}, 2, v{T+1}
        v_lshl_add_u32 v{T}, v{T}, 7, v{T+1}
        v_add_u32 v{vPollH}, s{sT0}, v{T}
        s_mul_i32 s{sT0}, s{sTOK}, 187
        s_lshr_b32 s{sT0}, s{sT0}, 11
        s_add_u32 s{sT1}, s{sTOK}, 7
        s_mul_i32 s{sT1}, s{sT1}, 187
        s_lshr_b32 s{sT1}, s{sT1}, 11
        s_sub_u32 s{sT1}, s{sT1}, s{sT0}
        v_bfe_u32 v{T}, v{L}, 3, 1
        v_mul_u32_u24 v{T}, s{sT1}, v{T}
        v_add_u32 v{T}, s{sT0}, v{T}
        v_bfe_u32 v{T+2}, v{L}, 2, 1
        v_lshl_add_u32 v{T}, v{T}, 3, v{T+2}
        s_lshl_b32 s{sT0}, s{sWV}, 8
        s_add_u32 s{sT0}, s{sT0}, {FLAG_OFF}
        v_add_u32 v{T+1}, s{sT0}, v{T+1}
        v_lshl_add_u32 v{vPollO}, v{T}, 7, v{T+1}
        v_and_b32 v{T+2}, 15, v{L}
        v_lshlrev_b32 v{T+2}, 4, v{T+2}
        """)
        self.vCnt = T + 2

    def setup_late(self):
        T = self.vT; L = self.vLane
        l = f"""
        s_lshl_b32 s{sT0}, s{sTOK}, 10
        v_lshl_add_u32 v{self.vA}, v{L}, 4, s{sT0}
        v_add_u32 v{self.vA+1}, 4096, v{self.vA}
        v_lshl_add_u32 v{self.vA+2}, v{L}, 3, s{sT0}
        v_add_u32 v{self.vA+3}, 4096, v{self.vA+2}
        v_and_b32 v{T}, 15, v{L}
        v_lshrrev_b32 v{T+1}, 4, v{L}
        v_and_b32 v{T+2}, 7, v{L}
        v_xor_b32 v{T+2}, v{T+2}, v{T+1}
        v_lshl_add_u32 v{T+3}, v{T}, 8, s{sM2}
        v_lshl_add_u32 v{self.vRw}, v{T+2}, 4, v{T+3}
        v_xor_b32 v{T+2}, 4, v{T+2}
        v_lshl_add_u32 v{self.vRw+1}, v{T+2}, 4, v{T+3}
        s_lshl_b32 s{sT0}, s{sWV}, 2
        v_add_u32 v{T+2}, s{sT0}, v{T+1}
        v_and_b32 v{T+3}, 7, v{T+2}
        v_xor_b32 v{T+3}, v{T+3}, v{T}
        v_lshlrev_b32 v{T+3}, 4, v{T+3}
        v_lshl_add_u32 v{self.vRr}, v{T+2}, 8, v{T+3}
        s_lshl_b32 s{sT0}, s{sTOK}, 4
        v_add_u32 v{T+2}, s{sT0}, v{T+2}
        v_mul_u32_u24 v{T+2}, 1280, v{T+2}
        s_lshl_b32 s{sT0}, s{sCOL}, 7
        v_lshl_add_u32 v{T+3}, v{T}, 3, s{sT0}
        v_add_u32 v{self.vO}, v{T+2}, v{T+3}
        s_lshl_b32 s{sT0}, s{sTOK}, 6
        s_lshl_b32 s{sT1}, s{sWV}, 13
        s_add_u32 s{sT0}, s{sT0}, s{sT1}
        s_add_u32 s{sT0}, s{sT0}, {G_OFF}
        v_lshl_add_u32 v{self.vGaddr}, v{T}, 2, s{sT0}
        """.strip().split('\n')
        return [x.strip() for x in l]
    def setup_tr2(self):
        return [f"v_add_u32 v{self.vTr2+u}, {SET1}, v{vTr+u}" for u in range(4)]

    def stage_dma(self, i, base):
        e = self.e; out = []
        prev = [j for j, b in self.base.items() if b == base]
        self.base[i] = base
        def S(x): return (lambda: e(x))
        def Dm(x):
            def f(): self.stage_ids[i] = e(x)
            f.cost = ['buffer_x']; f.dma = 1; f.sep = 1
            return f
        if prev: out.append(lambda j=max(prev): e.wait_lg(self.rd_ids[j]))
        out.append(S(f"s_add_u32 m0, s{sM2}, {base}"))
        if i < NH:
            if i > 0: out.append(S(f"s_add_u32 s{sK2}, s{sK2}, " + (f"s{sD2}" if i == 7 else f"{32*1280}")))
            for p in range(4): out.append(Dm(f"buffer_load_dwordx4 v{vH+p}, s[{SW2}:{SW2+3}], s{sK2} offen offset:{p*1024} lds"))
        else:
            s = i - NH
            if s != 2:
                rb = {0: 0, 1: 40, 3: 80, 4: 120}[s]
                out.append(S(f"s_add_u32 s{sK2}, s{sKO}, {rb*1280}"))
                for p in range(4):
                    if p == 2: out.append(S(f"s_add_u32 s{sK2}, s{sK2}, {4*1280}"))
                    out.append(Dm(f"buffer_load_dwordx4 v{vH+p}, s[{SWO}:{SWO+3}], s{sK2} offen offset:{p*1024} lds"))
            else:
                for p in range(4):
                    out.append(S(f"s_add_u32 s{sK2}, s{sKO}, {(80*(p>>1) + 40*(p&1) + 16)*1280 - 1024*p}"))
                    out.append(Dm(f"buffer_load_dwordx4 v{vY}, s[{SWO}:{SWO+3}], s{sK2} offen offset:{p*1024} lds"))
        return out
    def wreg(self, i, u): return 16 * (i % 16) + 4 * u
    def stage_read(self, i):
        e = self.e
        base = self.base[i]
        rb, off = (vTr, base) if base < SET1 else (self.vTr2, base - SET1)
        assert off + 2048 < 65536
        out = [lambda: e.wait_vm(self.stage_ids[i])]
        for u in range(4):
            for h in range(2):
                d = self.wreg(i, u) + 2 * h
                x = f"ds_read_b64_tr_b16 a[{d}:{d+1}], v{rb+u} offset:{off + 2048*h}"
                def f(x=x): self.rd_ids[i] = e(x)
                f.cost = [x]
                out.append(f)
        return out

    def a_load(self, n):
        e = self.e; aux = self.aux
        i, T = self.items[n]
        d = self.ring[n % self.NA]
        hi = 1 if T >= 4 else 0; off = (T - 4 * hi) * 1024
        out = []
        def Dm(x):
            def f(): self.a_ids[n] = e(x)
            f.cost = ['buffer_x']
            return f
        if i < NH:
            if T == 0 and 0 < i < NH - 1: out.append(lambda: e(f"s_add_u32 s{sKA}, s{sKA}, " + (f"s{sDA}" if i == 7 else f"{A2_STEP}")))
            if T == 0 and i == NH - 1: out.append(lambda: e(f"s_add_u32 s{sKB}, s{sKA}, {A2_STEP}"))
            sk = sKB if i == NH - 1 else sKA
            out.append(Dm(f"buffer_load_dwordx4 v[{d}:{d+3}], v{self.vA+hi}, s[{SH}:{SH+3}], s{sk} offen offset:{off} {aux}"))
        else:
            s = i - NH; so = sO0 + s
            if s != 2: out.append(Dm(f"buffer_load_dwordx4 v[{d}:{d+3}], v{self.vA+hi}, s[{SWS}:{SWS+3}], s{so} offen offset:{off} {aux}"))
            else:
                out.append(Dm(f"buffer_load_dwordx2 v[{d}:{d+1}], v{self.vA+2+hi}, s[{SWS}:{SWS+3}], s{so} offen offset:{off} {aux}"))
                out.append(Dm(f"buffer_load_dwordx2 v[{d+2}:{d+3}], v{self.vA+2+hi}, s[{SWS}:{SWS+3}], s{so} offen offset:{off+512} {aux}"))
        return out
    def first_loads(self, k=None):
        out = []
        k = self.NA if k is None else k
        while self.nload < k:
            out += self.a_load(self.nload); self.nload += 1
        return out

    def mainloop(self, n_read, n_dma, free_bases, extra=None):
        e = self.e; NT = self.NT; items = self.items; NA = self.NA
        sch = Sched(e)
        first = {}; last = {}
        UM = self.opt.get('umaj', 0)
        for n, (i, T) in enumerate(items):
            r = self.ring[n % NA]
            if UM and n >= len(items) - 5:
                if n == len(items) - 5:
                    for u in range(4):
                        for m in range(n, n + 5):
                            a = self.acc(T, u); w = self.wreg(items[m][0], u); r = self.ring[m % NA]
                            k = sch.main(f"v_mfma_f32_16x16x32_bf16 v[{a}:{a+3}], a[{w}:{w+3}], v[{r}:{r+3}], v[{a}:{a+3}]")
                            first.setdefault(m, k); last[m] = k
                continue
            for u in range(4):
                a = self.acc(T, u); w = self.wreg(i, u)
                c = f"v[{a}:{a+3}]" if i > 0 else "0"
                k = sch.main(f"v_mfma_f32_16x16x32_bf16 v[{a}:{a+3}], a[{w}:{w+3}], v[{r}:{r+3}], {c}")
                first.setdefault(n, k); last[n] = k
        nm = len(sch.mains)
        first_o = NH * NT
        step = [first[i * NT] for i in range(NH - 1)] + [first[first_o]]
        otile = [first[first_o + 5 * T] for T in range(NT)] + [nm]
        self.step = step
        for n in range(self.nload, len(items)):
            g = last[n - NA] if n >= NA else -1
            if n == first_o - self.opt.get('gearly', 2) - self.opt.get('pollead', 5): sch.add('a', self.ho.poll_issue(vPollO), early=g, dead=g + 2)
            if n == first_o - self.opt.get('gearly', 2):
                sch.add('a', self.ho.poll_check(vPollO, 1), early=g, dead=g + 1)
                for T in range(NT):
                    sch.add('a', f"buffer_load_dword v{self.vGm+T}, v{self.vGaddr}, s[{SWS}:{SWS+3}], 0 offen offset:{64*T} {self.aux}", early=g, dead=g + 3)
            for fn in self.a_load(n): sch.add('a', fn, early=g, dead=g + 2)
        for n in range(1, len(items)):
            def w(n=n):
                if n in self.a_ids: e.wait_vm(self.a_ids[n])
            sch.add('aw', w, early=first[n] - 1, dead=first[n] - 1)
        free = list(free_bases); nd = n_dma; nr = n_read
        rem = NSL - n_read
        for i in range(NH - 1):
            want = min(NSL, n_read + -(-(i + 1) * rem // (NH - 2)), i + 16)
            if i == NH - 3: want = max(want, NH)
            l = []
            while nd < NSL and free:
                l += self.stage_dma(nd, free.pop(0)); nd += 1
            while nr < min(want, nd):
                l += self.stage_read(nr); free.append(self.base[nr]); nr += 1
            assert nr >= i + 2, (i, nr)
            span = step[i + 1] - step[i]
            for k, fn in enumerate(l):
                pos = step[i] + k * span // len(l)
                sch.add('stg', fn, early=pos, dead=min(pos + 2, step[i + 1] - 1))
        assert nr == NSL
        for T in range(NT):
            lo = last[(NH - 2) * NT + 2 * T + 1] + 4
            lo = max(lo, otile[0] - self.opt.get('sclate', 20) + 10 * T)
            for k in range(16):
                pos = lo + k // 2
                sch.add('sc', f"v_mul_f32 v{self.acc(T,0)+k}, v{self.vGm+T}, v{self.acc(T,0)+k}", early=pos, dead=min(pos + 3, otile[T] - 2))
        def writes(T):
            b = (T & 3) * WSLOT
            l = [f"ds_write_b128 v{self.vRw + (u & 1)}, v[{self.acc(T,u)}:{self.acc(T,u)+3}] offset:{b + 128*(u>>1)}" for u in range(4)]
            if T == 4: l = [f"v_add_u32 v{self.vRw}, {4*WSLOT}, v{self.vRw}", f"v_add_u32 v{self.vRw+1}, {4*WSLOT}, v{self.vRw+1}"] + l
            return l
        def bar():
            e.wait_lg_all(); e("s_barrier")
        bar.cost = ['s_x', 's_barrier']
        def reduce_(T, R):
            b = (T & 3) * WSLOT
            l = [f"ds_read_b128 v[{R+4*w}:{R+4*w+3}], v{self.vRr} offset:{b + 4*WBLK*w}" for w in range(4)]
            if T == 4: l = [f"v_add_u32 v{self.vRr}, {4*WSLOT}, v{self.vRr}"] + l
            add = [f"v_add_f32 v{R+k}, v{R+k}, v{R+4+k}" for k in range(4)] + [f"v_add_f32 v{R+8+k}, v{R+8+k}, v{R+12+k}" for k in range(4)]
            add += [f"v_add_f32 v{R+k}, v{R+k}, v{R+8+k}" for k in range(4)]
            add += [f"v_cvt_pk_bf16_f32 v{R}, v{R}, v{R+1}", f"v_cvt_pk_bf16_f32 v{R+1}, v{R+2}, v{R+3}"]
            if T > 0: add.append(f"v_add_u32 v{self.vO}, {16*1280}, v{self.vO}")
            add.append(f"buffer_store_dwordx2 v[{R}:{R+1}], v{self.vO}, s[{SOUT}:{SOUT+3}], 0 offen {self.opt.get('outaux', 'sc1')}")
            return l, add
        wp = self.opt.get('wpos', [4, 8, 12, 16])
        bl = self.opt.get('rbar', [[78, 3], [138, 6]])
        g0 = otile[0]; ndone = 0; bi = 0
        for T in range(1, NT):
            for k, x in enumerate(writes(T - 1)):
                k = max(0, k - (2 if T - 1 == 4 else 0))
                pos = otile[T] + (wp[k] if not (UM and T == NT - 1) else 3 + 2*k)
                while bi < len(bl) and g0 + bl[bi][0] <= pos:
                    sch.add('red', bar, early=g0 + bl[bi][0], dead=g0 + bl[bi][0]); bi += 1
                sch.add('red', x, early=pos, dead=pos)
        while bi < len(bl):
            sch.add('red', bar, early=g0 + bl[bi][0], dead=g0 + bl[bi][0]); bi += 1
        for k, (off, upto) in enumerate(bl):
            assert g0 + off > otile[upto] + wp[3]
            lo = g0 + off + 1; hi = (g0 + bl[k + 1][0] if k + 1 < len(bl) else nm) - 1
            l = []
            for T in range(ndone, upto):
                rd, add = reduce_(T, self.acc(T, 0))
                l.append((rd, add))
            seq = list(l[0][0])
            for j in range(len(l)): seq += (list(l[j + 1][0]) if j + 1 < len(l) else []) + list(l[j][1])
            for j, x in enumerate(seq):
                pos = lo + j * (hi - lo) // len(seq)
                sch.add('red2', x, early=pos, dead=min(pos + 2, nm - 1))
            ndone = upto
        wl = writes(NT - 1)
        if UM:
            for u in range(2): sch.add('red', wl.pop(0), early=otile[NT - 1] + 5*u + 5 + 7, dead=otile[NT - 1] + 5*u + 5 + 7)
        if self.tm.on:
            sch.add('ts', self.tm.stamp, early=step[7], dead=step[7]); sch.add('ts', self.tm.stamp, early=otile[0], dead=otile[0])
        if extra: extra(sch)
        sch.run(); self.over = sch.over
        self.tm.stamp()
        run = lambda l: [x() if callable(x) else e(x) for x in l]
        run(wl); bar()
        l = [reduce_(T, self.acc(T, 0)) for T in range(ndone, NT)]
        for rd, add in l: run(rd)
        for rd, add in l: run(add)
```

```python
import sys, json
from common import *
from p1 import P1
from p2 import P2, NSL, E0, WOFF, XOFF, vPollH

HDR = open('cdna_kernels/' + KN + '.s.ref').read().split('; Override launch')[0]
def srd(e, base, nbytes): e(f"s_mov_b32 s{base+2}, {nbytes}\ns_mov_b32 s{base+3}, 0x20000")
WB = lambda st: WOFF + (st % NWS) * WSLOT
XB = lambda k: XOFF + k * WSLOT

def entry(e, opt, tm):
    e(f"s_cmp_ge_u32 s2, 256\ns_cbranch_scc1 L_done")
    for base, off in [(SX, 0), (SW1, 32), (SWQ, 8)]: e(f"s_load_dwordx2 s[{base}:{base+1}], s[0:1], {off}")
    e(f"s_getpc_b64 s[6:7]\nv_min_u32 v24, 15, v0\nv_lshlrev_b32 v24, 7, v24")
    e.touch(f"global_load_dword v23, v24, s[6:7]")
    e(f"s_lshr_b32 s{sI}, s2, 3\ns_lshl_b32 s3, s{sI}, 11\nv_add_u32 v25, s3, v24")
    e.touch(f"global_load_dword v23, v25, s[6:7]")
    for base, off in [(SWS, 72), (SW2, 40), (SWO, 16), (SOUT, 56), (SDBG, 64), (SGATE, 48)]: e(f"s_load_dwordx2 s[{base}:{base+1}], s[0:1], {off}")
    e(f"""
    v_lshrrev_b32 v2, 6, v0
    v_and_b32 v1, 63, v0
    s_and_b32 s{sT0}, s2, 7
    v_readfirstlane_b32 s{sWV}, v2
    """)
    tm.init()
    srd(e, SX, S*D*2)
    e(f"s_cmp_lt_u32 s{sI}, 12\ns_cbranch_scc1 L_A\ns_cmp_ge_u32 s{sI}, 30\ns_cbranch_scc1 L_P")

def rest_srds(e, role):
    srd(e, SWS, WS_BYTES); srd(e, SDBG, 256)
    if role == 'A': srd(e, SGATE, 1280); srd(e, SW1, 640*1728*2); srd(e, SW2, 1728*640*2); srd(e, SWO, 640*640*2)
    else:
        srd(e, SW2, 1728*640*2); srd(e, SWO, 640*640*2); srd(e, SOUT, S*D*2); srd(e, SH, 54*A2_STEP)
        e(f"s_mov_b32 s{SH}, s{SWS}\ns_mov_b32 s{SH+1}, s{SWS+1}")

def flag_setup(e, p, line0, ncol):
    e(f"""
    s_mul_i32 s{sT0}, s{sRB}, {ncol}
    s_add_u32 s{sT0}, s{sT0}, s{sC}
    s_lshl_b32 s{sT0}, s{sT0}, 5
    s_add_u32 s{sT0}, s{sT0}, s{sWV}
    s_lshl_b32 s{sT0}, s{sT0}, 2
    s_add_u32 s{sT0}, s{sT0}, {FLAG_OFF + 128*line0}
    v_mov_b32 v{p.vFlag}, {OOB}
    v_mov_b32 v{p.vPD}, 0
    v_writelane_b32 v{p.vFlag}, s{sT0}, 0
    buffer_store_dword v{p.vPD}, v{p.vFlag}, s[{SWS}:{SWS+3}], 0 offen sc1
    """)
def count_setup(e, T):
    e(f"""
    s_and_b32 s3, s2, 15
    s_lshl_b32 s3, s3, 4
    s_cmp_eq_u32 s{sWV}, 0
    s_cselect_b32 s3, s3, {OOB}
    v_mov_b32 v{T}, {OOB}
    v_mov_b32 v{T+1}, 1
    v_writelane_b32 v{T}, s3, 0
    ATOMIC
    """)
def add_late(e, sch, p, late_l, hi, T):
    ka = late_l.index(['ATOMIC']); lo = p.bpos[1] + 8
    for k, x in enumerate(late_l):
        if k < ka: sch.add('cnt', (lambda x=x: e('\n'.join(x))), early=2 + k, dead=p.bpos[1], cost=x)
        elif k == ka:
            sch.add('cnt', f"buffer_atomic_add v{T+1}, v{T}, s[{SDBG}:{SDBG+3}], 0 offen sc1", early=p.bpos[1] + 1, dead=p.bpos[1] + 6, after=[p.bars[1]])
        else:
            pos = lo + (k - ka) * (hi - lo) // (len(late_l) - ka)
            sch.add('cnt', (lambda x=x: e('\n'.join(x))), early=pos, dead=pos + 3, cost=x)

def role_A(e, opt, tm):
    run = lambda l: [x() if callable(x) else e(x) for x in l]
    p = P1(e, 'A', opt, tm); aux = 'sc1'; T = p.vT
    ho = Handoff(e, 'A', p.vPD, p.vFlag, T)
    e(f"""
    s_lshr_b32 s{sRB}, s{sT0}, 2
    s_mul_i32 s{sRB}, s{sRB}, 6
    s_and_b32 s{sC}, s{sT0}, 3
    s_lshl_b32 s{sC}, s{sC}, 1
    s_add_u32 s{sRB}, s{sRB}, s{sI}
    s_cmp_ge_u32 s{sI}, 6
    s_cselect_b32 s{sT1}, 6, 0
    s_cselect_b32 s{sT2}, 1, 0
    s_sub_u32 s{sRB}, s{sRB}, s{sT1}
    s_add_u32 s{sC}, s{sC}, s{sT2}
    s_mul_i32 s{sPS}, s{sT0}, 12
    """)
    srd(e, SWQ, 640*1920*2)
    if opt.get('awfirst'):
        p.setup_w(); run(p.dma_w(0)); p.setup_x(); h0, h1 = p.dma_x(0); run(h0)
    else:
        p.setup_x(); h0, h1 = p.dma_x(0); run(h0); p.setup_w(); run(p.dma_w(0))
    rest_srds(e, 'A')
    run(h1); p.dma_gate()
    p.dma_ids[('w', 0)] = p.dma_ids[('x', 0)] = e.vm[-1]
    flag_setup(e, p, 0, 8)
    e(f"""
    s_add_u32 s{sPS}, s{sPS}, s{sI}
    s_lshl_b32 s{sPS}, s{sPS}, 2
    s_add_u32 s{sKB}, s{sPS}, s{sWV}
    s_lshl_b32 s{sT0}, s{sKB}, 11
    v_min_u32 v{p.vPw}, 15, v1
    v_lshl_add_u32 v{p.vPw}, v{p.vPw}, 7, s{sT0}
    v_min_u32 v{T}, 23, v1
    v_lshrrev_b32 v{T+1}, 2, v{T}
    v_and_b32 v{T}, 3, v{T}
    v_mul_u32_u24 v{T+1}, 1280, v{T+1}
    s_mul_i32 s{sT0}, s{sKB}, {6*1280}
    v_lshl_add_u32 v{T}, v{T}, 7, s{sT0}
    v_add_u32 v{p.vPx}, v{T}, v{T+1}
    """)
    def site(b):
        out = []
        what = [(p.vPx, SX, 128 * (2 + 4*b)), (p.vPw, SW1, (184 + 228*b) * 3456)]
        if b == 2:
            what = [(p.vPw, SW2, 0), (p.vPx, SWO, 0)]
            out += [f"s_mul_i32 s{sPS}, s{sKB}, {62*128}", f"v_min_u32 v{p.vPw}, 61, v1", f"v_lshl_add_u32 v{p.vPw}, v{p.vPw}, 7, s{sPS}", f"v_subrev_u32 v{p.vPx}, {1728*1280}, v{p.vPw}"]
        for v, srd_, off in what:
            out.append(lambda off=off: e(f"s_mov_b32 s{sPS}, {off}"))
            def f(v=v, srd_=srd_): e.touch(f"buffer_load_dword v{p.vDUM}, v{v}, s[{srd_}:{srd_+3}], s{sPS} offen")
            f.cost = ['buffer_x']; f.sep = 1
            out.append(f)
        return out
    pfs = opt.get('pfs', [-1, 1] if opt.get('w2F', 1) else [-1, 1, 4])
    for b, st in enumerate(pfs):
        if st < 0: run(site(b))
    p.setup_reads()
    late_l = scc_groups(e.capture(lambda: p.att_consts()))
    npro = opt.get('nproA', 999)
    for x in late_l[:npro]: e('\n'.join(x))
    late_l = scc_groups(e.capture(lambda: count_setup(e, 32))) + late_l[npro:]
    def extra(sch):
        add_late(e, sch, p, late_l, p.step0[9], 32)
        for b, st in enumerate(pfs):
            if st >= 0:
                for fn in site(b): sch.add('pf', fn, early=p.step0[st] + opt.get('pfo', 1), dead=p.step0[st] + opt.get('pfo', 1) + 14)
        p.att_lastloop(sch)
    p.mainloop(extra); tm.stamp()
    p.epilogue_A(aux); tm.stamp()
    ho.set_flag(p.last_store); tm.stamp()
    tm.flush(T + 1)
    e("s_endpgm")
    print("A over", p.over, file=sys.stderr)

def role_F(e, opt, tm):
    run = lambda l: [x() if callable(x) else e(x) for x in l]
    p = P1(e, 'F', opt, tm); aux = 'sc1'; T = p.vT
    ho = Handoff(e, 'F', p.vPD, p.vFlag, T + 1, opt.get('slp', 1))
    q = P2(e, opt, tm, ho)
    e(f"""
    s_and_b32 s{sT1}, s2, 3
    s_mul_i32 s{sT1}, s{sT1}, 18
    s_and_b32 s{sRB}, s2, 4
    s_add_u32 s{sT1}, s{sT1}, s{sI}
    s_lshl_b32 s{sRB}, s{sRB}, 1
    s_sub_u32 s{sT1}, s{sT1}, 12
    s_lshr_b32 s{sC}, s{sT1}, 3
    s_and_b32 s{sT1}, s{sT1}, 7
    s_add_u32 s{sRB}, s{sRB}, s{sT1}
    """)
    p.setup_x(); h0, h1 = p.dma_x(0); run(h0 + h1[1:])
    srd(e, SW1, 640*1728*2)
    p.setup_w(); run(p.dma_w(0))
    first_id = e.vm[-1]
    rest_srds(e, 'F'); flag_setup(e, p, 128, 9)
    p.dma_ids[('w', 0)] = p.dma_ids[('x', 0)] = first_id
    p.setup_reads()
    def w2_setup():
        e(f"""
        s_sub_u32 s{sT0}, s{sI}, 12
        s_mul_i32 s{sT1}, s{sT0}, 43
        s_lshr_b32 s{sT1}, s{sT1}, 7
        s_mul_i32 s{sT2}, s{sT1}, 3
        s_sub_u32 s{sPS+1}, s{sT0}, s{sT2}
        s_and_b32 s{sT0}, s2, 7
        s_mul_i32 s{sT0}, s{sT0}, 6
        s_add_u32 s{sT0}, s{sT0}, s{sT1}
        s_lshl_b32 s{sT0}, s{sT0}, 2
        s_add_u32 s{sT0}, s{sT0}, s{sWV}
        s_mul_i32 s{sT1}, s{sPS+1}, 192
        s_add_u32 s{sT0}, s{sT0}, s{sT1}
        s_mul_i32 s{sT0}, s{sT0}, {42*128}
        v_min_u32 v92, 41, v1
        v_lshl_add_u32 v92, v92, 7, s{sT0}
        v_subrev_u32 v93, {1728*1280}, v92
        """)
    W2F = opt.get('w2F', 1)
    late_l = scc_groups(e.capture(lambda: (W2F and w2_setup(), p.ffn_consts(), q.setup_early())))
    npro = opt.get('npro', 999)
    for x in late_l[:npro]: e('\n'.join(x))
    cnt_l = scc_groups(e.capture(lambda: count_setup(e, 94)))
    late_l = cnt_l + late_l[npro:]
    bases0 = [E0, WB(15), WB(16), WB(17)]
    def extra(sch):
        add_late(e, sch, p, late_l, p.step0[12], 94)
        for g_, st in enumerate(opt.get('pfs2', [6, 9, 12]) if W2F else []):
            sch.add('pf', (lambda g_=g_: e(f"s_cmp_eq_u32 s{sPS+1}, {g_}\ns_cselect_b32 s{sPS}, 0, {OOB}")), early=p.step0[st] + 1, dead=p.step0[st] + 10, cost=['s_x', 's_x'])
            for v, srd_ in ((92, SW2), (93, SWO)):
                def f(v=v, srd_=srd_): e.touch(f"buffer_load_dword v{p.vDUM}, v{v}, s[{srd_}:{srd_+3}], s{sPS} offen")
                f.sep = 1
                sch.add('pf', f, early=p.step0[st] + 1, dead=p.step0[st] + 12, cost=['buffer_x'])
        sch.add('cnt', ho.poll_issue(q.vCnt, SDBG), early=p.step0[15], dead=p.step0[15] + 6)
        sch.add('cnt', ho.poll_check(q.vCnt, 15, SDBG), early=p.step0[18], dead=p.step0[18] + 6)
        for k, st in enumerate([17, 17, 18, 19]):
            fns = q.stage_dma(k, bases0[k])
            lo = p.bpos[st] + 1; span = p.bpos[st + 1] - lo
            if st == 17: span //= 2; lo += span * k
            for j, fn in enumerate(fns):
                pos = lo + j * span // len(fns)
                sch.add('dma', fn, early=pos, dead=pos + 2, after=[p.bars[st]])
        p.ffn_lastloop(sch, aux)
    p.mainloop(extra); tm.stamp()
    run(p.ffn_rest); tm.stamp()
    n_join = tm.n
    e.raw("L_post:")
    e("s_barrier")
    run(q.setup_tr2())
    free = [WB(18), WB(19), XB(0), XB(1)]; nd = 4
    for k in range(opt.get('nflag', 2)): run(q.stage_dma(nd, free.pop(0))); nd += 1
    run(q.setup_late())
    for i in range(4): run(q.stage_read(i))
    ho.set_flag(p.last_store); tm.stamp()
    free += bases0; nr = 4
    npoll = opt.get('npoll', NSL - 2)
    while nd < NSL:
        if nd == npoll: ho.poll_issue(vPollH)()
        if not free:
            run(q.stage_read(nr)); free.append(q.base[nr]); nr += 1
        run(q.stage_dma(nd, free.pop(0))); nd += 1
    while nr < 12: run(q.stage_read(nr)); nr += 1
    ho.poll_check(vPollH, 1)(); tm.stamp()
    weave(e, q.first_loads(), [x for i in range(nr, 16) for x in q.stage_read(i)], start=8)
    q.mainloop(16, NSL, [])
    tm.stamp()
    if tm.on: e.wait_vm_all(); tm.stamp(); tm.flush(T)
    e("s_endpgm")
    print("F over p1", p.over, "p2", q.over, file=sys.stderr)
    return n_join

def role_P(e, opt, tm, n_join):
    run = lambda l: [x() if callable(x) else e(x) for x in l]
    p = P1(e, 'F', opt, tm); T = p.vT
    ho = Handoff(e, 'P', p.vPD, p.vFlag, T + 1, opt.get('slpP', 32))
    q = P2(e, opt, tm, ho)
    srd(e, SW1, 640*1728*2); srd(e, SWQ, 640*1920*2)
    e(f"""
    s_lshl_b32 s{sT0}, s{sT0}, 1
    s_sub_u32 s{sT1}, s{sI}, 30
    s_add_u32 s{sT0}, s{sT0}, s{sT1}
    s_lshl_b32 s{sT0}, s{sT0}, 2
    s_add_u32 s{sT0}, s{sT0}, s{sWV}
    s_mul_i32 s{sT2}, s{sT0}, {32*1280}
    s_add_u32 s{sT2}, s{sT2}, 128
    v_min_u32 v{T}, 31, v1
    v_mul_u32_u24 v{T}, 1280, v{T}
    s_lshl_b32 s{sT3}, s{sT0}, 13
    s_add_u32 s{sT3}, s{sT3}, {32*3456}
    v_lshlrev_b32 v{T+1}, 7, v1
    """)
    e.touch(f"buffer_load_dword v{p.vDUM}, v{T+1}, s[{SW1}:{SW1+3}], s{sT3} offen")
    e.touch(f"buffer_load_dword v{p.vDUM}, v{T}, s[{SX}:{SX+3}], s{sT2} offen")
    e(f"""
    s_lshl_b32 s{sT1}, s{sT1}, 2
    s_add_u32 s{sT1}, s{sT1}, s{sWV}
    s_mul_i32 s{sT1}, s{sT1}, {7*3840}
    s_and_b32 s{sT2}, s2, 3
    s_mul_i32 s{sT2}, s{sT2}, 320
    s_and_b32 s{sT2}, s{sT2}, 0xffffff80
    s_add_u32 s{sT1}, s{sT1}, s{sT2}
    s_add_u32 s{sT1}, s{sT1}, {opt.get('prow0', 32)*3840}
    v_min_u32 v{T}, 62, v1
    v_mul_u32_u24 v{T+1}, 57, v{T}
    v_lshrrev_b32 v{T+1}, 9, v{T+1}
    v_mad_i32_i24 v{T}, v{T+1}, -9, v{T}
    v_mul_u32_u24 v{T+1}, 3840, v{T+1}
    v_mul_u32_u24 v{T+2}, 11, v{T}
    v_lshrrev_b32 v{T+2}, 5, v{T+2}
    v_mul_u32_u24 v{T+2}, 896, v{T+2}
    v_lshl_add_u32 v{T}, v{T}, 7, v{T+2}
    v_add_u32 v{T}, v{T}, v{T+1}
    s_mul_i32 s{sM2}, s{sWV}, {4*WBLK}
    v_mov_b32 v{p.vFlag}, {OOB}
    """)
    rest_srds(e, 'P')
    for k in range(-(-(640 - opt.get('prow0', 32)) // 56)):
        e.touch(f"buffer_load_dword v{p.vDUM}, v{T}, s[{SWQ}:{SWQ+3}], s{sT1} offen")
        e(f"s_add_u32 s{sT1}, s{sT1}, {56*3840}")
        if k >= opt.get('pdep', 1): e.wait_vm(e.vm[-1 - opt.get('pdep', 1)])
    q.setup_early()
    for k, b in enumerate([E0, WB(15), WB(16), WB(17)]): run(q.stage_dma(k, b))
    ho.poll_issue(q.vCnt, SDBG)(); ho.poll_check(q.vCnt, 15, SDBG)()
    e.wait_vm_all()
    while tm.on and tm.n < n_join: tm.stamp()
    e("s_branch L_post")

def fused(opt):
    e = Emit(); k = KN + '_kernel'
    e.raw(kstart(k))
    tm = Stamps(e, opt.get('ts', 0)); tm.first()
    entry(e, opt, tm)
    snap = e.snapshot(); n0 = tm.n
    n_join = role_F(e, opt, tm)
    e.restore(snap); tm.n = n0; e.raw("L_A:"); role_A(e, opt, tm)
    e.restore(snap); tm.n = n0; e.raw("L_P:"); role_P(e, opt, tm, n_join)
    e.raw("L_done:")
    e("s_endpgm")
    print(e.stats, "nops", e.nops, file=sys.stderr)
    txt = HDR + f"; @launch grid=(256,1,1) block=(256,1,1) lds={LDS_END}\n"
    txt += '.amdgcn_target "amdgcn-amd-amdhsa--gfx950"\n.text\n' + e.text()
    txt += f"; padding: the code prefetch above reads 65536 bytes from the entry\n.fill ((65536 + 512 - (. - {k})) / 4), 4, 0xbf810000\n" + kdesc(k)
    return txt

if __name__ == '__main__':
    opt = json.loads(sys.argv[2]) if len(sys.argv) > 2 else {}
    open(sys.argv[1], 'w').write(fused(opt))
```

```python
from common import *
from sched import *

class P1:
    def __init__(self, e, role, opt, tm):
        self.e = e; self.role = role; self.opt = opt; self.tm = tm
        A = role == 'A'
        self.pitch = 3840 if A else 3456
        self.SW = SWQ if A else SW1
        self.WOFF = 0 if A else WSLOT
        self.XOFF = self.WOFF + NWS * WSLOT
        self.XSLOT = 24576 if A else WSLOT
        self.GOFF = self.XOFF + NXS * self.XSLOT
        self.NXP = 6 if A else 4
        self.vLane = 1; self.vDw = 2; self.vDx = 6; self.vXo = 12; self.vG = 14; self.vWb = 15; self.vT = 24
        if A:
            self.vPw, self.vPx, self.vFlag, self.vPD, self.vDUM = 19, 20, 21, 22, 23
            self.fk = 'a'; self.rWF = 0; self.rXF = 32; self.NF = opt.get('nf', 6)
            self.accQ = lambda T, t: 64 + 40 * (2 - T) + 4 * t
            self.accK = lambda T, t: 84 + 40 * (2 - T) + 4 * t
            self.accV = lambda T, u: 184 + 12 * u + 4 * T
            self.accG = lambda T: 244 + 4 * T
        else:
            self.vFlag, self.vPD, self.vDUM = 251, 252, 253
            self.fk = 'v'; self.rXF = 32; self.rWF = 64; self.NF = opt.get('nfF', 5)
            self.accF = lambda T, t: 96 + 24 * T + 4 * t
        self.dma_ids = {}; self.more_dma = None

    def setup_x(self):
        e = self.e; T = self.vT; L = self.vLane; A = self.role == 'A'
        if not A:
            e(f"""
            v_lshrrev_b32 v{T}, 3, v{L}
            s_lshl_b32 s{sT0}, s{sRB}, 2
            v_and_b32 v{T+2}, 7, v{L}
            s_add_u32 s{sT0}, s{sT0}, s{sWV}
            v_lshrrev_b32 v{T+3}, 4, v{L}
            s_mul_i32 s{sT0}, s{sT0}, {32*1280}
            v_mul_u32_u24 v{T+1}, 1280, v{T}
            s_lshl_b32 s{sM0X}, s{sWV}, 12
            v_xor_b32 v{T+4}, v{T+2}, v{T+3}
            s_add_u32 s{sM0X}, s{sM0X}, {self.XOFF}
            v_add_u32 v{T+1}, s{sT0}, v{T+1}
            v_xor_b32 v{T+5}, 4, v{T+4}
            v_lshl_add_u32 v{self.vDx}, v{T+4}, 4, v{T+1}
            v_lshl_add_u32 v{self.vDx+1}, v{T+5}, 4, v{T+1}
            v_add_u32 v{self.vDx+2}, {16*1280-2048}, v{self.vDx}
            v_add_u32 v{self.vDx+1}, {8*1280-1024}, v{self.vDx+1}
            v_add_u32 v{self.vDx+3}, {16*1280-2048}, v{self.vDx+1}
            """)
        else:
            e(f"""
            v_lshrrev_b32 v{T}, 3, v{L}
            s_mul_i32 s{sT0}, s{sRB}, 176
            v_and_b32 v{T+2}, 7, v{L}
            s_mul_i32 s{sT1}, s{sWV}, 48
            v_lshrrev_b32 v{T+3}, 4, v{L}
            s_add_u32 s{sT0}, s{sT0}, s{sT1}
            v_xor_b32 v{T+4}, v{T+2}, v{T+3}
            s_sub_u32 s{sT0}, s{sT0}, 16
            v_xor_b32 v{T+5}, 4, v{T+4}
            s_mul_i32 s{sM0X}, s{sWV}, 6144
            v_add_u32 v{T}, s{sT0}, v{T}
            s_add_u32 s{sM0X}, s{sM0X}, {self.XOFF}
            v_lshlrev_b32 v{T+4}, 4, v{T+4}
            v_lshlrev_b32 v{T+5}, 4, v{T+5}
            s_movk_i32 s{sT1}, 1280
            """)
            for p in range(6):
                e(f"v_add_u32 v{T+1}, {8*p}, v{T}")
                if p < 2: e(f"v_max_i32 v{T+1}, {p}, v{T+1}")
                e(f"v_mad_u32_u24 v{self.vDx+p}, v{T+1}, s{sT1}, v{T+4+(p&1)}")
                if p & 3: e(f"v_subrev_u32 v{self.vDx+p}, {1024*(p&3)}, v{self.vDx+p}")
    def setup_w(self):
        e = self.e; T = self.vT; L = self.vLane; A = self.role == 'A'
        if A:
            e(f"""
            v_mul_u32_u24 v{T}, 205, v{L}
            s_mul_i32 s{sT0}, s{sWV}, {8*self.pitch}
            v_lshrrev_b32 v{T}, 11, v{T}
            s_mul_i32 s{sT1}, s{sC}, 160
            v_mad_i32_i24 v{T+1}, v{T}, -10, v{L}
            s_add_u32 s{sT0}, s{sT0}, s{sT1}
            v_mul_u32_u24 v{T+2}, 1280, v{T}
            v_cmp_le_u32 vcc, 3, v{T}
            v_lshl_add_u32 v{T+2}, v{T+1}, 4, v{T+2}
            v_mov_b32 v{T+3}, {4*self.pitch - 3*1280}
            v_cndmask_b32 v{T+3}, 0, v{T+3}, vcc
            v_add3_u32 v{T+2}, v{T+2}, v{T+3}, s{sT0}
            v_mov_b32 v{T+3}, {OOB}
            v_cmp_gt_u32 vcc, 60, v{L}
            """)
        else:
            e(f"""
            v_lshrrev_b32 v{T}, 5, v{L}
            s_mul_i32 s{sT0}, s{sWV}, {8*self.pitch}
            v_and_b32 v{T+1}, 31, v{L}
            s_mul_i32 s{sT1}, s{sC}, 384
            v_mul_u32_u24 v{T}, {4*self.pitch}, v{T}
            s_add_u32 s{sT0}, s{sT0}, s{sT1}
            v_lshl_add_u32 v{T+2}, v{T+1}, 4, v{T}
            v_mov_b32 v{T+3}, {OOB}
            v_add_u32 v{T+2}, s{sT0}, v{T+2}
            v_cmp_gt_u32 vcc, 24, v{T+1}
            """)
        e(f"""
        s_mul_i32 s{sM2}, s{sWV}, {4*WBLK}
        s_add_u32 s{sM0W}, s{sM2}, {self.WOFF}
        v_cndmask_b32 v{self.vDw}, v{T+3}, v{T+2}, vcc
        """)
        for p in range(1, 4): e(f"v_add_u32 v{self.vDw+p}, {p*(self.pitch-WBLK)}, v{self.vDw}")
    def setup_reads(self):
        e = self.e; A = self.role == 'A'; T = self.vT; L = self.vLane
        if not A: e(f"s_lshr_b32 s{sT0}, s{sWV}, 1\ns_lshl_b32 s{sT0}, s{sT0}, 13\ns_add_u32 s{sT0}, s{sT0}, {self.XOFF}\ns_and_b32 s{sT1}, s{sWV}, 1\ns_mul_i32 s{sT1}, s{sT1}, 192\ns_add_u32 s{sT1}, s{sT1}, {self.WOFF}")
        e(f"""
        v_and_b32 v{T}, 15, v{L}
        v_lshrrev_b32 v{T+1}, 4, v{L}
        v_lshrrev_b32 v{T+2}, 1, v{T}
        v_xor_b32 v{T+2}, v{T+2}, v{T+1}
        v_lshlrev_b32 v{T+2}, 4, v{T+2}
        v_lshl_add_u32 v{T+2}, v{T}, 7, v{T+2}
        v_xor_b32 v{T+3}, 64, v{T+2}
        v_add_u32 v{self.vXo}, s{sM0X if A else sT0}, v{T+2}
        v_add_u32 v{self.vXo+1}, s{sM0X if A else sT0}, v{T+3}
        v_lshrrev_b32 v{T+4}, 2, v{L}
        v_mul_u32_u24 v{T+4}, {WBLK}, v{T+4}
        v_and_b32 v{T+5}, 3, v{L}
        v_lshl_add_u32 v{self.vWb+2}, v{T+5}, 3, v{T+4}
        """)
        if A:
            e(f"""
            v_lshlrev_b32 v{self.vG}, 4, v{T+1}
            v_add_u32 v{self.vG}, {self.GOFF}, v{self.vG}
            v_mad_u32_u24 v{self.vWb}, v{T+5}, 40, v{T+4}
            v_add_u32 v{self.vWb+1}, {3*WSLOT}, v{self.vWb}
            """)
        else: e(f"v_add_u32 v{self.vWb+2}, s{sT1}, v{self.vWb+2}")
        e(f"v_add_u32 v{self.vWb+3}, {3*WSLOT}, v{self.vWb+2}")

    def _dm(self, key, text):
        def f():
            if self.opt.get('nodma') in (self.role, self.role + key[0]) and key[1] > 0: self.dma_ids[key] = -1
            else: self.dma_ids[key] = self.e(text)
        f.dma = 1; f.cost = ['buffer_x']
        return f
    def dma_w(self, st):
        e = self.e
        out = [lambda: e(f"s_add_u32 m0, s{sM0W}, {(st % NWS)*WSLOT}"),
               lambda: e(f"s_mov_b32 s{sKW}, 0" if st == 0 else f"s_add_u32 s{sKW}, s{sKW}, {32*self.pitch}")]
        return out + [self._dm(('w', st), f"buffer_load_dwordx4 v{self.vDw+p}, s[{self.SW}:{self.SW+3}], s{sKW} offen offset:{p*WBLK} lds") for p in range(4)]
    def dma_x(self, a):
        e = self.e; A = self.role == 'A'; slot = (a % NXS) * self.XSLOT
        def piece(p):
            return [self._dm(('x', a), f"buffer_load_dwordx4 v{self.vDx+p}, s[{SX}:{SX+3}], s{sKX} offen offset:{(p & 3)*1024} lds")]
        h0 = [lambda: e(f"s_add_u32 m0, s{sM0X}, {slot}"), lambda: e(f"s_mov_b32 s{sKX}, 0" if a == 0 else f"s_add_u32 s{sKX}, s{sKX}, 128")]
        n0 = 4 if A else 2
        for p in range(n0): h0 += piece(p)
        h1 = [lambda: e(f"s_add_u32 m0, s{sM0X}, {slot + (4096 if A else 0)}")]
        for p in range(n0, self.NXP): h1 += piece(p)
        return h0, h1
    def dma_gate(self):
        T = self.vT
        self.e(f"""
        s_mul_i32 s{sT0}, s{sWV}, 320
        s_add_u32 m0, s{sT0}, {self.GOFF}
        v_lshl_add_u32 v{T}, v{self.vLane}, 4, s{sT0}
        s_mov_b64 exec, 0xfffff
        buffer_load_dwordx4 v{T}, s[{SGATE}:{SGATE+3}], 0 offen lds
        s_mov_b64 exec, -1
        """)

    def frags(self):
        fr = []
        if self.role == 'A':
            for t in range(5): fr.append((0, 8*t, [('WX', self.accQ(T, t), T) for T in range(3)]))
            for t in range(5): fr.append((0, 160 + 8*t, [('WX', self.accK(T, t), T) for T in range(3)]))
            for u in range(5):
                m = [('XW', self.accV(T, u), T) for T in range(3)]
                if u >= 2: m.append(('GX', self.accG(u - 2), u - 2))
                fr.append((2, 320 + 40*u, m) if u < 4 else (0, 320 + 32, m))
            self.hstride = 480
        else:
            for t in range(6): fr.append((2, 32*t, [('WX', self.accF(T, t), T) for T in range(4)]))
            self.hstride = 512
        return fr
    def read_frag(self, gf):
        st, f = divmod(gf, len(self.fr))
        pat, off, _ = self.fr[f]
        slot = st % NWS
        base = self.vWb + pat + (1 if slot >= 3 else 0)
        o = (slot - (3 if slot >= 3 else 0)) * WSLOT + off
        d = self.rWF + 4 * (gf % self.NF); k = self.fk
        return [f"ds_read_b64_tr_b16 {k}[{d}:{d+1}], v{base} offset:{o}", f"ds_read_b64_tr_b16 {k}[{d+2}:{d+3}], v{base} offset:{o+self.hstride}"]
    def read_x(self, st):
        a, kk = divmod(st, 2); slot = (a % NXS) * self.XSLOT
        b = self.rXF + 16 * (st & 1); k = self.fk
        out = [f"ds_read_b128 {k}[{b+4*T}:{b+4*T+3}], v{self.vXo+kk} offset:{slot+2048*T}" for T in range(3 if self.role == 'A' else 4)]
        if self.role == 'A': out.append(f"ds_read_b128 {k}[{b+12}:{b+15}], v{self.vG} offset:{st*64}")
        return out
    def mfma(self, st, gf, spec):
        kind, acc, xi = spec
        w = self.rWF + 4 * (gf % self.NF); x = self.rXF + 16 * (st & 1) + 4 * xi; k = self.fk
        if kind == 'GX': w = self.rXF + 16 * (st & 1) + 12
        a, b = (x, w) if kind == 'XW' else (w, x)
        c = f"v[{acc}:{acc+3}]" if st > 0 else "0"
        return f"v_mfma_f32_16x16x32_bf16 v[{acc}:{acc+3}], {k}[{a}:{a+3}], {k}[{b}:{b+3}], {c}"
    def barrier_for(self, st):
        e = self.e
        ids = [self.dma_ids[('w', st)]]
        if st % 2 == 0: ids.append(self.dma_ids[('x', st // 2)])
        live = [i for i in ids if i in e.vm]
        if live: e.wait_vm(max(live, key=e.vm.index))
        e("s_barrier")

    def mainloop(self, extra=None):
        e = self.e; opt = self.opt; A = self.role == 'A'
        self.fr = fr = self.frags(); nf = len(fr); NF = self.NF
        NST = 20
        sch = Sched(e)
        first = {}; last = {}
        for st in range(NST):
            for f in range(nf):
                gf = st * nf + f
                for spec in fr[f][2]:
                    i = sch.main(self.mfma(st, gf, spec)); first.setdefault(gf, i); last[gf] = i
        step0 = self.step0 = [first[st * nf] for st in range(NST)] + [len(sch.mains)]
        lead = opt.get('lead', 12) if A else opt.get('leadF', 11)
        ids = {}; bars = {}
        self.barrier_for(0); self.tm.stamp()
        bpos = [-2] + [step0[st] - lead - 1 for st in range(1, NST)] + [step0[NST] - lead - 1]
        for st in range(1, NST):
            bars[st] = sch.add('bar', (lambda st=st: self.barrier_for(st)), early=bpos[st], dead=bpos[st], cost=['s_x', 's_barrier'])
        self.bars = bars; self.bpos = bpos
        per = [[] for _ in range(NST)]
        for s2 in range(1, NST): per[max(s2 - 3, 0)].append((s2, self.dma_w(s2)))
        for a in range(1, 10):
            h0, h1 = self.dma_x(a)
            if a < 3: per[0].append((2 * a - 0.5, h0 + h1))
            else: per[2 * a - 4].append((2 * a - 0.5, h0)); per[2 * a - 3].append((2 * a - 0.5, h1))
        for st, l in (self.more_dma or {}).items(): per[st] += [(99 + k, x) for k, x in enumerate(l)]
        taken = set(); ditems = []
        for st in range(NST):
            fns = [f for _, l in sorted(per[st], key=lambda t: t[0]) for f in l]
            nd = sum(1 for f in fns if getattr(f, 'dma', 0))
            b0 = max(bpos[st], -1); k = 0; span = bpos[st + 1] - b0 - 1; prev = b0
            for fn in fns:
                pos = b0 + 1 + int((k + opt.get('dph', 0.55)) * span / max(nd, 1))
                if getattr(fn, 'dma', 0):
                    k += 1; ditems.append((fn, pos, pos, st)); prev = pos
                    if nd <= span // 3: taken.add(pos)
                else: ditems.append((fn, min(prev + 1, pos - 1), max(pos - 1, b0 + 1), st))
        for st in range(NST):
            xr = self.read_x(st); l = []
            for f in range(nf):
                gf = st * nf + f
                rf = [(x, gf) for x in self.read_frag(gf)]
                l += rf if f else [(xr[0], gf), rf[0], (xr[1], gf), rf[1], (xr[2], gf)] + ([] if A else [(xr[3], gf)])
                if A and f == 6: l.append((xr[3], None))
            lo = bpos[st] + 1 if st else -lead
            gl = [g for g in range(lo, bpos[st + 1]) if g not in taken]
            for k, (x, gf) in enumerate(l):
                g = max(-1, gl[k * len(gl) // len(l)])
                if gf is not None and gf >= NF and 'tr' in x: assert g >= last[gf - NF], (st, gf, g, last[gf - NF])
                if gf is not None: assert g < first[gf] - 2 or st == 0, (st, gf, g, first[gf])
                def r(x=x, gf=gf): ids[gf] = e(x)
                sch.add('rd', r, early=g, dead=g, cost=[x])
        for fn, lo, hi, st in ditems: sch.add('dma', fn, early=lo, dead=hi, after=[bars.get(st)])
        for gf in range(1, NST * nf):
            def w(gf=gf):
                if gf in ids: e.wait_lg(ids[gf])
            sch.add('wait', w, early=first[gf] - 2, dead=first[gf] - 1)
        if self.tm.on:
            for st in opt.get('tsst', (5, 10)): sch.add('ts', self.tm.stamp, early=step0[st], dead=step0[st])
        if extra: extra(sch)
        sch.run(); self.over = sch.over

    def ffn_consts(self):
        self.e(f"""
        s_mul_i32 s{sT0}, s{sC}, {6*A2_STEP}
        s_lshl_b32 s{sT1}, s{sRB}, 13
        s_add_u32 s{sT0}, s{sT0}, s{sT1}
        s_lshr_b32 s{sT1}, s{sWV}, 1
        s_lshl_b32 s{sT1}, s{sT1}, 12
        s_add_u32 s{sT0}, s{sT0}, s{sT1}
        s_and_b32 s{sT1}, s{sWV}, 1
        s_mul_i32 s{sT1}, s{sT1}, {3*A2_STEP}
        s_add_u32 s{sE}, s{sT0}, s{sT1}
        s_add_u32 s{sE+1}, s{sE}, {A2_STEP}
        s_add_u32 s{sE+2}, s{sE}, {2*A2_STEP}
        v_lshlrev_b32 v{self.vT+4}, 4, v{self.vLane}
        """)
    def _st(self, x):
        def f(): self.last_store = self.e(x)
        f.cost = [x]
        return f
    def ffn_lastloop(self, sch, aux):
        g0 = self.step0[19]; n = self.step0[20]
        self.ffn_rest = []; pos = g0
        for m in range(3):
            for T in range(4):
                a = self.accF(T, 2*m)
                l = [f"v_cvt_pk_bf16_f32 v{a+i}, v{a+2*i}, v{a+2*i+1}" for i in range(4)] + [f"v_pk_max_i16 v{a+i}, v{a+i}, 0" for i in range(4)]
                l.append(self._st(f"buffer_store_dwordx4 v[{a}:{a+3}], v{self.vT+4}, s[{SWS}:{SWS+3}], s{sE+m} offen offset:{T*1024} {aux}"))
                pos = max(pos, g0 + 4 * (2*m + 1) + T + 5)
                if pos + 4 < n and not self.ffn_rest:
                    for k, x in enumerate(l): sch.add('cv', x, early=pos + k // 2, dead=pos + k // 2 + 1)
                    pos += 4
                else: self.ffn_rest += l

    def att_consts(self):
        e = self.e; T = self.vT; L = self.vLane
        sPar, sM0, sM1, sG1, sG2, sG3 = [sMASK + 2 * i for i in range(6)]
        vSel = T + 4
        e(f"""
        v_and_b32 v{T}, 15, v{L}
        v_lshrrev_b32 v{T+1}, 4, v{L}
        v_and_b32 v{T+2}, 1, v{L}
        v_cmp_eq_u32 s[{sPar}:{sPar+1}], 1, v{T+2}
        v_lshl_add_u32 v{T+3}, v{T+1}, 2, v{T+2}
        v_cmp_le_u32 s[{sM0}:{sM0+1}], v{T+3}, v{T}
        v_add_u32 v{T+3}, 2, v{T+3}
        v_cmp_le_u32 s[{sM1}:{sM1+1}], v{T+3}, v{T}
        v_cmp_eq_u32 s[{sG1}:{sG1+1}], 1, v{T+1}
        v_cmp_eq_u32 s[{sG2}:{sG2+1}], 2, v{T+1}
        v_cmp_eq_u32 s[{sG3}:{sG3+1}], 3, v{T+1}
        v_mov_b32 v{T}, 0x0c0c0100
        v_mov_b32 v{T+1}, 0x01000c0c
        v_cndmask_b32 v{T}, v{T}, v{T+1}, s[{sPar}:{sPar+1}]
        v_mov_b32 v{T+1}, 0x0c0c0302
        v_mov_b32 v{T+2}, 0x03020c0c
        v_cndmask_b32 v{T+1}, v{T+1}, v{T+2}, s[{sPar}:{sPar+1}]
        v_mov_b32 v{T+2}, 0x0c0c0c0c
        v_cndmask_b32 v{vSel}, v{T}, v{T+2}, s[{sM0}:{sM0+1}]
        v_cndmask_b32 v{vSel+1}, v{T+1}, v{T+2}, s[{sM1}:{sM1+1}]
        v_cndmask_b32 v{vSel+2}, v{T+2}, v{T}, s[{sM0}:{sM0+1}]
        v_cndmask_b32 v{vSel+3}, v{T+2}, v{T+1}, s[{sM1}:{sM1+1}]
        s_lshr_b32 s{sT0}, s{sC}, 1
        s_lshl_b32 s{sT3}, s{sT0}, 13
        s_add_u32 s{sO0+3}, s{sT3}, {G_OFF}
        s_mul_i32 s{sT0}, s{sT0}, 5
        s_add_u32 s{sT0}, s{sT0}, 54
        s_and_b32 s{sT1}, s{sC}, 1
        s_mul_i32 s{sT2}, s{sT1}, 3
        s_add_u32 s{sT2}, s{sT2}, s{sT0}
        s_lshl_b32 s{sE+1}, s{sT2}, 17
        s_add_u32 s{sE+2}, s{sE+1}, {A2_STEP}
        s_add_u32 s{sT0}, s{sT0}, 2
        s_lshl_b32 s{sT0}, s{sT0}, 17
        s_lshl_b32 s{sT2}, s{sT1}, 9
        s_add_u32 s{sE}, s{sT0}, s{sT2}
        s_or_b32 s{sT1}, s{sRB}, s{sWV}
        s_cmp_eq_u32 s{sT1}, 0
        s_cselect_b32 s{sE+3}, 0xff800000, 0
        s_mov_b32 s{sE+4}, {f2h(1.4426950408889634 * 20 ** -0.5)}
        s_mul_i32 s{sT0}, s{sRB}, 11
        s_mul_i32 s{sT1}, s{sWV}, 3
        s_add_u32 s{sT0}, s{sT0}, s{sT1}
        s_sub_u32 s{sT0}, s{sT0}, 1
        """)
        for T_ in range(3):
            e(f"s_add_u32 s{sT1}, s{sT0}, {T_}\ns_lshl_b32 s{sT2}, s{sT1}, 10\ns_lshl_b32 s{sT3}, s{sT1}, 6")
            e(f"s_cmp_lt_u32 s{sT1}, 128\ns_cselect_b32 s{sE+5+T_}, s{sT2}, {OOB}\ns_cselect_b32 s{sO0+T_}, s{sT3}, {OOB}")
        e(f"s_cmp_eq_u32 s{sWV}, 0\ns_cselect_b32 s{sE+5}, {OOB}, s{sE+5}\ns_cselect_b32 s{sO0}, {OOB}, s{sO0}")
        e(f"s_bitcmp1_b32 s{sC}, 0\n" + "\n".join(f"s_cselect_b32 s{sO0+k}, {OOB}, s{sO0+k}" for k in range(3)))
    @staticmethod
    def cvt2(d, a): return [f"v_cvt_pk_bf16_f32 v{d}, v{a}, v{a+1}", f"v_cvt_pk_bf16_f32 v{d+1}, v{a+2}, v{a+3}"]
    def att_lastloop(self, sch):
        L = self.vLane; g0 = self.step0[19]
        EX = self.XOFF + self.XSLOT
        pre = [f"s_add_u32 s{sT0}, s{sWV}, 1", f"s_mul_i32 s{sT0}, s{sT0}, 5120", f"s_add_u32 s{sT0}, s{sT0}, {EX}",
               f"v_lshlrev_b32 v{self.vDx+1}, 3, v{L}", f"v_add_u32 v{self.vDx}, s{sT0}, v{self.vDx+1}",
               f"v_lshlrev_b32 v{self.vDw}, 4, v{L}", f"v_and_b32 v{self.vDw+1}, 15, v{L}", f"v_lshlrev_b32 v{self.vDw+1}, 2, v{self.vDw+1}"]
        for k, x in enumerate(pre): sch.add('cv', x, early=g0 - 10 + k, dead=g0 + 4)
        for k, acc in enumerate((self.accQ, self.accK)):
            for t in range(5):
                for T in range(3):
                    for x in self.cvt2(acc(T, t), acc(T, t)): sch.add('cv', x, early=g0 + 15*k + 3*t + T + 5, dead=g0 + 40 + 6*k)
    def epilogue_A(self, aux):
        e = self.e; T = self.vT; cvt2 = self.cvt2
        sPar, sM0, sM1, sG1, sG2, sG3 = [sMASK + 2 * i for i in range(6)]
        vSel = T + 4
        Vp = lambda Tt, u: self.accV(0, u) + 6 + 2 * Tt
        Kp = lambda Tt, t: self.accK(Tt, t) if Tt >= 0 else 8 + 2 * t
        Qp = self.accQ
        Sc = {2: 32, 1: 64, 0: 32}; Sp = {k: v + 16 for k, v in Sc.items()}
        vE, vE8 = self.vDx, self.vDx + 1
        def qk(Tt):
            l = []
            for t in range(5):
                for (Sr, kt) in ((Sc[Tt], Tt), (Sp[Tt], Tt - 1)):
                    l.append(f"v_mfma_f32_16x16x4_4b_bf16 v[{Sr}:{Sr+15}], v[{Kp(kt,t)}:{Kp(kt,t)+1}], v[{Qp(Tt,t)}:{Qp(Tt,t)+1}], " + (f"v[{Sr}:{Sr+15}]" if t else "0"))
            return l
        rcv = lambda d, a: cvt2(d, a)[::-1]
        side = [f"ds_write_b64 v{vE}, v[{Kp(2,t)}:{Kp(2,t)+1}] offset:{512*t}" for t in range(5)]
        for u in range(5): side += rcv(Vp(2, u), self.accV(2, u)) + [f"ds_write_b64 v{vE}, v[{Vp(2,u)}:{Vp(2,u)+1}] offset:{2560+512*u}"]
        for Tt in (1, 0):
            for u in range(5): side += cvt2(Vp(Tt, u), self.accV(Tt, u))
        side.append(f"v_subrev_u32 v{vE}, 5120, v{vE}")
        weave(e, qk(2), side)
        e.wait_lg_all(); e("s_barrier")
        for t in range(5): e(f"ds_read_b64 v[{Kp(-1,t)}:{Kp(-1,t)+1}], v{vE} offset:{512*t}")
        for u in range(5): e(f"ds_read_b64 v[{Vp(-1,u)}:{Vp(-1,u)+1}], v{vE} offset:{2560+512*u}")
        gate = []
        for op in range(5):
            for Tt in range(3):
                g = self.accG(Tt)
                gate.append([f"v_mul_f32 v{g}, {f2h(-1.4426950408889634)}, v{g}", f"v_exp_f32 v{g}, v{g}", f"v_add_f32 v{g}, 1.0, v{g}",
                             f"v_rcp_f32 v{g}, v{g}", f"v_sub_f32 v{g+1}, 1.0, v{g}"][op])
        for Tt in range(3):
            gate += [f"s_add_u32 s{sT0}, s{sO0+3}, s{sO0+Tt}", f"buffer_store_dword v{self.accG(Tt)+1}, v{self.vDw+1}, s[{SWS}:{SWS+3}], s{sT0} offen {aux}"]
        weave(e, gate, [])
        def softmax(Tt):
            sc, sp = Sc[Tt], Sp[Tt]; l = []
            m0 = [sc + 4*bb for bb in range(4)]; m1 = [sc + 4*bb + 2 for bb in range(4)]
            for bb in range(4):
                c0, p0 = sc + 4*bb, sp + 4*bb
                l += [f"v_cndmask_b32 v{c0}, v{c0}, v{c0+1}, s[{sPar}:{sPar+1}]", f"v_cndmask_b32 v{c0+2}, v{c0+2}, v{c0+3}, s[{sPar}:{sPar+1}]",
                      f"v_cndmask_b32 v{p0}, v{p0}, v{p0+1}, s[{sPar}:{sPar+1}]", f"v_cndmask_b32 v{p0+2}, v{p0+2}, v{p0+3}, s[{sPar}:{sPar+1}]"]
                if Tt == 1: l += [f"v_add_f32 v{p0}, s{sE+3}, v{p0}", f"v_add_f32 v{p0+2}, s{sE+3}, v{p0+2}"]
            l += [f"v_cndmask_b32 v{sc+4*bb}, v{sp+4*bb}, v{sc+4*bb}, s[{sM0}:{sM0+1}]" for bb in range(4)]
            l += [f"v_cndmask_b32 v{sc+4*bb+2}, v{sp+4*bb+2}, v{sc+4*bb+2}, s[{sM1}:{sM1+1}]" for bb in range(4)]
            for m in (m0, m1): l += [f"v_permlane32_swap_b32 v{m[0]}, v{m[2]}", f"v_permlane32_swap_b32 v{m[1]}, v{m[3]}"]
            for m in (m0, m1): l += [f"v_permlane16_swap_b32 v{m[0]}, v{m[1]}", f"v_permlane16_swap_b32 v{m[2]}, v{m[3]}"]
            vals = m0 + m1; t0, t1 = sp, sp + 1
            l += [f"v_max3_f32 v{t0}, v{vals[0]}, v{vals[1]}, v{vals[2]}", f"v_max3_f32 v{t1}, v{vals[3]}, v{vals[4]}, v{vals[5]}",
                  f"v_max3_f32 v{t0}, v{t0}, v{vals[6]}, v{vals[7]}", f"v_max_f32 v{t0}, v{t0}, v{t1}", f"v_mul_f32 v{t0}, s{sE+4}, v{t0}"]
            l += [f"v_fma_f32 v{x}, v{x}, s{sE+4}, -v{t0}" for x in vals]
            l += [f"v_exp_f32 v{x}, v{x}" for x in vals]
            l += [f"v_add_f32 v{t0}, v{vals[0]}, v{vals[1]}", f"v_add_f32 v{t1}, v{vals[2]}, v{vals[3]}", f"v_add_f32 v{t0+2}, v{vals[4]}, v{vals[5]}",
                  f"v_add_f32 v{t0}, v{t0}, v{t1}", f"v_add_f32 v{t0+3}, v{vals[6]}, v{vals[7]}", f"v_add_f32 v{t0}, v{t0}, v{t0+2}",
                  f"v_add_f32 v{t0}, v{t0}, v{t0+3}", f"v_rcp_f32 v{t0}, v{t0}", f"v_mul_f32 v{t0}, v{t0}, v{self.accG(Tt)}"]
            l += [f"v_mul_f32 v{x}, v{t0}, v{x}" for x in (vals[0], vals[4], vals[2], vals[6], vals[1], vals[5], vals[3], vals[7])]
            P = [sp + 4 + i for i in range(4)]
            l += [f"v_cvt_pk_bf16_f32 v{P[i]}, v{m0[i]}, v{m1[i]}" for i in (0, 2, 1, 3)]
            l += [f"v_permlane32_swap_b32 v{P[0]}, v{P[2]}", f"v_permlane32_swap_b32 v{P[1]}, v{P[3]}",
                  f"v_permlane16_swap_b32 v{P[0]}, v{P[1]}", f"v_permlane16_swap_b32 v{P[2]}, v{P[3]}"]
            for bb in range(4): l += [f"v_perm_b32 v{sc+4*bb+i}, v{P[bb]}, v{P[bb]}, v{vSel+i}" for i in range(4)]
            return l
        O = [self.accQ(1, t) for t in range(5)] + [self.accV(0, u) for u in range(3)]
        def pv(Tt):
            sc = Sc[Tt]
            return ([f"v_mfma_f32_16x16x32_bf16 v[{O[bb]}:{O[bb]+3}], v[{Vp(Tt-1,bb)}:{Vp(Tt-1,bb)+3}], v[{sc+4*bb}:{sc+4*bb+3}], 0" for bb in range(4)] +
                    [f"v_mfma_f32_16x16x32_bf16 v[{O[4+bb]}:{O[4+bb]+3}], v[{Vp(Tt-1,4)}:{Vp(Tt-1,4)+3}], v[{sc+4*bb}:{sc+4*bb+3}], 0" for bb in range(4)])
        def final(Tt):
            sp = Sp[Tt]; o = sp + 8; o4 = sp; l = []
            so = lambda k: f"s_add_u32 s{sT0}, s{sE+k}, s{sE+5+Tt}"
            for bb in range(4): l += cvt2(o + 2*bb, O[bb])
            l[4:4] = [so(1), self._st(f"buffer_store_dwordx4 v[{o}:{o+3}], v{self.vDw}, s[{SWS}:{SWS+3}], s{sT0} offen {aux}")]
            l += [so(2), self._st(f"buffer_store_dwordx4 v[{o+4}:{o+7}], v{self.vDw}, s[{SWS}:{SWS+3}], s{sT0} offen {aux}")]
            for bb in range(4): l += cvt2(o4 + 2*bb, O[4+bb])
            for bb, sg in ((1, sG1), (2, sG2), (3, sG3)):
                l += [f"v_cndmask_b32 v{o4}, v{o4}, v{o4+2*bb}, s[{sg}:{sg+1}]", f"v_cndmask_b32 v{o4+1}, v{o4+1}, v{o4+2*bb+1}, s[{sg}:{sg+1}]"]
            l += [so(0), self._st(f"buffer_store_dwordx2 v[{o4}:{o4+1}], v{vE8}, s[{SWS}:{SWS+3}], s{sT0} offen {aux}")]
            return l
        s2, s1, s0 = softmax(2), softmax(1), softmax(0)
        weave(e, s2, qk(1), start=4, end=len(s2) - 12)
        weave(e, s1[:20], pv(2), start=0, end=16)
        weave(e, final(2), [])
        weave(e, s1[20:], qk(0), start=2, end=len(s1) - 20 - 12)
        weave(e, s0[:20], pv(1), start=0, end=16)
        weave(e, final(1), [])
        weave(e, s0[20:] + pv(0) + final(0), [])
```

```python
import sys, json
from common import *
from p1 import P1
from p2 import P2, NSL, E0, WOFF, XOFF, vPollH

HDR = open('cdna_kernels/' + KN + '.s.ref').read().split('; Override launch')[0]
def srd(e, base, nbytes): e(f"s_mov_b32 s{base+2}, {nbytes}\ns_mov_b32 s{base+3}, 0x20000")
WB = lambda st: WOFF + (st % NWS) * WSLOT
XB = lambda k: XOFF + k * WSLOT

def entry(e, opt, tm):
    e(f"s_cmp_ge_u32 s2, 256\ns_cbranch_scc1 L_done")
    for base, off in [(SX, 0), (SW1, 32), (SWQ, 8)]: e(f"s_load_dwordx2 s[{base}:{base+1}], s[0:1], {off}")
    e(f"s_getpc_b64 s[6:7]\nv_min_u32 v24, 15, v0\nv_lshlrev_b32 v24, 7, v24")
    e.touch(f"global_load_dword v23, v24, s[6:7]")
    e(f"s_lshr_b32 s{sI}, s2, 3\ns_lshl_b32 s3, s{sI}, 11\nv_add_u32 v25, s3, v24")
    e.touch(f"global_load_dword v23, v25, s[6:7]")
    for base, off in [(SWS, 72), (SW2, 40), (SWO, 16), (SOUT, 56), (SDBG, 64), (SGATE, 48)]: e(f"s_load_dwordx2 s[{base}:{base+1}], s[0:1], {off}")
    e(f"""
    v_lshrrev_b32 v2, 6, v0
    v_and_b32 v1, 63, v0
    s_and_b32 s{sT0}, s2, 7
    v_readfirstlane_b32 s{sWV}, v2
    """)
    tm.init()
    srd(e, SX, S*D*2)
    e(f"s_cmp_lt_u32 s{sI}, 12\ns_cbranch_scc1 L_A\ns_cmp_ge_u32 s{sI}, 30\ns_cbranch_scc1 L_P")

def rest_srds(e, role):
    srd(e, SWS, WS_BYTES); srd(e, SDBG, 256)
    if role == 'A': srd(e, SGATE, 1280); srd(e, SW1, 640*1728*2); srd(e, SW2, 1728*640*2); srd(e, SWO, 640*640*2)
    else:
        srd(e, SW2, 1728*640*2); srd(e, SWO, 640*640*2); srd(e, SOUT, S*D*2); srd(e, SH, 54*A2_STEP)
        e(f"s_mov_b32 s{SH}, s{SWS}\ns_mov_b32 s{SH+1}, s{SWS+1}")

def flag_setup(e, p, line0, ncol):
    e(f"""
    s_mul_i32 s{sT0}, s{sRB}, {ncol}
    s_add_u32 s{sT0}, s{sT0}, s{sC}
    s_lshl_b32 s{sT0}, s{sT0}, 5
    s_add_u32 s{sT0}, s{sT0}, s{sWV}
    s_lshl_b32 s{sT0}, s{sT0}, 2
    s_add_u32 s{sT0}, s{sT0}, {FLAG_OFF + 128*line0}
    v_mov_b32 v{p.vFlag}, {OOB}
    v_mov_b32 v{p.vPD}, 0
    v_writelane_b32 v{p.vFlag}, s{sT0}, 0
    buffer_store_dword v{p.vPD}, v{p.vFlag}, s[{SWS}:{SWS+3}], 0 offen sc1
    """)
def count_setup(e, T):
    e(f"""
    s_and_b32 s3, s2, 15
    s_lshl_b32 s3, s3, 4
    s_cmp_eq_u32 s{sWV}, 0
    s_cselect_b32 s3, s3, {OOB}
    v_mov_b32 v{T}, {OOB}
    v_mov_b32 v{T+1}, 1
    v_writelane_b32 v{T}, s3, 0
    ATOMIC
    """)
def add_late(e, sch, p, late_l, hi, T):
    ka = late_l.index(['ATOMIC']); lo = p.bpos[1] + 8
    for k, x in enumerate(late_l):
        if k < ka: sch.add('cnt', (lambda x=x: e('\n'.join(x))), early=2 + k, dead=p.bpos[1], cost=x)
        elif k == ka:
            sch.add('cnt', f"buffer_atomic_add v{T+1}, v{T}, s[{SDBG}:{SDBG+3}], 0 offen sc1", early=p.bpos[1] + 1, dead=p.bpos[1] + 6, after=[p.bars[1]])
        else:
            pos = lo + (k - ka) * (hi - lo) // (len(late_l) - ka)
            sch.add('cnt', (lambda x=x: e('\n'.join(x))), early=pos, dead=pos + 3, cost=x)

def role_A(e, opt, tm):
    run = lambda l: [x() if callable(x) else e(x) for x in l]
    p = P1(e, 'A', opt, tm); aux = 'sc1'; T = p.vT
    ho = Handoff(e, 'A', p.vPD, p.vFlag, T)
    e(f"""
    s_lshr_b32 s{sRB}, s{sT0}, 2
    s_mul_i32 s{sRB}, s{sRB}, 6
    s_and_b32 s{sC}, s{sT0}, 3
    s_lshl_b32 s{sC}, s{sC}, 1
    s_add_u32 s{sRB}, s{sRB}, s{sI}
    s_cmp_ge_u32 s{sI}, 6
    s_cselect_b32 s{sT1}, 6, 0
    s_cselect_b32 s{sT2}, 1, 0
    s_sub_u32 s{sRB}, s{sRB}, s{sT1}
    s_add_u32 s{sC}, s{sC}, s{sT2}
    s_mul_i32 s{sPS}, s{sT0}, 12
    """)
    srd(e, SWQ, 640*1920*2)
    if opt.get('awfirst', 1):
        p.setup_w(); run(p.dma_w(0)); p.setup_x(); h0, h1 = p.dma_x(0); run(h0)
    else:
        p.setup_x(); h0, h1 = p.dma_x(0); run(h0); p.setup_w(); run(p.dma_w(0))
    rest_srds(e, 'A')
    run(h1); p.dma_gate()
    p.dma_ids[('w', 0)] = p.dma_ids[('x', 0)] = e.vm[-1]
    flag_setup(e, p, 0, 8)
    e(f"""
    s_add_u32 s{sPS}, s{sPS}, s{sI}
    s_lshl_b32 s{sPS}, s{sPS}, 2
    s_add_u32 s{sKB}, s{sPS}, s{sWV}
    s_lshl_b32 s{sT0}, s{sKB}, 11
    v_min_u32 v{p.vPw}, 15, v1
    v_lshl_add_u32 v{p.vPw}, v{p.vPw}, 7, s{sT0}
    v_min_u32 v{T}, 23, v1
    v_lshrrev_b32 v{T+1}, 2, v{T}
    v_and_b32 v{T}, 3, v{T}
    v_mul_u32_u24 v{T+1}, 1280, v{T+1}
    s_mul_i32 s{sT0}, s{sKB}, {6*1280}
    v_lshl_add_u32 v{T}, v{T}, 7, s{sT0}
    v_add_u32 v{p.vPx}, v{T}, v{T+1}
    """)
    def site(b):
        out = []
        what = [(p.vPx, SX, 128 * (2 + opt.get('ux2', 0) + 4*b)), (p.vPw, SW1, (184 + 228*b) * 3456)]
        if b == 2:
            what = [(p.vPw, SW2, 0), (p.vPx, SWO, 0)]
            out += [f"s_mul_i32 s{sPS}, s{sKB}, {62*128}", f"v_min_u32 v{p.vPw}, 61, v1", f"v_lshl_add_u32 v{p.vPw}, v{p.vPw}, 7, s{sPS}", f"v_subrev_u32 v{p.vPx}, {1728*1280}, v{p.vPw}"]
        for v, srd_, off in what:
            out.append(lambda off=off: e(f"s_mov_b32 s{sPS}, {off}"))
            def f(v=v, srd_=srd_): e.touch(f"buffer_load_dword v{p.vDUM}, v{v}, s[{srd_}:{srd_+3}], s{sPS} offen")
            f.cost = ['buffer_x']; f.sep = 1
            out.append(f)
        return out
    pfs = opt.get('pfs', [-1, 1] if opt.get('w2F', 1) else [-1, 1, 4])
    for b, st in enumerate(pfs):
        if st < 0: run(site(b))
    p.setup_reads()
    late_l = scc_groups(e.capture(lambda: p.att_consts()))
    npro = opt.get('nproA', 999)
    for x in late_l[:npro]: e('\n'.join(x))
    late_l = scc_groups(e.capture(lambda: count_setup(e, 32))) + late_l[npro:]
    def extra(sch):
        add_late(e, sch, p, late_l, p.step0[9], 32)
        for b, st in enumerate(pfs):
            if st >= 0:
                for fn in site(b): sch.add('pf', fn, early=p.step0[st] + opt.get('pfo', 1), dead=p.step0[st] + opt.get('pfo', 1) + 14)
        p.att_lastloop(sch)
    p.mainloop(extra); tm.stamp()
    p.epilogue_A(aux); tm.stamp()
    ho.set_flag(p.last_store); tm.stamp()
    tm.flush(T + 1)
    e("s_endpgm")
    print("A over", p.over, file=sys.stderr)

def role_F(e, opt, tm):
    run = lambda l: [x() if callable(x) else e(x) for x in l]
    p = P1(e, 'F', opt, tm); aux = 'sc1'; T = p.vT
    ho = Handoff(e, 'F', p.vPD, p.vFlag, T + 1, opt.get('slp', 1))
    q = P2(e, opt, tm, ho)
    e(f"""
    s_and_b32 s{sT1}, s2, 3
    s_mul_i32 s{sT1}, s{sT1}, 18
    s_and_b32 s{sRB}, s2, 4
    s_add_u32 s{sT1}, s{sT1}, s{sI}
    s_lshl_b32 s{sRB}, s{sRB}, 1
    s_sub_u32 s{sT1}, s{sT1}, 12
    s_lshr_b32 s{sC}, s{sT1}, 3
    s_and_b32 s{sT1}, s{sT1}, 7
    s_add_u32 s{sRB}, s{sRB}, s{sT1}
    """)
    p.setup_x(); h0, h1 = p.dma_x(0); run(h0 + h1[1:])
    srd(e, SW1, 640*1728*2)
    p.setup_w(); run(p.dma_w(0))
    first_id = e.vm[-1]
    rest_srds(e, 'F'); flag_setup(e, p, 128, 9)
    p.dma_ids[('w', 0)] = p.dma_ids[('x', 0)] = first_id
    p.setup_reads()
    def w2_setup():
        e(f"""
        s_sub_u32 s{sT0}, s{sI}, 12
        s_mul_i32 s{sT1}, s{sT0}, 43
        s_lshr_b32 s{sT1}, s{sT1}, 7
        s_mul_i32 s{sT2}, s{sT1}, 3
        s_sub_u32 s{sPS+1}, s{sT0}, s{sT2}
        s_and_b32 s{sT0}, s2, 7
        s_mul_i32 s{sT0}, s{sT0}, 6
        s_add_u32 s{sT0}, s{sT0}, s{sT1}
        s_lshl_b32 s{sT0}, s{sT0}, 2
        s_add_u32 s{sT0}, s{sT0}, s{sWV}
        s_mul_i32 s{sT1}, s{sPS+1}, 192
        s_add_u32 s{sT0}, s{sT0}, s{sT1}
        s_mul_i32 s{sT0}, s{sT0}, {42*128}
        v_min_u32 v92, 41, v1
        v_lshl_add_u32 v92, v92, 7, s{sT0}
        v_subrev_u32 v93, {1728*1280}, v92
        """)
    W2F = opt.get('w2F', 1)
    late_l = scc_groups(e.capture(lambda: (W2F and w2_setup(), p.ffn_consts(), q.setup_early())))
    npro = opt.get('npro', 999)
    for x in late_l[:npro]: e('\n'.join(x))
    cnt_l = scc_groups(e.capture(lambda: count_setup(e, 94)))
    late_l = cnt_l + late_l[npro:]
    bases0 = [E0, WB(15), WB(16), WB(17)]
    p.more_dma = {17: [q.stage_dma(0, bases0[0]), q.stage_dma(1, bases0[1])], 18: [q.stage_dma(2, bases0[2])], 19: [q.stage_dma(3, bases0[3])]}
    def extra(sch):
        add_late(e, sch, p, late_l, p.step0[12], 94)
        for g_, st in enumerate(opt.get('pfs2', [6, 9, 12]) if W2F else []):
            sch.add('pf', (lambda g_=g_: e(f"s_cmp_eq_u32 s{sPS+1}, {g_}\ns_cselect_b32 s{sPS}, 0, {OOB}")), early=p.step0[st] + 1, dead=p.step0[st] + 10, cost=['s_x', 's_x'])
            for v, srd_ in ((92, SW2), (93, SWO)):
                def f(v=v, srd_=srd_): e.touch(f"buffer_load_dword v{p.vDUM}, v{v}, s[{srd_}:{srd_+3}], s{sPS} offen")
                f.sep = 1
                sch.add('pf', f, early=p.step0[st] + 1, dead=p.step0[st] + 12, cost=['buffer_x'])
        sch.add('cnt', ho.poll_issue(q.vCnt, SDBG), early=p.step0[15], dead=p.step0[15] + 6)
        sch.add('cnt', ho.poll_check(q.vCnt, 15, SDBG), early=p.step0[18], dead=p.step0[18] + 6)
        p.ffn_lastloop(sch, aux)
    p.mainloop(extra); tm.stamp()
    run(p.ffn_rest); tm.stamp()
    n_join = tm.n
    e.raw("L_post:")
    e("s_barrier")
    run(q.setup_tr2())
    free = [WB(18), WB(19), XB(0), XB(1)]; nd = 4
    for k in range(opt.get('nflag', 2)): run(q.stage_dma(nd, free.pop(0))); nd += 1
    run(q.setup_late())
    for i in range(4): run(q.stage_read(i))
    ho.set_flag(p.last_store); tm.stamp()
    free += bases0; nr = 4
    npoll = opt.get('npoll', NSL - 2)
    while nd < NSL:
        if nd == npoll: ho.poll_issue(vPollH)()
        if not free:
            run(q.stage_read(nr)); free.append(q.base[nr]); nr += 1
        run(q.stage_dma(nd, free.pop(0))); nd += 1
    while nr < 12: run(q.stage_read(nr)); nr += 1
    ho.poll_check(vPollH, 1)(); tm.stamp()
    weave(e, q.first_loads(), [x for i in range(nr, 16) for x in q.stage_read(i)], start=8)
    q.mainloop(16, NSL, [])
    tm.stamp()
    if tm.on: e.wait_vm_all(); tm.stamp(); tm.flush(T)
    e("s_endpgm")
    print("F over p1", p.over, "p2", q.over, file=sys.stderr)
    return n_join

def role_P(e, opt, tm, n_join):
    run = lambda l: [x() if callable(x) else e(x) for x in l]
    p = P1(e, 'F', opt, tm); T = p.vT
    ho = Handoff(e, 'P', p.vPD, p.vFlag, T + 1, opt.get('slpP', 32))
    q = P2(e, opt, tm, ho)
    srd(e, SW1, 640*1728*2); srd(e, SWQ, 640*1920*2)
    e(f"""
    s_lshl_b32 s{sT0}, s{sT0}, 1
    s_sub_u32 s{sT1}, s{sI}, 30
    s_add_u32 s{sT0}, s{sT0}, s{sT1}
    s_lshl_b32 s{sT0}, s{sT0}, 2
    s_add_u32 s{sT0}, s{sT0}, s{sWV}
    s_mul_i32 s{sT2}, s{sT0}, {32*1280}
    s_add_u32 s{sT2}, s{sT2}, 128
    v_lshrrev_b32 v{T}, 1, v1
    v_and_b32 v{T+1}, {1 if opt.get('ux2', 0) else 0}, v1
    v_mul_u32_u24 v{T}, 1280, v{T}
    v_lshl_add_u32 v{T}, v{T+1}, 7, v{T}
    s_lshl_b32 s{sT3}, s{sT0}, 13
    s_add_u32 s{sT3}, s{sT3}, {32*3456}
    v_lshlrev_b32 v{T+1}, 7, v1
    """)
    ul = [f"buffer_load_dword v{p.vDUM}, v{T+1}, s[{SW1}:{SW1+3}], s{sT3} offen", f"buffer_load_dword v{p.vDUM}, v{T}, s[{SX}:{SX+3}], s{sT2} offen"]
    for x in (ul[::-1] if opt.get('uxf') else ul): e.touch(x)
    e(f"""
    s_lshl_b32 s{sT1}, s{sT1}, 2
    s_add_u32 s{sT1}, s{sT1}, s{sWV}
    s_mul_i32 s{sT1}, s{sT1}, {7*3840}
    s_and_b32 s{sT2}, s2, 3
    s_mul_i32 s{sT2}, s{sT2}, 320
    s_and_b32 s{sT2}, s{sT2}, 0xffffff80
    s_add_u32 s{sT1}, s{sT1}, s{sT2}
    s_add_u32 s{sT1}, s{sT1}, {opt.get('prow0', 32)*3840}
    v_min_u32 v{T}, 62, v1
    v_mul_u32_u24 v{T+1}, 57, v{T}
    v_lshrrev_b32 v{T+1}, 9, v{T+1}
    v_mad_i32_i24 v{T}, v{T+1}, -9, v{T}
    v_mul_u32_u24 v{T+1}, 3840, v{T+1}
    v_mul_u32_u24 v{T+2}, 11, v{T}
    v_lshrrev_b32 v{T+2}, 5, v{T+2}
    v_mul_u32_u24 v{T+2}, 896, v{T+2}
    v_lshl_add_u32 v{T}, v{T}, 7, v{T+2}
    v_add_u32 v{T}, v{T}, v{T+1}
    s_mul_i32 s{sM2}, s{sWV}, {4*WBLK}
    v_mov_b32 v{p.vFlag}, {OOB}
    """)
    rest_srds(e, 'P')
    for k in range(-(-(640 - opt.get('prow0', 32)) // 56)):
        e.touch(f"buffer_load_dword v{p.vDUM}, v{T}, s[{SWQ}:{SWQ+3}], s{sT1} offen")
        e(f"s_add_u32 s{sT1}, s{sT1}, {56*3840}")
        if k >= opt.get('pdep', 1): e.wait_vm(e.vm[-1 - opt.get('pdep', 1)])
    q.setup_early()
    for k, b in enumerate([E0, WB(15), WB(16), WB(17)]): run(q.stage_dma(k, b))
    ho.poll_issue(q.vCnt, SDBG)(); ho.poll_check(q.vCnt, 15, SDBG)()
    e.wait_vm_all()
    while tm.on and tm.n < n_join: tm.stamp()
    e("s_branch L_post")

def fused(opt):
    e = Emit(); k = KN + '_kernel'
    e.raw(kstart(k))
    tm = Stamps(e, opt.get('ts', 0)); tm.first()
    entry(e, opt, tm)
    snap = e.snapshot(); n0 = tm.n
    n_join = role_F(e, opt, tm)
    e.restore(snap); tm.n = n0; e.raw("L_A:"); role_A(e, opt, tm)
    e.restore(snap); tm.n = n0; e.raw("L_P:"); role_P(e, opt, tm, n_join)
    e.raw("L_done:")
    e("s_endpgm")
    print(e.stats, "nops", e.nops, file=sys.stderr)
    txt = HDR + f"; @launch grid=(256,1,1) block=(256,1,1) lds={LDS_END}\n"
    txt += '.amdgcn_target "amdgcn-amd-amdhsa--gfx950"\n.text\n' + e.text()
    txt += f"; padding: the code prefetch above reads 65536 bytes from the entry\n.fill ((65536 + 512 - (. - {k})) / 4), 4, 0xbf810000\n" + kdesc(k)
    return txt

if __name__ == '__main__':
    opt = json.loads(sys.argv[2]) if len(sys.argv) > 2 else {}
    open(sys.argv[1], 'w').write(fused(opt))
```
